```python
import torch

def _softmax(x, axis=-1):
    return torch.softmax(x, dim=axis)
def _gelu(x):
    return torch.nn.functional.gelu(x, approximate="tanh")
def _silu(x):
    return torch.nn.functional.silu(x)
def _sigmoid(x):
    return torch.sigmoid(x)
def _layernorm(x, axis=-1, eps=1e-5):
    m = x.mean(dim=axis, keepdim=True)
    v = x.var(dim=axis, keepdim=True, unbiased=False)
    return (x - m) / torch.sqrt(v + eps)
def _scatter_add(tgt, idx, src, axis=0):
    return tgt.clone().index_add_(axis, idx, src)
def _segment_sum(src, seg, n):
    out = torch.zeros((n,) + src.shape[1:], dtype=src.dtype)
    return out.index_add_(0, seg, src)
def _pad(x, pw):
    flat = tuple(v for pair in reversed(pw) for v in pair)
    return torch.nn.functional.pad(x, flat)

kernel_name = 'standalone__qk_norm__prompt'

def setup_inputs():

    _w = (lambda a: (lambda t: t.to(torch.bfloat16) if t.is_floating_point() else t)(torch.as_tensor(a)))
    B, H, S, D = 1, 32, 2048, 1024
    Dh = D // H
    return {
        "q": _w((lambda *s: torch.randn(*s, dtype=torch.bfloat16) * 0.05)(B, H, S, Dh)),
        "k": _w((lambda *s: torch.randn(*s, dtype=torch.bfloat16) * 0.05)(B, H, S, Dh)),
        "v": _w((lambda *s: torch.randn(*s, dtype=torch.bfloat16) * 0.8)(B, H, S, Dh)),
        "t": _w(torch.abs((lambda *s: torch.randn(*s, dtype=torch.bfloat16) * 0.8)(H)) + 1.0),
    }

def reference(q, k, v, t):
    eps = 1e-6
    qn = q / (torch.sqrt((q * q).sum(axis=-1, keepdims=True)) + eps)
    kn = k / (torch.sqrt((k * k).sum(axis=-1, keepdims=True)) + eps)
    logits = torch.einsum('bhqd,bhkd->bhqk', qn, kn) * t[None, :, None, None]
    attn = _softmax(logits, axis=-1)
    return torch.einsum('bhqk,bhkd->bhqd', attn, v)
```

```python
import sys
OPT = dict(a.split("=") for a in sys.argv[2:] if "=" in a)
def opt(name, default): return type(default)(OPT.get(name, default))

HEADER = open("standalone__qk_norm__prompt.s.ref").read().split("; Override launch")[0]
NAME = "standalone__qk_norm__prompt_kernel"
L = []
def e(s=""): L.append("    " + s if s and not s.endswith(":") else s)
def c(s): L.append("    ; " + s)

class VA:
    def __init__(s): s.n = 1
    def get(s, k=1, al=1):
        s.n = (s.n + al - 1) // al * al
        b = s.n; s.n += k; return b
va = VA()
def vr(b, n): return f"v[{b}:{b+n-1}]"
vLANE = va.get(); vKR = va.get(); vVR = va.get(); vKRl = va.get(); vVRl = va.get(); vKWl = va.get(); vKW = va.get()
vG32 = va.get(); vG16 = va.get(); vIDX = va.get(); vT0 = va.get(); vT1 = va.get(); vT2 = va.get(1, 2); vT3 = va.get(); vTL = va.get()
ONES = va.get(4, 4)
QA = va.get(8, 4); QB = va.get(8, 4)
KF = va.get(8, 4); VF0 = va.get(4, 4); VF1 = va.get(4, 4)
LA = va.get(4, 4); LB = va.get(4, 4)
RAW = va.get(8, 4); UNP = va.get(16, 4); PK = va.get(8, 4)
SA = va.get(16, 4); SB = va.get(16, 4)
OA = va.get(16, 4); OB = va.get(16, 4)
CA = va.get(16, 4); CB = va.get(16, 4)
NV = va.n

sQ, sK, sV, sO = 16, 20, 24, 28
sHEAD = 32
sPART = 33
sWAVE = 34
sSTG = 35
sT = 36
sGOFF = 37
sSLOT2 = 38
sSLOT1 = 39
sTMP = 40; sTMP2 = 41; sW2K = 42; sCH = 43; sM0V = 44
LDS_Q = 131072
LDS_RED = 32768
LDS_TOTAL = 147456

def norm(raw, extra_scale=None, dpp=True):
    e(f"v_dot2_f32_bf16 v{vT0}, v{raw}, v{raw}, 0")
    e(f"v_dot2_f32_bf16 v{vT1}, v{raw+1}, v{raw+1}, 0")
    for j in range(2, 8, 2):
        e(f"v_dot2_f32_bf16 v{vT0}, v{raw+j}, v{raw+j}, v{vT0}")
        e(f"v_dot2_f32_bf16 v{vT1}, v{raw+j+1}, v{raw+j+1}, v{vT1}")
    for j in range(2):
        e(f"v_lshlrev_b32 v{UNP+2*j}, 16, v{raw+j}")
        e(f"v_and_b32 v{UNP+2*j+1}, 0xffff0000, v{raw+j}")
    e(f"v_add_f32 v{vT0}, v{vT0}, v{vT1}")
    for j in range(2, 3):
        e(f"v_lshlrev_b32 v{UNP+2*j}, 16, v{raw+j}")
        e(f"v_and_b32 v{UNP+2*j+1}, 0xffff0000, v{raw+j}")
    if dpp:
        e(f"v_add_f32_dpp v{vT0}, v{vT0}, v{vT0} quad_perm:[1,0,3,2] row_mask:0xf bank_mask:0xf")
    else:
        e(f"v_mov_b32 v{vT1}, v{vT0}")
        e("s_nop 1")
        e(f"v_permlane32_swap_b32 v{vT0}, v{vT1}")
        e("s_nop 1")
        e(f"v_add_f32 v{vT0}, v{vT0}, v{vT1}")
    e(f"v_sqrt_f32 v{vT0}, v{vT0}")
    for j in range(3, 4):
        e(f"v_lshlrev_b32 v{UNP+2*j}, 16, v{raw+j}")
        e(f"v_and_b32 v{UNP+2*j+1}, 0xffff0000, v{raw+j}")
    e(f"v_add_f32 v{vT0}, 0x358637bd, v{vT0}")
    e(f"v_rcp_f32 v{vT2}, v{vT0}")
    for j in range(4, 8):
        e(f"v_lshlrev_b32 v{UNP+2*j}, 16, v{raw+j}")
        e(f"v_and_b32 v{UNP+2*j+1}, 0xffff0000, v{raw+j}")
    if extra_scale is not None:
        e(f"v_mul_f32 v{vT2}, v{vT2}, v{extra_scale}")
    assert vT2 % 2 == 0
    for j in range(8):
        e(f"v_pk_mul_f32 {vr(UNP+2*j,2)}, {vr(UNP+2*j,2)}, {vr(vT2,2)} op_sel_hi:[1,0]")
    for j in range(8):
        e(f"v_cvt_pk_bf16_f32 v{PK+j}, v{UNP+2*j}, v{UNP+2*j+1}")

if vT2 % 2: raise SystemExit("vT2 align")

def qk(S, Q, C):
    return [f"v_mfma_f32_32x32x16_bf16 {vr(S,16)}, {vr(KF,4)}, {vr(Q,4)}, {vr(C,16)}",
            f"v_mfma_f32_32x32x16_bf16 {vr(S,16)}, {vr(KF+4,4)}, {vr(Q+4,4)}, {vr(S,16)}"]
def pv(O, VF, S): return f"v_smfmac_f32_32x32x32_bf16 {vr(O,16)}, {vr(VF,4)}, {vr(S,8)}, v{vIDX}"
def sm(Lr, S): return f"v_smfmac_f32_16x16x64_bf16 {vr(Lr,4)}, {vr(ONES,4)}, {vr(S,8)}, v{vIDX}"
def ex(S, a, b):
    for j in range(a, b): e(f"v_exp_f32 v{S+j}, v{S+j}")
def rdK(t):
    e(f"ds_read_b128 {vr(KF,4)}, v{vKR} offset:{t*2048}")
    e(f"ds_read_b128 {vr(KF+4,4)}, v{vKR} offset:{t*2048+1024}")
def rdV(VF, t, half):
    e(f"ds_read_b64_tr_b16 {vr(VF,2)}, v{vVR} offset:{t*2048+half*1024}")
    e(f"ds_read_b64_tr_b16 {vr(VF+2,2)}, v{vVR} offset:{t*2048+half*1024+256}")

def slotA(kt):
    c(f"--- slot A kt={kt}")
    q = qk(SB, QB, CB)
    ex(SA, 0, 2)
    e(pv(OB, VF1, SB+8))
    ex(SA, 2, 5)
    e(sm(LB, SB+8))
    rdV(VF1, kt, 1)
    ex(SA, 5, 7)
    e(q[0])
    ex(SA, 7, 10)
    e(q[1])
    if kt == 3: e(f"v_add_u32 v{vKR}, s{sSLOT1}, v{vKRl}")
    rdK((kt + 1) & 3)
    ex(SA, 10, 13)
    e("s_waitcnt lgkmcnt(4)")
    e(pv(OA, VF0, SA))
    ex(SA, 13, 16)
    e(sm(LA, SA))
def slotB(kt):
    c(f"--- slot B kt={kt}")
    q = qk(SA, QA, CA)
    ex(SB, 0, 2)
    e("s_waitcnt lgkmcnt(2)")
    e(pv(OA, VF1, SA+8))
    ex(SB, 2, 5)
    e(sm(LA, SA+8))
    ex(SB, 5, 7)
    e("s_waitcnt lgkmcnt(0)")
    e(q[0])
    ex(SB, 7, 10)
    e(q[1])
    if kt == 3: e(f"v_add_u32 v{vVR}, s{sSLOT1}, v{vVRl}")
    ex(SB, 10, 13)
    e(pv(OB, VF0, SB))
    rdV(VF0, (kt + 1) & 3, 0)
    ex(SB, 13, 16)
    e(sm(LB, SB))

def issue_loads(rawdst, soff, m0src):
    e(f"buffer_load_dwordx4 {vr(rawdst,4)}, v{vG32}, s[{sK}:{sK+3}], s{soff} offen")
    e(f"buffer_load_dwordx4 {vr(rawdst+4,4)}, v{vG32}, s[{sK}:{sK+3}], s{soff} offen offset:16")
    e(f"s_mov_b32 m0, s{m0src}")
    e("s_nop 0")
    e(f"buffer_load_dwordx4 v{vG16}, s[{sV}:{sV+3}], s{soff} offen lds")
    e(f"buffer_load_dwordx4 v{vG16}, s[{sV}:{sV+3}], s{soff} offen offset:1024 lds")
def wrPK(addr):
    e(f"ds_write_b128 v{addr}, {vr(PK,4)}")
    e(f"ds_write_b128 v{addr}, {vr(PK+4,4)} offset:1024")

e(f"{NAME}:")
e("s_cmp_ge_u32 s2, 256")
e("s_cbranch_scc1 L_end")
e("s_load_dwordx8 s[4:11], s[0:1], 0")
e("s_load_dwordx2 s[12:13], s[0:1], 32")
c("head = (wg&7)*4 + ((wg>>3)&3), part = wg>>5")
e("s_and_b32 s3, s2, 7")
e("s_lshl_b32 s3, s3, 2")
e(f"s_bfe_u32 s{sTMP}, s2, 0x20003")
e(f"s_add_u32 s3, s3, s{sTMP}")
e(f"s_lshl_b32 s{sHEAD}, s3, 17")
e(f"s_lshr_b32 s{sPART}, s2, 5")
e(f"v_lshrrev_b32 v{vT0}, 6, v0")
e(f"v_and_b32 v{vLANE}, 63, v0")
e(f"v_readfirstlane_b32 s{sWAVE}, v{vT0}")
e(f"v_lshlrev_b32 v{vG32}, 5, v{vLANE}")
e(f"v_lshlrev_b32 v{vG16}, 4, v{vLANE}")
e(f"s_lshl_b32 s{sW2K}, s{sWAVE}, 11")
e(f"s_add_u32 s{sHEAD}, s{sHEAD}, s{sW2K}")
e(f"s_lshl_b32 s{sCH}, s{sPART}, 14")
e(f"s_add_u32 s{sGOFF}, s{sHEAD}, s{sCH}")
e(f"s_add_u32 s{sM0V}, s{sW2K}, 16384")
e(f"s_lshr_b32 s{sTMP2}, s3, 1")
e(f"s_lshl_b32 s{sTMP2}, s{sTMP2}, 2")
for s in (sQ, sK, sV, sO):
    e(f"s_mov_b32 s{s+2}, 0x400000")
    e(f"s_mov_b32 s{s+3}, 0x00020000")
e("s_waitcnt lgkmcnt(0)")
e(f"s_load_dword s{sT}, s[10:11], s{sTMP2}")
for s, p in ((sQ, 4), (sK, 6), (sV, 8), (sO, 12)):
    e(f"s_mov_b32 s{s}, s{p}")
    e(f"s_mov_b32 s{s+1}, s{p+1}")
c("prologue loads: K(0) V(0) Q K(1) V(1)")
issue_loads(SA, sGOFF, sM0V)
e(f"buffer_load_dwordx4 {vr(SA+8,4)}, v{vG32}, s[{sQ}:{sQ+3}], s{sGOFF} offen")
e(f"buffer_load_dwordx4 {vr(SA+12,4)}, v{vG32}, s[{sQ}:{sQ+3}], s{sGOFF} offen offset:16")
e(f"s_add_u32 s{sCH}, s{sCH}, 16384")
e(f"s_and_b32 s{sCH}, s{sCH}, 0x1ffff")
e(f"s_add_u32 s{sTMP}, s{sHEAD}, s{sCH}")
e(f"s_add_u32 s{sTMP2}, s{sM0V}, 32768")
issue_loads(SB, sTMP, sTMP2)
c("lane constants")
e(f"v_and_b32 v{vT0}, 1, v{vLANE}")
e(f"v_lshrrev_b32 v{vT1}, 1, v{vLANE}")
e(f"v_lshlrev_b32 v{vT2}, 2, v{vT0}")
e(f"v_xor_b32 v{vT1}, v{vT1}, v{vT2}")
e(f"v_lshlrev_b32 v{vT1}, 4, v{vT1}")
e(f"v_lshl_add_u32 v{vT1}, v{vT0}, 9, v{vT1}")
e(f"v_add_u32 v{vKWl}, s{sW2K}, v{vT1}")
e(f"v_lshrrev_b32 v{vT0}, 5, v{vLANE}")
e(f"v_lshlrev_b32 v{vT0}, 2, v{vT0}")
e(f"v_xor_b32 v{vT0}, v{vT0}, v{vLANE}")
e(f"v_lshlrev_b32 v{vT3}, 4, v{vT0}")
e(f"s_and_b32 s{sTMP}, s{sWAVE}, 4")
e(f"s_lshl_b32 s{sTMP}, s{sTMP}, 11")
e(f"v_add_u32 v{vKRl}, s{sTMP}, v{vT3}")
e(f"v_lshrrev_b32 v{vT0}, 5, v{vLANE}")
e(f"v_lshlrev_b32 v{vT0}, 9, v{vT0}")
e(f"v_bfe_u32 v{vT1}, v{vLANE}, 2, 2")
e(f"v_lshl_add_u32 v{vT0}, v{vT1}, 6, v{vT0}")
e(f"v_bfe_u32 v{vT1}, v{vLANE}, 4, 1")
e(f"v_lshl_add_u32 v{vT0}, v{vT1}, 5, v{vT0}")
e(f"v_and_b32 v{vT1}, 3, v{vLANE}")
e(f"v_lshl_add_u32 v{vT0}, v{vT1}, 3, v{vT0}")
e(f"s_add_u32 s{sTMP}, s{sTMP}, 16384")
e(f"v_add_u32 v{vVRl}, s{sTMP}, v{vT0}")
e(f"v_mov_b32 v{vKR}, v{vKRl}")
e(f"v_mov_b32 v{vVR}, v{vVRl}")
e(f"v_mov_b32 v{vIDX}, 0xdddddddd")
e(f"v_bfe_i32 v{vT0}, v{vLANE}, 2, 1")
e(f"v_and_b32 v{ONES+2}, 0x3f803f80, v{vT0}")
e(f"v_mov_b32 v{ONES+3}, v{ONES+2}")
e(f"v_xor_b32 v{ONES}, 0x3f803f80, v{ONES+2}")
e(f"v_mov_b32 v{ONES+1}, v{ONES}")
for r in list(range(OA, OA+16)) + list(range(OB, OB+16)) + list(range(LA, LA+4)) + list(range(LB, LB+4)) + list(range(VF1, VF1+4)):
    e(f"v_mov_b32 v{r}, 0")
e("s_waitcnt lgkmcnt(0)")
c("t: bf16 -> f32 bits")
e(f"s_lshl_b32 s{sTMP}, s{sT}, 16")
e(f"s_and_b32 s{sTMP2}, s{sT}, 0xffff0000")
e("s_bitcmp1_b32 s3, 0")
e(f"s_cselect_b32 s{sT}, s{sTMP2}, s{sTMP}")
e(f"v_mov_b32 v{vTL}, 0x3fb8aa3b")
e(f"v_mul_f32 v{vTL}, s{sT}, v{vTL}")
e(f"v_or_b32 v{CA}, 0x80000000, v{vTL}")
for j in range(1, 16): e(f"v_mov_b32 v{CA+j}, v{CA}")
for j in range(0, 16): e(f"v_mov_b32 v{CB+j}, v{CA}")
c("K(0)")
e("s_waitcnt vmcnt(8)")
norm(SA)
wrPK(vKWl)
c("Q tile")
e("s_waitcnt vmcnt(4)")
norm(SA+8, extra_scale=vTL)
e(f"v_add_u32 v{vKW}, {LDS_Q}, v{vKWl}")
wrPK(vKW)
c("K(1)")
e("s_waitcnt vmcnt(2)")
norm(SB)
e(f"v_add_u32 v{vKW}, 32768, v{vKWl}")
wrPK(vKW)
for j in range(8, 16): e(f"v_mov_b32 v{SB+j}, 0")
e(f"s_add_u32 s{sTMP}, s{sW2K}, {LDS_Q}")
e(f"v_add_u32 v{vT0}, s{sTMP}, v{vT3}")
e(f"v_xor_b32 v{vT1}, 8192, v{vT0}")
e("s_waitcnt vmcnt(0) lgkmcnt(0)")
e("s_barrier")
e(f"ds_read_b128 {vr(QA,4)}, v{vT0}")
e(f"ds_read_b128 {vr(QA+4,4)}, v{vT0} offset:1024")
rdK(0)
e(f"ds_read_b128 {vr(QB,4)}, v{vT1}")
e(f"ds_read_b128 {vr(QB+4,4)}, v{vT1} offset:1024")
rdV(VF0, 0, 0)
c("fast path check: |t| <= 16")
e(f"s_and_b32 s{sTMP}, s{sT}, 0x7fffffff")
e(f"s_cmp_le_u32 s{sTMP}, 0x41800000")
e("s_cbranch_scc0 L_maxpass")
e("L_start:")
e(f"s_mov_b32 s{sSTG}, 0")
e(f"s_mov_b32 s{sSLOT1}, 32768")
e(f"s_mov_b32 s{sSLOT2}, 65536")
e("s_waitcnt lgkmcnt(0)")
for s in qk(SA, QA, CA): e(s)
e("s_nop 7")
e("s_nop 7")
e(".p2align 6")
e("L_stage:")
c("issue loads for stage+2")
e(f"s_cmp_ge_u32 s{sSTG}, 6")
e("s_cbranch_scc1 L_noload")
e(f"s_add_u32 s{sCH}, s{sCH}, 16384")
e(f"s_and_b32 s{sCH}, s{sCH}, 0x1ffff")
e(f"s_add_u32 s{sGOFF}, s{sHEAD}, s{sCH}")
e(f"s_add_u32 s{sTMP}, s{sM0V}, s{sSLOT2}")
issue_loads(RAW, sGOFF, sTMP)
e("L_noload:")
for kt in range(4):
    slotA(kt)
    slotB(kt)
    if kt == 2:
        e(f"s_cmp_ge_u32 s{sSTG}, 6")
        e("s_cbranch_scc1 L_nonorm")
        e("s_waitcnt vmcnt(2)")
        norm(RAW)
        e(f"v_add_u32 v{vKW}, s{sSLOT2}, v{vKWl}")
        wrPK(vKW)
        e("L_nonorm:")
e(f"s_add_u32 s{sSTG}, s{sSTG}, 1")
e(f"s_mov_b32 s{sSLOT1}, s{sSLOT2}")
e(f"s_add_u32 s{sSLOT2}, s{sSLOT2}, 32768")
e(f"s_and_b32 s{sSLOT2}, s{sSLOT2}, 0x1ffff")
e(f"s_cmp_eq_u32 s{sSTG}, 8")
e("s_cbranch_scc1 L_done")
e("s_waitcnt vmcnt(0)")
e("s_barrier")
e("s_branch L_stage")
e("L_done:")
e("s_nop 1")
e(pv(OB, VF1, SB+8))
e(sm(LB, SB+8))
c("exchange partial sums: write B partials for tile w^4, read partials for tile w")
e(f"s_lshl_b32 s{sTMP}, s{sWAVE}, 13")
e(f"s_add_u32 s{sTMP}, s{sTMP}, {LDS_RED}")
e(f"v_add_u32 v{vT0}, s{sTMP}, v{vG16}")
e(f"s_xor_b32 s{sTMP2}, s{sWAVE}, 4")
e(f"s_lshl_b32 s{sTMP2}, s{sTMP2}, 13")
e(f"s_add_u32 s{sTMP2}, s{sTMP2}, {LDS_RED}")
e(f"v_add_u32 v{vT1}, s{sTMP2}, v{vG16}")
e(f"v_and_b32 v{vT2}, 31, v{vLANE}")
e(f"v_lshlrev_b32 v{vT2}, 6, v{vT2}")
e(f"v_lshrrev_b32 v{vT3}, 5, v{vLANE}")
e(f"v_lshl_add_u32 v{vKW}, v{vT3}, 4, v{vT2}")
e(f"s_lshl_b32 s{sTMP}, s{sPART}, 14")
e(f"s_add_u32 s{sGOFF}, s{sHEAD}, s{sTMP}")
e("s_nop 7")
e("s_nop 3")
e("s_waitcnt lgkmcnt(0)")
for j in range(4): e(f"ds_write_b128 v{vT1}, {vr(OB+4*j,4)} offset:{1024*j}")
e(f"ds_write_b32 v{vT1}, v{LB} offset:4096")
e("s_waitcnt lgkmcnt(0)")
e("s_barrier")
e(f"ds_read_b32 v{LB}, v{vT0} offset:4096")
for j in range(4): e(f"ds_read_b128 {vr(OB+4*j,4)}, v{vT0} offset:{1024*j}")
e("s_waitcnt lgkmcnt(4)")
e(f"v_add_f32 v{LA}, v{LA}, v{LB}")
e(f"v_rcp_f32 v{vT2}, v{LA}")
for j in range(4):
    e(f"s_waitcnt lgkmcnt({3-j})")
    for i in range(2):
        r = 4*j + 2*i
        e(f"v_pk_add_f32 {vr(OA+r,2)}, {vr(OA+r,2)}, {vr(OB+r,2)}")
for i in range(8):
    e(f"v_pk_mul_f32 {vr(OA+2*i,2)}, {vr(OA+2*i,2)}, {vr(vT2,2)} op_sel_hi:[1,0]")
for i in range(8):
    e(f"v_cvt_pk_bf16_f32 v{PK+i}, v{OA+2*i}, v{OA+2*i+1}")
e("s_nop 1")
e(f"v_permlane32_swap_b32 v{PK+0}, v{PK+2}")
e(f"v_permlane32_swap_b32 v{PK+1}, v{PK+3}")
e(f"v_permlane32_swap_b32 v{PK+4}, v{PK+6}")
e(f"v_permlane32_swap_b32 v{PK+5}, v{PK+7}")
e("s_nop 1")
e(f"buffer_store_dwordx4 {vr(PK,4)}, v{vKW}, s[{sO}:{sO+3}], s{sGOFF} offen")
e(f"buffer_store_dwordx4 {vr(PK+4,4)}, v{vKW}, s[{sO}:{sO+3}], s{sGOFF} offen offset:32")
e("L_end:")
e("s_endpgm")

c("|t| large (or NaN): find the true row max of the logits first, then run the main loop with C = -max")
e("L_maxpass:")
e("s_waitcnt lgkmcnt(0)")
e(f"v_and_b32 v{vT0}, 31, v{vLANE}")
e(f"v_lshlrev_b32 v{vT0}, 6, v{vT0}")
e(f"v_lshrrev_b32 v{vT1}, 5, v{vLANE}")
e(f"v_lshl_add_u32 v{vKW}, v{vT1}, 5, v{vT0}")
e(f"s_sub_u32 s{sTMP}, s{sHEAD}, s{sW2K}")
e(f"s_mov_b32 s{sSTG}, 0")
e(f"v_mov_b32 v{CA}, 0xff800000")
e(f"v_mov_b32 v{CB}, 0xff800000")
e("L_maxloop:")
e(f"buffer_load_dwordx4 {vr(RAW,4)}, v{vKW}, s[{sK}:{sK+3}], s{sTMP} offen")
e(f"buffer_load_dwordx4 {vr(RAW+4,4)}, v{vKW}, s[{sK}:{sK+3}], s{sTMP} offen offset:16")
e("s_waitcnt vmcnt(0)")
norm(RAW, dpp=False)
e("s_nop 1")
for S, Q in ((SA, QA), (UNP, QB)):
    e(f"v_mfma_f32_32x32x16_bf16 {vr(S,16)}, {vr(PK,4)}, {vr(Q,4)}, 0")
    e(f"v_mfma_f32_32x32x16_bf16 {vr(S,16)}, {vr(PK+4,4)}, {vr(Q+4,4)}, {vr(S,16)}")
e("s_nop 15")
for S, C in ((SA, CA), (UNP, CB)):
    for j in range(8): e(f"v_max3_f32 v{C}, v{S+2*j}, v{S+2*j+1}, v{C}")
e(f"s_add_u32 s{sTMP}, s{sTMP}, 2048")
e(f"s_add_u32 s{sSTG}, s{sSTG}, 1")
e(f"s_cmp_lt_u32 s{sSTG}, 64")
e("s_cbranch_scc1 L_maxloop")
for C in (CA, CB):
    e(f"v_mov_b32 v{vT0}, v{C}")
    e("s_nop 1")
    e(f"v_permlane32_swap_b32 v{vT0}, v{C}")
    e("s_nop 1")
    e(f"v_max_f32 v{C}, v{C}, v{vT0}")
    e(f"v_xor_b32 v{C}, 0x80000000, v{C}")
    for j in range(1, 16): e(f"v_mov_b32 v{C+j}, v{C}")
e("s_branch L_start")

nv = (NV + 7) // 8 * 8
src = HEADER + f"; @launch grid=(256,1,1) block=(512,1,1) lds={LDS_TOTAL}\n" + f""".amdgcn_target "amdgcn-amd-amdhsa--gfx950"
.text
.globl {NAME}
.p2align 8
.type {NAME},@function
""" + "\n".join(L) + f"""
.section .rodata,"a"
.p2align 6
.amdhsa_kernel {NAME}
  .amdhsa_next_free_vgpr {nv}
  .amdhsa_next_free_sgpr 64
  .amdhsa_accum_offset {nv}
  .amdhsa_group_segment_fixed_size 0
  .amdhsa_kernarg_size 56
  .amdhsa_user_sgpr_count 2
  .amdhsa_user_sgpr_kernarg_segment_ptr 1
  .amdhsa_system_sgpr_workgroup_id_x 1
.end_amdhsa_kernel
"""
open(sys.argv[1], "w").write(src)
print("vgprs", NV, "->", nv)
```

```python
import sys
OPT = dict(a.split("=") for a in sys.argv[2:] if "=" in a)
def opt(name, default): return type(default)(OPT.get(name, default))

HEADER = open("standalone__qk_norm__prompt.s.ref").read().split("; Override launch")[0]
NAME = "standalone__qk_norm__prompt_kernel"
L = []
def e(s=""): L.append("    " + s if s and not s.endswith(":") else s)
def c(s): L.append("    ; " + s)

class VA:
    def __init__(s): s.n = 1
    def get(s, k=1, al=1):
        s.n = (s.n + al - 1) // al * al
        b = s.n; s.n += k; return b
va = VA()
def vr(b, n): return f"v[{b}:{b+n-1}]"
vLANE = va.get(); vKR = va.get(); vVR = va.get(); vKRl = va.get(); vVRl = va.get(); vKWl = va.get(); vKW = va.get()
vG32 = va.get(); vG16 = va.get(); vIDX = va.get(); vT0 = va.get(); vT1 = va.get(); vT2 = va.get(1, 2); vT3 = va.get(); vTL = va.get()
ONES = va.get(4, 4)
QA = va.get(8, 4); QB = va.get(8, 4)
KF = va.get(8, 4); VF0 = va.get(4, 4); VF1 = va.get(4, 4)
LA = va.get(4, 4); LB = va.get(4, 4)
RAW = va.get(8, 4); UNP = va.get(16, 4); PK = va.get(8, 4)
SA = va.get(16, 4); SB = va.get(16, 4)
OA = va.get(16, 4); OB = va.get(16, 4)
CA = va.get(16, 4); CB = va.get(16, 4)
NV = va.n

sQ, sK, sV, sO = 16, 20, 24, 28
sHEAD = 32
sPART = 33
sWAVE = 34
sSTG = 35
sT = 36
sGOFF = 37
sSLOT2 = 38
sSLOT1 = 39
sTMP = 40; sTMP2 = 41; sW2K = 42; sCH = 43; sM0V = 44
LDS_Q = 131072
LDS_RED = 32768
LDS_TOTAL = 147456

def norm(raw, extra_scale=None, dpp=True):
    e(f"v_dot2_f32_bf16 v{vT0}, v{raw}, v{raw}, 0")
    e(f"v_dot2_f32_bf16 v{vT1}, v{raw+1}, v{raw+1}, 0")
    for j in range(2, 8, 2):
        e(f"v_dot2_f32_bf16 v{vT0}, v{raw+j}, v{raw+j}, v{vT0}")
        e(f"v_dot2_f32_bf16 v{vT1}, v{raw+j+1}, v{raw+j+1}, v{vT1}")
    for j in range(2):
        e(f"v_lshlrev_b32 v{UNP+2*j}, 16, v{raw+j}")
        e(f"v_and_b32 v{UNP+2*j+1}, 0xffff0000, v{raw+j}")
    e(f"v_add_f32 v{vT0}, v{vT0}, v{vT1}")
    for j in range(2, 3):
        e(f"v_lshlrev_b32 v{UNP+2*j}, 16, v{raw+j}")
        e(f"v_and_b32 v{UNP+2*j+1}, 0xffff0000, v{raw+j}")
    if dpp:
        e(f"v_add_f32_dpp v{vT0}, v{vT0}, v{vT0} quad_perm:[1,0,3,2] row_mask:0xf bank_mask:0xf")
    else:
        e(f"v_mov_b32 v{vT1}, v{vT0}")
        e("s_nop 1")
        e(f"v_permlane32_swap_b32 v{vT0}, v{vT1}")
        e("s_nop 1")
        e(f"v_add_f32 v{vT0}, v{vT0}, v{vT1}")
    e(f"v_sqrt_f32 v{vT0}, v{vT0}")
    for j in range(3, 4):
        e(f"v_lshlrev_b32 v{UNP+2*j}, 16, v{raw+j}")
        e(f"v_and_b32 v{UNP+2*j+1}, 0xffff0000, v{raw+j}")
    e(f"v_add_f32 v{vT0}, 0x358637bd, v{vT0}")
    e(f"v_rcp_f32 v{vT2}, v{vT0}")
    for j in range(4, 8):
        e(f"v_lshlrev_b32 v{UNP+2*j}, 16, v{raw+j}")
        e(f"v_and_b32 v{UNP+2*j+1}, 0xffff0000, v{raw+j}")
    if extra_scale is not None:
        e(f"v_mul_f32 v{vT2}, v{vT2}, v{extra_scale}")
    assert vT2 % 2 == 0
    for j in range(8):
        e(f"v_pk_mul_f32 {vr(UNP+2*j,2)}, {vr(UNP+2*j,2)}, {vr(vT2,2)} op_sel_hi:[1,0]")
    for j in range(8):
        e(f"v_cvt_pk_bf16_f32 v{PK+j}, v{UNP+2*j}, v{UNP+2*j+1}")

if vT2 % 2: raise SystemExit("vT2 align")

def qk(S, Q, C):
    return [f"v_mfma_f32_32x32x16_bf16 {vr(S,16)}, {vr(KF,4)}, {vr(Q,4)}, {vr(C,16)}",
            f"v_mfma_f32_32x32x16_bf16 {vr(S,16)}, {vr(KF+4,4)}, {vr(Q+4,4)}, {vr(S,16)}"]
def pv(O, VF, S): return f"v_smfmac_f32_32x32x32_bf16 {vr(O,16)}, {vr(VF,4)}, {vr(S,8)}, v{vIDX}"
def sm(Lr, S): return f"v_smfmac_f32_16x16x64_bf16 {vr(Lr,4)}, {vr(ONES,4)}, {vr(S,8)}, v{vIDX}"
def ex(S, a, b):
    for j in range(a, b): e(f"v_exp_f32 v{S+j}, v{S+j}")
def rdK(t):
    e(f"ds_read_b128 {vr(KF,4)}, v{vKR} offset:{t*2048}")
    e(f"ds_read_b128 {vr(KF+4,4)}, v{vKR} offset:{t*2048+1024}")
def rdV(VF, t, half):
    e(f"ds_read_b64_tr_b16 {vr(VF,2)}, v{vVR} offset:{t*2048+half*1024}")
    e(f"ds_read_b64_tr_b16 {vr(VF+2,2)}, v{vVR} offset:{t*2048+half*1024+256}")

def slotA(kt):
    c(f"--- slot A kt={kt}")
    q = qk(SB, QB, CB)
    ex(SA, 0, 2)
    e(pv(OB, VF1, SB+8))
    ex(SA, 2, 5)
    e(sm(LB, SB+8))
    rdV(VF1, kt, 1)
    ex(SA, 5, 7)
    e(q[0])
    ex(SA, 7, 10)
    e(q[1])
    if kt == 3: e(f"v_add_u32 v{vKR}, s{sSLOT1}, v{vKRl}")
    rdK((kt + 1) & 3)
    ex(SA, 10, 13)
    e("s_waitcnt lgkmcnt(4)")
    e(pv(OA, VF0, SA))
    ex(SA, 13, 16)
    e(sm(LA, SA))
def slotB(kt):
    c(f"--- slot B kt={kt}")
    q = qk(SA, QA, CA)
    ex(SB, 0, 2)
    e("s_waitcnt lgkmcnt(2)")
    e(pv(OA, VF1, SA+8))
    ex(SB, 2, 5)
    e(sm(LA, SA+8))
    ex(SB, 5, 7)
    e("s_waitcnt lgkmcnt(0)")
    e(q[0])
    ex(SB, 7, 10)
    e(q[1])
    if kt == 3: e(f"v_add_u32 v{vVR}, s{sSLOT1}, v{vVRl}")
    ex(SB, 10, 13)
    e(pv(OB, VF0, SB))
    rdV(VF0, (kt + 1) & 3, 0)
    ex(SB, 13, 16)
    e(sm(LB, SB))

def issue_loads(rawdst, soff, m0src):
    e(f"buffer_load_dwordx4 {vr(rawdst,4)}, v{vG32}, s[{sK}:{sK+3}], s{soff} offen")
    e(f"buffer_load_dwordx4 {vr(rawdst+4,4)}, v{vG32}, s[{sK}:{sK+3}], s{soff} offen offset:16")
    e(f"s_mov_b32 m0, s{m0src}")
    e("s_nop 0")
    e(f"buffer_load_dwordx4 v{vG16}, s[{sV}:{sV+3}], s{soff} offen lds")
    e(f"buffer_load_dwordx4 v{vG16}, s[{sV}:{sV+3}], s{soff} offen offset:1024 lds")
def wrPK(addr):
    e(f"ds_write_b128 v{addr}, {vr(PK,4)}")
    e(f"ds_write_b128 v{addr}, {vr(PK+4,4)} offset:1024")

STAMP = opt("stamp", 0)
sW = 48
vST = va.get(2, 2); vSTA = va.get()
NV = va.n
def stamp(idx_expr_sgpr=None, imm=0):
    if not STAMP: return
    e("s_memtime s[52:53]")
    e("s_memrealtime s[54:55]")
    e("s_waitcnt lgkmcnt(0)")
    e(f"v_mov_b32 v{vST}, s52")
    e(f"v_mov_b32 v{vST+1}, s54")
    if idx_expr_sgpr is not None:
        e(f"s_lshl_b32 s56, s{idx_expr_sgpr}, 3")
        e(f"buffer_store_dwordx2 {vr(vST,2)}, v{vSTA}, s[{sW}:{sW+3}], s56 offen offset:{imm*8}")
    else:
        e(f"buffer_store_dwordx2 {vr(vST,2)}, v{vSTA}, s[{sW}:{sW+3}], 0 offen offset:{imm*8}")
e(f"{NAME}:")
e("s_cmp_ge_u32 s2, 256")
e("s_cbranch_scc1 L_end")
if opt("dbg", 0):
    e("s_memtime s[58:59]")
    e("s_memrealtime s[60:61]")
if STAMP:
    e("s_memtime s[58:59]")
    e("s_memrealtime s[60:61]")
    e("s_load_dwordx2 s[48:49], s[0:1], 48")
    e("s_mov_b32 s50, 0x100000")
    e("s_mov_b32 s51, 0x00020000")
e("s_load_dwordx8 s[4:11], s[0:1], 0")
e("s_load_dwordx2 s[12:13], s[0:1], 32")
c("head = (wg&7)*4 + ((wg>>3)&3), part = wg>>5")
e("s_and_b32 s3, s2, 7")
e("s_lshl_b32 s3, s3, 2")
e(f"s_bfe_u32 s{sTMP}, s2, 0x20003")
e(f"s_add_u32 s3, s3, s{sTMP}")
e(f"s_lshl_b32 s{sHEAD}, s3, 17")
e(f"s_lshr_b32 s{sPART}, s2, 5")
e(f"v_lshrrev_b32 v{vT0}, 6, v0")
e(f"v_and_b32 v{vLANE}, 63, v0")
e(f"v_readfirstlane_b32 s{sWAVE}, v{vT0}")
e(f"v_lshlrev_b32 v{vG32}, 5, v{vLANE}")
e(f"v_lshlrev_b32 v{vG16}, 4, v{vLANE}")
e(f"s_lshl_b32 s{sW2K}, s{sWAVE}, 11")
e(f"s_add_u32 s{sHEAD}, s{sHEAD}, s{sW2K}")
e(f"s_lshl_b32 s{sCH}, s{sPART}, 14")
e(f"s_add_u32 s{sGOFF}, s{sHEAD}, s{sCH}")
e(f"s_add_u32 s{sM0V}, s{sW2K}, 16384")
e(f"s_lshr_b32 s{sTMP2}, s3, 1")
e(f"s_lshl_b32 s{sTMP2}, s{sTMP2}, 2")
for s in (sQ, sK, sV, sO):
    e(f"s_mov_b32 s{s+2}, 0x400000")
    e(f"s_mov_b32 s{s+3}, 0x00020000")
e("s_waitcnt lgkmcnt(0)")
e(f"s_load_dword s{sT}, s[10:11], s{sTMP2}")
for s, p in ((sQ, 4), (sK, 6), (sV, 8), (sO, 12)):
    e(f"s_mov_b32 s{s}, s{p}")
    e(f"s_mov_b32 s{s+1}, s{p+1}")
c("prologue loads: K(0) V(0) Q K(1) V(1)")
issue_loads(SA, sGOFF, sM0V)
e(f"buffer_load_dwordx4 {vr(SA+8,4)}, v{vG32}, s[{sQ}:{sQ+3}], s{sGOFF} offen")
e(f"buffer_load_dwordx4 {vr(SA+12,4)}, v{vG32}, s[{sQ}:{sQ+3}], s{sGOFF} offen offset:16")
e(f"s_add_u32 s{sCH}, s{sCH}, 16384")
e(f"s_and_b32 s{sCH}, s{sCH}, 0x1ffff")
e(f"s_add_u32 s{sTMP}, s{sHEAD}, s{sCH}")
e(f"s_add_u32 s{sTMP2}, s{sM0V}, 32768")
issue_loads(SB, sTMP, sTMP2)
c("lane constants")
e(f"v_and_b32 v{vT0}, 1, v{vLANE}")
e(f"v_lshrrev_b32 v{vT1}, 1, v{vLANE}")
e(f"v_lshlrev_b32 v{vT2}, 2, v{vT0}")
e(f"v_xor_b32 v{vT1}, v{vT1}, v{vT2}")
e(f"v_lshlrev_b32 v{vT1}, 4, v{vT1}")
e(f"v_lshl_add_u32 v{vT1}, v{vT0}, 9, v{vT1}")
e(f"v_add_u32 v{vKWl}, s{sW2K}, v{vT1}")
e(f"v_lshrrev_b32 v{vT0}, 5, v{vLANE}")
e(f"v_lshlrev_b32 v{vT0}, 2, v{vT0}")
e(f"v_xor_b32 v{vT0}, v{vT0}, v{vLANE}")
e(f"v_lshlrev_b32 v{vT3}, 4, v{vT0}")
e(f"s_and_b32 s{sTMP}, s{sWAVE}, 4")
e(f"s_lshl_b32 s{sTMP}, s{sTMP}, 11")
e(f"v_add_u32 v{vKRl}, s{sTMP}, v{vT3}")
e(f"v_lshrrev_b32 v{vT0}, 5, v{vLANE}")
e(f"v_lshlrev_b32 v{vT0}, 9, v{vT0}")
e(f"v_bfe_u32 v{vT1}, v{vLANE}, 2, 2")
e(f"v_lshl_add_u32 v{vT0}, v{vT1}, 6, v{vT0}")
e(f"v_bfe_u32 v{vT1}, v{vLANE}, 4, 1")
e(f"v_lshl_add_u32 v{vT0}, v{vT1}, 5, v{vT0}")
e(f"v_and_b32 v{vT1}, 3, v{vLANE}")
e(f"v_lshl_add_u32 v{vT0}, v{vT1}, 3, v{vT0}")
e(f"s_add_u32 s{sTMP}, s{sTMP}, 16384")
e(f"v_add_u32 v{vVRl}, s{sTMP}, v{vT0}")
e(f"v_mov_b32 v{vKR}, v{vKRl}")
e(f"v_mov_b32 v{vVR}, v{vVRl}")
e(f"v_mov_b32 v{vIDX}, 0xdddddddd")
e(f"v_bfe_i32 v{vT0}, v{vLANE}, 2, 1")
e(f"v_and_b32 v{ONES+2}, 0x3f803f80, v{vT0}")
e(f"v_mov_b32 v{ONES+3}, v{ONES+2}")
e(f"v_xor_b32 v{ONES}, 0x3f803f80, v{ONES+2}")
e(f"v_mov_b32 v{ONES+1}, v{ONES}")
for r in list(range(OA, OA+16)) + list(range(OB, OB+16)) + list(range(LA, LA+4)) + list(range(LB, LB+4)) + list(range(VF1, VF1+4)):
    e(f"v_mov_b32 v{r}, 0")
e("s_waitcnt lgkmcnt(0)")
c("t: bf16 -> f32 bits")
e(f"s_lshl_b32 s{sTMP}, s{sT}, 16")
e(f"s_and_b32 s{sTMP2}, s{sT}, 0xffff0000")
e("s_bitcmp1_b32 s3, 0")
e(f"s_cselect_b32 s{sT}, s{sTMP2}, s{sTMP}")
e(f"v_mov_b32 v{vTL}, 0x3fb8aa3b")
e(f"v_mul_f32 v{vTL}, s{sT}, v{vTL}")
e(f"v_or_b32 v{CA}, 0x80000000, v{vTL}")
for j in range(1, 16): e(f"v_mov_b32 v{CA+j}, v{CA}")
for j in range(0, 16): e(f"v_mov_b32 v{CB+j}, v{CA}")
if STAMP:
    e(f"s_lshl_b32 s56, s2, 3")
    e(f"s_add_u32 s56, s56, s{sWAVE}")
    e(f"s_lshl_b32 s56, s56, 8")
    e(f"v_mov_b32 v{vSTA}, s56")
    e("s_memtime s[62:63]")
if opt("dbg", 0): e("s_memtime s[62:63]")
c("K(0)")
e("s_waitcnt vmcnt(8)")
if opt("dbg", 0): e("s_memtime s[64:65]")
if STAMP: e("s_memtime s[64:65]")
norm(SA)
wrPK(vKWl)
c("Q tile")
e("s_waitcnt vmcnt(4)")
norm(SA+8, extra_scale=vTL)
e(f"v_add_u32 v{vKW}, {LDS_Q}, v{vKWl}")
wrPK(vKW)
c("K(1)")
e("s_waitcnt vmcnt(2)")
norm(SB)
e(f"v_add_u32 v{vKW}, 32768, v{vKWl}")
wrPK(vKW)
for j in range(8, 16): e(f"v_mov_b32 v{SB+j}, 0")
e(f"s_add_u32 s{sTMP}, s{sW2K}, {LDS_Q}")
e(f"v_add_u32 v{vT0}, s{sTMP}, v{vT3}")
e(f"v_xor_b32 v{vT1}, 8192, v{vT0}")
if STAMP: e("s_memtime s[66:67]")
e("s_waitcnt vmcnt(0) lgkmcnt(0)")
if STAMP: e("s_memtime s[68:69]")
e("s_barrier")
if STAMP:
    e("s_waitcnt lgkmcnt(0)")
    for i, (a, b) in enumerate(((58, 60), (62, 60), (64, 60), (66, 60), (68, 60))):
        e(f"v_mov_b32 v{vST}, s{a}")
        e(f"v_mov_b32 v{vST+1}, s{b}")
        e(f"buffer_store_dwordx2 {vr(vST,2)}, v{vSTA}, s[{sW}:{sW+3}], 0 offen offset:{i*8}")
        e("s_nop 1")
    stamp(None, 5)
    e("s_waitcnt vmcnt(0)")
if opt("dbg", 0): e("s_memtime s[70:71]")
e(f"ds_read_b128 {vr(QA,4)}, v{vT0}")
e(f"ds_read_b128 {vr(QA+4,4)}, v{vT0} offset:1024")
rdK(0)
e(f"ds_read_b128 {vr(QB,4)}, v{vT1}")
e(f"ds_read_b128 {vr(QB+4,4)}, v{vT1} offset:1024")
rdV(VF0, 0, 0)
c("fast path check: |t| <= 16")
e(f"s_and_b32 s{sTMP}, s{sT}, 0x7fffffff")
e(f"s_cmp_le_u32 s{sTMP}, 0x41800000")
e("s_cbranch_scc0 L_maxpass")
e("L_start:")
e(f"s_mov_b32 s{sSTG}, 0")
e(f"s_mov_b32 s{sSLOT1}, 32768")
e(f"s_mov_b32 s{sSLOT2}, 65536")
e("s_waitcnt lgkmcnt(0)")
for s in qk(SA, QA, CA): e(s)
e("s_nop 7")
e("s_nop 7")
e(".p2align 6")
e("L_stage:")
c("issue loads for stage+2")
e(f"s_cmp_ge_u32 s{sSTG}, 6")
e("s_cbranch_scc1 L_noload")
e(f"s_add_u32 s{sCH}, s{sCH}, 16384")
e(f"s_and_b32 s{sCH}, s{sCH}, 0x1ffff")
e(f"s_add_u32 s{sGOFF}, s{sHEAD}, s{sCH}")
e(f"s_add_u32 s{sTMP}, s{sM0V}, s{sSLOT2}")
issue_loads(RAW, sGOFF, sTMP)
e("L_noload:")
for kt in range(4):
    slotA(kt)
    slotB(kt)
    if kt == 2:
        e(f"s_cmp_ge_u32 s{sSTG}, 6")
        e("s_cbranch_scc1 L_nonorm")
        e("s_waitcnt vmcnt(2)")
        norm(RAW)
        e(f"v_add_u32 v{vKW}, s{sSLOT2}, v{vKWl}")
        wrPK(vKW)
        e("L_nonorm:")
stamp(sSTG, 6)
e(f"s_add_u32 s{sSTG}, s{sSTG}, 1")
e(f"s_mov_b32 s{sSLOT1}, s{sSLOT2}")
e(f"s_add_u32 s{sSLOT2}, s{sSLOT2}, 32768")
e(f"s_and_b32 s{sSLOT2}, s{sSLOT2}, 0x1ffff")
e(f"s_cmp_eq_u32 s{sSTG}, 8")
e("s_cbranch_scc1 L_done")
e("s_waitcnt vmcnt(0)")
e("s_barrier")
stamp(sSTG, 13)
e("s_branch L_stage")
e("L_done:")
e("s_nop 1")
e(pv(OB, VF1, SB+8))
e(sm(LB, SB+8))
c("exchange partial sums: write B partials for tile w^4, read partials for tile w")
e(f"s_lshl_b32 s{sTMP}, s{sWAVE}, 13")
e(f"s_add_u32 s{sTMP}, s{sTMP}, {LDS_RED}")
e(f"v_add_u32 v{vT0}, s{sTMP}, v{vG16}")
e(f"s_xor_b32 s{sTMP2}, s{sWAVE}, 4")
e(f"s_lshl_b32 s{sTMP2}, s{sTMP2}, 13")
e(f"s_add_u32 s{sTMP2}, s{sTMP2}, {LDS_RED}")
e(f"v_add_u32 v{vT1}, s{sTMP2}, v{vG16}")
e(f"v_and_b32 v{vT2}, 31, v{vLANE}")
e(f"v_lshlrev_b32 v{vT2}, 6, v{vT2}")
e(f"v_lshrrev_b32 v{vT3}, 5, v{vLANE}")
e(f"v_lshl_add_u32 v{vKW}, v{vT3}, 4, v{vT2}")
e(f"s_lshl_b32 s{sTMP}, s{sPART}, 14")
e(f"s_add_u32 s{sGOFF}, s{sHEAD}, s{sTMP}")
e("s_nop 7")
e("s_nop 3")
e("s_waitcnt lgkmcnt(0)")
for j in range(4): e(f"ds_write_b128 v{vT1}, {vr(OB+4*j,4)} offset:{1024*j}")
e(f"ds_write_b32 v{vT1}, v{LB} offset:4096")
e("s_waitcnt lgkmcnt(0)")
e("s_barrier")
e(f"ds_read_b32 v{LB}, v{vT0} offset:4096")
for j in range(4): e(f"ds_read_b128 {vr(OB+4*j,4)}, v{vT0} offset:{1024*j}")
e("s_waitcnt lgkmcnt(4)")
e(f"v_add_f32 v{LA}, v{LA}, v{LB}")
e(f"v_rcp_f32 v{vT2}, v{LA}")
for j in range(4):
    e(f"s_waitcnt lgkmcnt({3-j})")
    for i in range(2):
        r = 4*j + 2*i
        e(f"v_pk_add_f32 {vr(OA+r,2)}, {vr(OA+r,2)}, {vr(OB+r,2)}")
for i in range(8):
    e(f"v_pk_mul_f32 {vr(OA+2*i,2)}, {vr(OA+2*i,2)}, {vr(vT2,2)} op_sel_hi:[1,0]")
for i in range(8):
    e(f"v_cvt_pk_bf16_f32 v{PK+i}, v{OA+2*i}, v{OA+2*i+1}")
e("s_nop 1")
e(f"v_permlane32_swap_b32 v{PK+0}, v{PK+2}")
e(f"v_permlane32_swap_b32 v{PK+1}, v{PK+3}")
e(f"v_permlane32_swap_b32 v{PK+4}, v{PK+6}")
e(f"v_permlane32_swap_b32 v{PK+5}, v{PK+7}")
e("s_nop 1")
e(f"buffer_store_dwordx4 {vr(PK,4)}, v{vKW}, s[{sO}:{sO+3}], s{sGOFF} offen")
e(f"buffer_store_dwordx4 {vr(PK+4,4)}, v{vKW}, s[{sO}:{sO+3}], s{sGOFF} offen offset:32")
if STAMP:
    e("s_waitcnt vmcnt(0)")
    stamp(None, 22)
if opt("dbg", 0):
    e("s_waitcnt vmcnt(0)")
    e("s_memtime s[52:53]")
    e("s_memrealtime s[54:55]")
    e("s_load_dwordx2 s[48:49], s[0:1], 40")
    e("s_mov_b32 s50, 256")
    e("s_mov_b32 s51, 0x00020000")
    e("s_waitcnt lgkmcnt(0)")
    e("v_mov_b32 v1, 0")
    e("s_not_b32 s56, s60")
    e("s_sub_u32 s52, s52, s58")
    e("s_sub_u32 s70, s70, s58")
    e("s_not_b32 s71, s70")
    e("s_sub_u32 s62, s62, s58")
    e("s_sub_u32 s64, s64, s58")
    e("s_not_b32 s72, s52")
    e("s_mov_b64 exec, 1")
    for i, r in enumerate((54, 56, 60, 52, 70, 71, 62, 64, 72)):
        e(f"v_mov_b32 v2, s{r}")
        e(f"buffer_atomic_umax v2, v1, s[48:51], 0 offen offset:{4*i}")
        e("s_nop 1")
    e("s_waitcnt vmcnt(0)")
e("L_end:")
e("s_endpgm")

c("|t| large (or NaN): find the true row max of the logits first, then run the main loop with C = -max")
e("L_maxpass:")
e("s_waitcnt lgkmcnt(0)")
e(f"v_and_b32 v{vT0}, 31, v{vLANE}")
e(f"v_lshlrev_b32 v{vT0}, 6, v{vT0}")
e(f"v_lshrrev_b32 v{vT1}, 5, v{vLANE}")
e(f"v_lshl_add_u32 v{vKW}, v{vT1}, 5, v{vT0}")
e(f"s_sub_u32 s{sTMP}, s{sHEAD}, s{sW2K}")
e(f"s_mov_b32 s{sSTG}, 0")
e(f"v_mov_b32 v{CA}, 0xff800000")
e(f"v_mov_b32 v{CB}, 0xff800000")
e("L_maxloop:")
e(f"buffer_load_dwordx4 {vr(RAW,4)}, v{vKW}, s[{sK}:{sK+3}], s{sTMP} offen")
e(f"buffer_load_dwordx4 {vr(RAW+4,4)}, v{vKW}, s[{sK}:{sK+3}], s{sTMP} offen offset:16")
e("s_waitcnt vmcnt(0)")
norm(RAW, dpp=False)
e("s_nop 1")
for S, Q in ((SA, QA), (UNP, QB)):
    e(f"v_mfma_f32_32x32x16_bf16 {vr(S,16)}, {vr(PK,4)}, {vr(Q,4)}, 0")
    e(f"v_mfma_f32_32x32x16_bf16 {vr(S,16)}, {vr(PK+4,4)}, {vr(Q+4,4)}, {vr(S,16)}")
e("s_nop 15")
for S, C in ((SA, CA), (UNP, CB)):
    for j in range(8): e(f"v_max3_f32 v{C}, v{S+2*j}, v{S+2*j+1}, v{C}")
e(f"s_add_u32 s{sTMP}, s{sTMP}, 2048")
e(f"s_add_u32 s{sSTG}, s{sSTG}, 1")
e(f"s_cmp_lt_u32 s{sSTG}, 64")
e("s_cbranch_scc1 L_maxloop")
for C in (CA, CB):
    e(f"v_mov_b32 v{vT0}, v{C}")
    e("s_nop 1")
    e(f"v_permlane32_swap_b32 v{vT0}, v{C}")
    e("s_nop 1")
    e(f"v_max_f32 v{C}, v{C}, v{vT0}")
    e(f"v_xor_b32 v{C}, 0x80000000, v{C}")
    for j in range(1, 16): e(f"v_mov_b32 v{C+j}, v{C}")
e("s_branch L_start")

nv = (NV + 7) // 8 * 8
src = HEADER + f"; @launch grid=(256,1,1) block=(512,1,1) lds={LDS_TOTAL}\n" + f""".amdgcn_target "amdgcn-amd-amdhsa--gfx950"
.text
.globl {NAME}
.p2align 8
.type {NAME},@function
""" + "\n".join(L) + f"""
.section .rodata,"a"
.p2align 6
.amdhsa_kernel {NAME}
  .amdhsa_next_free_vgpr {nv}
  .amdhsa_next_free_sgpr 80
  .amdhsa_accum_offset {nv}
  .amdhsa_group_segment_fixed_size 0
  .amdhsa_kernarg_size 56
  .amdhsa_user_sgpr_count 2
  .amdhsa_user_sgpr_kernarg_segment_ptr 1
  .amdhsa_system_sgpr_workgroup_id_x 1
.end_amdhsa_kernel
"""
open(sys.argv[1], "w").write(src)
print("vgprs", NV, "->", nv)
```

```python
import sys
OPT = dict(a.split("=") for a in sys.argv[2:] if "=" in a)
def opt(name, default): return type(default)(OPT.get(name, default))

HEADER = open("standalone__qk_norm__prompt.s.ref").read().split("; Override launch")[0]
NAME = "standalone__qk_norm__prompt_kernel"
L = []
def e(s=""): L.append("    " + s if s and not s.endswith(":") else s)
def c(s): L.append("    ; " + s)

class VA:
    def __init__(s): s.n = 1
    def get(s, k=1, al=1):
        s.n = (s.n + al - 1) // al * al
        b = s.n; s.n += k; return b
va = VA()
def vr(b, n): return f"v[{b}:{b+n-1}]"
vLANE = va.get(); vKR = va.get(); vVR = va.get(); vKRl = va.get(); vVRl = va.get(); vKWl = va.get(); vKW = va.get()
vG32 = va.get(); vG16 = va.get(); vIDX = va.get(); vT0 = va.get(); vT1 = va.get(); vT2 = va.get(1, 2); vT3 = va.get(); vTL = va.get()
ONES = va.get(4, 4)
QA = va.get(8, 4); QB = va.get(8, 4)
KF = va.get(8, 4); VF0 = va.get(4, 4); VF1 = va.get(4, 4)
LA = va.get(4, 4); LB = va.get(4, 4)
RAW = va.get(8, 4); UNP = va.get(16, 4); PK = va.get(8, 4)
SA = va.get(16, 4); SB = va.get(16, 4)
OA = va.get(16, 4); OB = va.get(16, 4)
CA = va.get(16, 4); CB = va.get(16, 4)
NV = va.n

sQ, sK, sV, sO = 16, 20, 24, 28
sHEAD = 32
sPART = 33
sWAVE = 34
sSTG = 35
sT = 36
sGOFF = 37
sSLOT2 = 38
sSLOT1 = 39
sTMP = 40; sTMP2 = 41; sW2K = 42; sCH = 43; sM0V = 44
LDS_Q = 131072
LDS_RED = 32768
LDS_TOTAL = 147456

def norm(raw, extra_scale=None, dpp=True):
    e(f"v_dot2_f32_bf16 v{vT0}, v{raw}, v{raw}, 0")
    e(f"v_dot2_f32_bf16 v{vT1}, v{raw+1}, v{raw+1}, 0")
    for j in range(2, 8, 2):
        e(f"v_dot2_f32_bf16 v{vT0}, v{raw+j}, v{raw+j}, v{vT0}")
        e(f"v_dot2_f32_bf16 v{vT1}, v{raw+j+1}, v{raw+j+1}, v{vT1}")
    for j in range(2):
        e(f"v_lshlrev_b32 v{UNP+2*j}, 16, v{raw+j}")
        e(f"v_and_b32 v{UNP+2*j+1}, 0xffff0000, v{raw+j}")
    e(f"v_add_f32 v{vT0}, v{vT0}, v{vT1}")
    for j in range(2, 3):
        e(f"v_lshlrev_b32 v{UNP+2*j}, 16, v{raw+j}")
        e(f"v_and_b32 v{UNP+2*j+1}, 0xffff0000, v{raw+j}")
    if dpp:
        e(f"v_add_f32_dpp v{vT0}, v{vT0}, v{vT0} quad_perm:[1,0,3,2] row_mask:0xf bank_mask:0xf")
    else:
        e(f"v_mov_b32 v{vT1}, v{vT0}")
        e("s_nop 1")
        e(f"v_permlane32_swap_b32 v{vT0}, v{vT1}")
        e("s_nop 1")
        e(f"v_add_f32 v{vT0}, v{vT0}, v{vT1}")
    e(f"v_sqrt_f32 v{vT0}, v{vT0}")
    for j in range(3, 4):
        e(f"v_lshlrev_b32 v{UNP+2*j}, 16, v{raw+j}")
        e(f"v_and_b32 v{UNP+2*j+1}, 0xffff0000, v{raw+j}")
    e(f"v_add_f32 v{vT0}, 0x358637bd, v{vT0}")
    e(f"v_rcp_f32 v{vT2}, v{vT0}")
    for j in range(4, 8):
        e(f"v_lshlrev_b32 v{UNP+2*j}, 16, v{raw+j}")
        e(f"v_and_b32 v{UNP+2*j+1}, 0xffff0000, v{raw+j}")
    if extra_scale is not None:
        e(f"v_mul_f32 v{vT2}, v{vT2}, v{extra_scale}")
    assert vT2 % 2 == 0
    for j in range(8):
        e(f"v_pk_mul_f32 {vr(UNP+2*j,2)}, {vr(UNP+2*j,2)}, {vr(vT2,2)} op_sel_hi:[1,0]")
    for j in range(8):
        e(f"v_cvt_pk_bf16_f32 v{PK+j}, v{UNP+2*j}, v{UNP+2*j+1}")

if vT2 % 2: raise SystemExit("vT2 align")

def qk(S, Q, C):
    return [f"v_mfma_f32_32x32x16_bf16 {vr(S,16)}, {vr(KF,4)}, {vr(Q,4)}, {vr(C,16)}",
            f"v_mfma_f32_32x32x16_bf16 {vr(S,16)}, {vr(KF+4,4)}, {vr(Q+4,4)}, {vr(S,16)}"]
def pv(O, VF, S): return f"v_smfmac_f32_32x32x32_bf16 {vr(O,16)}, {vr(VF,4)}, {vr(S,8)}, v{vIDX}"
def sm(Lr, S): return f"v_smfmac_f32_16x16x64_bf16 {vr(Lr,4)}, {vr(ONES,4)}, {vr(S,8)}, v{vIDX}"
def ex(S, a, b):
    for j in range(a, b): e(f"v_exp_f32 v{S+j}, v{S+j}")
def rdK(t):
    e(f"ds_read_b128 {vr(KF,4)}, v{vKR} offset:{t*2048}")
    e(f"ds_read_b128 {vr(KF+4,4)}, v{vKR} offset:{t*2048+1024}")
def rdV(VF, t, half):
    e(f"ds_read_b64_tr_b16 {vr(VF,2)}, v{vVR} offset:{t*2048+half*1024}")
    e(f"ds_read_b64_tr_b16 {vr(VF+2,2)}, v{vVR} offset:{t*2048+half*1024+256}")

def slotA(kt):
    c(f"--- slot A kt={kt}")
    q = qk(SB, QB, CB)
    ex(SA, 0, 2)
    e(pv(OB, VF1, SB+8))
    ex(SA, 2, 5)
    e(sm(LB, SB+8))
    rdV(VF1, kt, 1)
    ex(SA, 5, 7)
    e(q[0])
    ex(SA, 7, 10)
    e(q[1])
    if kt == 3: e(f"v_add_u32 v{vKR}, s{sSLOT1}, v{vKRl}")
    rdK((kt + 1) & 3)
    ex(SA, 10, 13)
    e("s_waitcnt lgkmcnt(4)")
    e(pv(OA, VF0, SA))
    ex(SA, 13, 16)
    e(sm(LA, SA))
def slotB(kt):
    c(f"--- slot B kt={kt}")
    q = qk(SA, QA, CA)
    ex(SB, 0, 2)
    e("s_waitcnt lgkmcnt(2)")
    e(pv(OA, VF1, SA+8))
    ex(SB, 2, 5)
    e(sm(LA, SA+8))
    ex(SB, 5, 7)
    e("s_waitcnt lgkmcnt(0)")
    e(q[0])
    ex(SB, 7, 10)
    e(q[1])
    if kt == 3: e(f"v_add_u32 v{vVR}, s{sSLOT1}, v{vVRl}")
    ex(SB, 10, 13)
    e(pv(OB, VF0, SB))
    rdV(VF0, (kt + 1) & 3, 0)
    ex(SB, 13, 16)
    e(sm(LB, SB))

def issue_loads(rawdst, soff, m0src):
    e(f"buffer_load_dwordx4 {vr(rawdst,4)}, v{vG32}, s[{sK}:{sK+3}], s{soff} offen")
    e(f"buffer_load_dwordx4 {vr(rawdst+4,4)}, v{vG32}, s[{sK}:{sK+3}], s{soff} offen offset:16")
    e(f"s_mov_b32 m0, s{m0src}")
    e("s_nop 0")
    e(f"buffer_load_dwordx4 v{vG16}, s[{sV}:{sV+3}], s{soff} offen lds")
    e(f"buffer_load_dwordx4 v{vG16}, s[{sV}:{sV+3}], s{soff} offen offset:1024 lds")
def wrPK(addr):
    e(f"ds_write_b128 v{addr}, {vr(PK,4)}")
    e(f"ds_write_b128 v{addr}, {vr(PK+4,4)} offset:1024")

STAMP = opt("stamp", 0)
sW = 48
vST = va.get(2, 2); vSTA = va.get()
NV = va.n
def stamp(idx_expr_sgpr=None, imm=0):
    if not STAMP: return
    e("s_memtime s[52:53]")
    e("s_memrealtime s[54:55]")
    e("s_waitcnt lgkmcnt(0)")
    e(f"v_mov_b32 v{vST}, s52")
    e(f"v_mov_b32 v{vST+1}, s54")
    if idx_expr_sgpr is not None:
        e(f"s_lshl_b32 s56, s{idx_expr_sgpr}, 3")
        e(f"buffer_store_dwordx2 {vr(vST,2)}, v{vSTA}, s[{sW}:{sW+3}], s56 offen offset:{imm*8}")
    else:
        e(f"buffer_store_dwordx2 {vr(vST,2)}, v{vSTA}, s[{sW}:{sW+3}], 0 offen offset:{imm*8}")
e(f"{NAME}:")
e("s_cmp_ge_u32 s2, 256")
e("s_cbranch_scc1 L_end")
if opt("dbg", 0):
    e("s_memtime s[58:59]")
    e("s_memrealtime s[60:61]")
if STAMP:
    e("s_memtime s[58:59]")
    e("s_memrealtime s[60:61]")
    e("s_load_dwordx2 s[48:49], s[0:1], 48")
    e("s_mov_b32 s50, 0x100000")
    e("s_mov_b32 s51, 0x00020000")
e("s_load_dwordx8 s[4:11], s[0:1], 0")
e("s_load_dwordx2 s[12:13], s[0:1], 32")
c("head = (wg&7)*4 + ((wg>>3)&3), part = wg>>5")
e("s_and_b32 s3, s2, 7")
e("s_lshl_b32 s3, s3, 2")
e(f"s_bfe_u32 s{sTMP}, s2, 0x20003")
e(f"s_add_u32 s3, s3, s{sTMP}")
e(f"s_lshl_b32 s{sHEAD}, s3, 17")
e(f"s_lshr_b32 s{sPART}, s2, 5")
e(f"v_lshrrev_b32 v{vT0}, 6, v0")
e(f"v_and_b32 v{vLANE}, 63, v0")
e(f"v_readfirstlane_b32 s{sWAVE}, v{vT0}")
e(f"v_lshlrev_b32 v{vG32}, 5, v{vLANE}")
e(f"v_lshlrev_b32 v{vG16}, 4, v{vLANE}")
e(f"s_lshl_b32 s{sW2K}, s{sWAVE}, 11")
e(f"s_add_u32 s{sHEAD}, s{sHEAD}, s{sW2K}")
e(f"s_lshl_b32 s{sCH}, s{sPART}, 14")
e(f"s_add_u32 s{sGOFF}, s{sHEAD}, s{sCH}")
e(f"s_add_u32 s{sM0V}, s{sW2K}, 16384")
e(f"s_lshr_b32 s{sTMP2}, s3, 1")
e(f"s_lshl_b32 s{sTMP2}, s{sTMP2}, 2")
for s in (sQ, sK, sV, sO):
    e(f"s_mov_b32 s{s+2}, 0x400000")
    e(f"s_mov_b32 s{s+3}, 0x00020000")
e("s_waitcnt lgkmcnt(0)")
e(f"s_load_dword s{sT}, s[10:11], s{sTMP2}")
for s, p in ((sQ, 4), (sK, 6), (sV, 8), (sO, 12)):
    e(f"s_mov_b32 s{s}, s{p}")
    e(f"s_mov_b32 s{s+1}, s{p+1}")
c("prologue loads: K(0) V(0) Q K(1) V(1)")
issue_loads(SA, sGOFF, sM0V)
e(f"buffer_load_dwordx4 {vr(SA+8,4)}, v{vG32}, s[{sQ}:{sQ+3}], s{sGOFF} offen")
e(f"buffer_load_dwordx4 {vr(SA+12,4)}, v{vG32}, s[{sQ}:{sQ+3}], s{sGOFF} offen offset:16")
e(f"s_add_u32 s{sCH}, s{sCH}, 16384")
e(f"s_and_b32 s{sCH}, s{sCH}, 0x1ffff")
e(f"s_add_u32 s{sTMP}, s{sHEAD}, s{sCH}")
e(f"s_add_u32 s{sTMP2}, s{sM0V}, 32768")
issue_loads(SB, sTMP, sTMP2)
c("lane constants")
e(f"v_and_b32 v{vT0}, 1, v{vLANE}")
e(f"v_lshrrev_b32 v{vT1}, 1, v{vLANE}")
e(f"v_lshlrev_b32 v{vT2}, 2, v{vT0}")
e(f"v_xor_b32 v{vT1}, v{vT1}, v{vT2}")
e(f"v_lshlrev_b32 v{vT1}, 4, v{vT1}")
e(f"v_lshl_add_u32 v{vT1}, v{vT0}, 9, v{vT1}")
e(f"v_add_u32 v{vKWl}, s{sW2K}, v{vT1}")
e(f"v_lshrrev_b32 v{vT0}, 5, v{vLANE}")
e(f"v_lshlrev_b32 v{vT0}, 2, v{vT0}")
e(f"v_xor_b32 v{vT0}, v{vT0}, v{vLANE}")
e(f"v_lshlrev_b32 v{vT3}, 4, v{vT0}")
e(f"s_and_b32 s{sTMP}, s{sWAVE}, 4")
e(f"s_lshl_b32 s{sTMP}, s{sTMP}, 11")
e(f"v_add_u32 v{vKRl}, s{sTMP}, v{vT3}")
e(f"v_lshrrev_b32 v{vT0}, 5, v{vLANE}")
e(f"v_lshlrev_b32 v{vT0}, 9, v{vT0}")
e(f"v_bfe_u32 v{vT1}, v{vLANE}, 2, 2")
e(f"v_lshl_add_u32 v{vT0}, v{vT1}, 6, v{vT0}")
e(f"v_bfe_u32 v{vT1}, v{vLANE}, 4, 1")
e(f"v_lshl_add_u32 v{vT0}, v{vT1}, 5, v{vT0}")
e(f"v_and_b32 v{vT1}, 3, v{vLANE}")
e(f"v_lshl_add_u32 v{vT0}, v{vT1}, 3, v{vT0}")
e(f"s_add_u32 s{sTMP}, s{sTMP}, 16384")
e(f"v_add_u32 v{vVRl}, s{sTMP}, v{vT0}")
e(f"v_mov_b32 v{vKR}, v{vKRl}")
e(f"v_mov_b32 v{vVR}, v{vVRl}")
e(f"v_mov_b32 v{vIDX}, 0xdddddddd")
e(f"v_bfe_i32 v{vT0}, v{vLANE}, 2, 1")
e(f"v_and_b32 v{ONES+2}, 0x3f803f80, v{vT0}")
e(f"v_mov_b32 v{ONES+3}, v{ONES+2}")
e(f"v_xor_b32 v{ONES}, 0x3f803f80, v{ONES+2}")
e(f"v_mov_b32 v{ONES+1}, v{ONES}")
for r in list(range(OA, OA+16)) + list(range(OB, OB+16)) + list(range(LA, LA+4)) + list(range(LB, LB+4)) + list(range(VF1, VF1+4)):
    e(f"v_mov_b32 v{r}, 0")
e("s_waitcnt lgkmcnt(0)")
c("t: bf16 -> f32 bits")
e(f"s_lshl_b32 s{sTMP}, s{sT}, 16")
e(f"s_and_b32 s{sTMP2}, s{sT}, 0xffff0000")
e("s_bitcmp1_b32 s3, 0")
e(f"s_cselect_b32 s{sT}, s{sTMP2}, s{sTMP}")
e(f"v_mov_b32 v{vTL}, 0x3fb8aa3b")
e(f"v_mul_f32 v{vTL}, s{sT}, v{vTL}")
e(f"v_or_b32 v{CA}, 0x80000000, v{vTL}")
for j in range(1, 16): e(f"v_mov_b32 v{CA+j}, v{CA}")
for j in range(0, 16): e(f"v_mov_b32 v{CB+j}, v{CA}")
if STAMP:
    e(f"s_lshl_b32 s56, s2, 3")
    e(f"s_add_u32 s56, s56, s{sWAVE}")
    e(f"s_lshl_b32 s56, s56, 8")
    e(f"v_mov_b32 v{vSTA}, s56")
    e("s_memtime s[62:63]")
if opt("dbg", 0): e("s_memtime s[62:63]")
c("K(0)")
e("s_waitcnt vmcnt(8)")
if opt("dbg", 0): e("s_memtime s[64:65]")
if STAMP: e("s_memtime s[64:65]")
norm(SA)
wrPK(vKWl)
c("Q tile")
e("s_waitcnt vmcnt(4)")
norm(SA+8, extra_scale=vTL)
e(f"v_add_u32 v{vKW}, {LDS_Q}, v{vKWl}")
wrPK(vKW)
c("K(1)")
e("s_waitcnt vmcnt(2)")
norm(SB)
e(f"v_add_u32 v{vKW}, 32768, v{vKWl}")
wrPK(vKW)
for j in range(8, 16): e(f"v_mov_b32 v{SB+j}, 0")
e(f"s_add_u32 s{sTMP}, s{sW2K}, {LDS_Q}")
e(f"v_add_u32 v{vT0}, s{sTMP}, v{vT3}")
e(f"v_xor_b32 v{vT1}, 8192, v{vT0}")
if STAMP: e("s_memtime s[66:67]")
e("s_waitcnt vmcnt(0) lgkmcnt(0)")
if STAMP: e("s_memtime s[68:69]")
e("s_barrier")
if STAMP:
    e("s_waitcnt lgkmcnt(0)")
    for i, (a, b) in enumerate(((58, 60), (62, 60), (64, 60), (66, 60), (68, 60))):
        e(f"v_mov_b32 v{vST}, s{a}")
        e(f"v_mov_b32 v{vST+1}, s{b}")
        e(f"buffer_store_dwordx2 {vr(vST,2)}, v{vSTA}, s[{sW}:{sW+3}], 0 offen offset:{i*8}")
        e("s_nop 1")
    stamp(None, 5)
    e("s_waitcnt vmcnt(0)")
if opt("dbg", 0): e("s_memtime s[70:71]")
e(f"ds_read_b128 {vr(QA,4)}, v{vT0}")
e(f"ds_read_b128 {vr(QA+4,4)}, v{vT0} offset:1024")
rdK(0)
e(f"ds_read_b128 {vr(QB,4)}, v{vT1}")
e(f"ds_read_b128 {vr(QB+4,4)}, v{vT1} offset:1024")
rdV(VF0, 0, 0)
c("fast path check: |t| <= 16")
e(f"s_and_b32 s{sTMP}, s{sT}, 0x7fffffff")
e(f"s_cmp_le_u32 s{sTMP}, 0x41800000")
e("s_cbranch_scc0 L_maxpass")
e("L_start:")
e(f"s_mov_b32 s{sSTG}, 0")
e(f"s_mov_b32 s{sSLOT1}, 32768")
e(f"s_mov_b32 s{sSLOT2}, 65536")
e("s_waitcnt lgkmcnt(0)")
for s in qk(SA, QA, CA): e(s)
e("s_nop 7")
e("s_nop 7")
e(".p2align 6")
e("L_stage:")
c("issue loads for stage+2")
e(f"s_cmp_ge_u32 s{sSTG}, 6")
e("s_cbranch_scc1 L_noload")
e(f"s_add_u32 s{sCH}, s{sCH}, 16384")
e(f"s_and_b32 s{sCH}, s{sCH}, 0x1ffff")
e(f"s_add_u32 s{sGOFF}, s{sHEAD}, s{sCH}")
e(f"s_add_u32 s{sTMP}, s{sM0V}, s{sSLOT2}")
issue_loads(RAW, sGOFF, sTMP)
e("L_noload:")
for kt in range(4):
    slotA(kt)
    slotB(kt)
    if kt == 2:
        e(f"s_cmp_ge_u32 s{sSTG}, 6")
        e("s_cbranch_scc1 L_nonorm")
        e("s_waitcnt vmcnt(2)")
        norm(RAW)
        e(f"v_add_u32 v{vKW}, s{sSLOT2}, v{vKWl}")
        wrPK(vKW)
        e("L_nonorm:")
stamp(sSTG, 6)
e(f"s_add_u32 s{sSTG}, s{sSTG}, 1")
e(f"s_mov_b32 s{sSLOT1}, s{sSLOT2}")
e(f"s_add_u32 s{sSLOT2}, s{sSLOT2}, 32768")
e(f"s_and_b32 s{sSLOT2}, s{sSLOT2}, 0x1ffff")
e(f"s_cmp_eq_u32 s{sSTG}, 8")
e("s_cbranch_scc1 L_done")
e("s_waitcnt vmcnt(0)")
e("s_barrier")
stamp(sSTG, 13)
e("s_branch L_stage")
e("L_done:")
e("s_nop 1")
e(pv(OB, VF1, SB+8))
e(sm(LB, SB+8))
c("exchange partial sums: write B partials for tile w^4, read partials for tile w")
e(f"s_lshl_b32 s{sTMP}, s{sWAVE}, 13")
e(f"s_add_u32 s{sTMP}, s{sTMP}, {LDS_RED}")
e(f"v_add_u32 v{vT0}, s{sTMP}, v{vG16}")
e(f"s_xor_b32 s{sTMP2}, s{sWAVE}, 4")
e(f"s_lshl_b32 s{sTMP2}, s{sTMP2}, 13")
e(f"s_add_u32 s{sTMP2}, s{sTMP2}, {LDS_RED}")
e(f"v_add_u32 v{vT1}, s{sTMP2}, v{vG16}")
e(f"v_and_b32 v{vT2}, 31, v{vLANE}")
e(f"v_lshlrev_b32 v{vT2}, 6, v{vT2}")
e(f"v_lshrrev_b32 v{vT3}, 5, v{vLANE}")
e(f"v_lshl_add_u32 v{vKW}, v{vT3}, 4, v{vT2}")
e(f"s_lshl_b32 s{sTMP}, s{sPART}, 14")
e(f"s_add_u32 s{sGOFF}, s{sHEAD}, s{sTMP}")
e("s_nop 7")
e("s_nop 3")
e("s_waitcnt lgkmcnt(0)")
for j in range(4): e(f"ds_write_b128 v{vT1}, {vr(OB+4*j,4)} offset:{1024*j}")
e(f"ds_write_b32 v{vT1}, v{LB} offset:4096")
e("s_waitcnt lgkmcnt(0)")
e("s_barrier")
e(f"ds_read_b32 v{LB}, v{vT0} offset:4096")
for j in range(4): e(f"ds_read_b128 {vr(OB+4*j,4)}, v{vT0} offset:{1024*j}")
e("s_waitcnt lgkmcnt(4)")
e(f"v_add_f32 v{LA}, v{LA}, v{LB}")
e(f"v_rcp_f32 v{vT2}, v{LA}")
for j in range(4):
    e(f"s_waitcnt lgkmcnt({3-j})")
    for i in range(2):
        r = 4*j + 2*i
        e(f"v_pk_add_f32 {vr(OA+r,2)}, {vr(OA+r,2)}, {vr(OB+r,2)}")
for i in range(8):
    e(f"v_pk_mul_f32 {vr(OA+2*i,2)}, {vr(OA+2*i,2)}, {vr(vT2,2)} op_sel_hi:[1,0]")
for i in range(8):
    e(f"v_cvt_pk_bf16_f32 v{PK+i}, v{OA+2*i}, v{OA+2*i+1}")
e("s_nop 1")
e(f"v_permlane32_swap_b32 v{PK+0}, v{PK+2}")
e(f"v_permlane32_swap_b32 v{PK+1}, v{PK+3}")
e(f"v_permlane32_swap_b32 v{PK+4}, v{PK+6}")
e(f"v_permlane32_swap_b32 v{PK+5}, v{PK+7}")
e("s_nop 1")
e(f"buffer_store_dwordx4 {vr(PK,4)}, v{vKW}, s[{sO}:{sO+3}], s{sGOFF} offen")
e(f"buffer_store_dwordx4 {vr(PK+4,4)}, v{vKW}, s[{sO}:{sO+3}], s{sGOFF} offen offset:32")
if STAMP:
    e("s_waitcnt vmcnt(0)")
    stamp(None, 22)
if opt("dbg", 0):
    e("s_waitcnt vmcnt(0)")
    e("s_memtime s[52:53]")
    e("s_memrealtime s[54:55]")
    e("s_load_dwordx2 s[48:49], s[0:1], 40")
    e("s_mov_b32 s50, 256")
    e("s_mov_b32 s51, 0x00020000")
    e("s_waitcnt lgkmcnt(0)")
    e("s_sub_u32 s52, s52, s58")
    e("s_sub_u32 s70, s70, s58")
    e("s_and_b32 s56, s2, 63")
    e(f"s_add_u32 s56, s56, s{sWAVE}")
    e("s_cmp_eq_u32 s56, 0")
    e("s_cbranch_scc0 L_end")
    e("s_lshr_b32 s56, s2, 2")
    e("v_mov_b32 v1, s56")
    e("s_mov_b64 exec, 1")
    for i, r in enumerate((60, 54, 52, 70)):
        e(f"v_mov_b32 v{4+i}, s{r}")
    e(f"buffer_store_dwordx4 v[4:7], v1, s[48:51], 0 offen")
    e("s_waitcnt vmcnt(0)")
e("L_end:")
e("s_endpgm")

c("|t| large (or NaN): find the true row max of the logits first, then run the main loop with C = -max")
e("L_maxpass:")
e("s_waitcnt lgkmcnt(0)")
e(f"v_and_b32 v{vT0}, 31, v{vLANE}")
e(f"v_lshlrev_b32 v{vT0}, 6, v{vT0}")
e(f"v_lshrrev_b32 v{vT1}, 5, v{vLANE}")
e(f"v_lshl_add_u32 v{vKW}, v{vT1}, 5, v{vT0}")
e(f"s_sub_u32 s{sTMP}, s{sHEAD}, s{sW2K}")
e(f"s_mov_b32 s{sSTG}, 0")
e(f"v_mov_b32 v{CA}, 0xff800000")
e(f"v_mov_b32 v{CB}, 0xff800000")
e("L_maxloop:")
e(f"buffer_load_dwordx4 {vr(RAW,4)}, v{vKW}, s[{sK}:{sK+3}], s{sTMP} offen")
e(f"buffer_load_dwordx4 {vr(RAW+4,4)}, v{vKW}, s[{sK}:{sK+3}], s{sTMP} offen offset:16")
e("s_waitcnt vmcnt(0)")
norm(RAW, dpp=False)
e("s_nop 1")
for S, Q in ((SA, QA), (UNP, QB)):
    e(f"v_mfma_f32_32x32x16_bf16 {vr(S,16)}, {vr(PK,4)}, {vr(Q,4)}, 0")
    e(f"v_mfma_f32_32x32x16_bf16 {vr(S,16)}, {vr(PK+4,4)}, {vr(Q+4,4)}, {vr(S,16)}")
e("s_nop 15")
for S, C in ((SA, CA), (UNP, CB)):
    for j in range(8): e(f"v_max3_f32 v{C}, v{S+2*j}, v{S+2*j+1}, v{C}")
e(f"s_add_u32 s{sTMP}, s{sTMP}, 2048")
e(f"s_add_u32 s{sSTG}, s{sSTG}, 1")
e(f"s_cmp_lt_u32 s{sSTG}, 64")
e("s_cbranch_scc1 L_maxloop")
for C in (CA, CB):
    e(f"v_mov_b32 v{vT0}, v{C}")
    e("s_nop 1")
    e(f"v_permlane32_swap_b32 v{vT0}, v{C}")
    e("s_nop 1")
    e(f"v_max_f32 v{C}, v{C}, v{vT0}")
    e(f"v_xor_b32 v{C}, 0x80000000, v{C}")
    for j in range(1, 16): e(f"v_mov_b32 v{C+j}, v{C}")
e("s_branch L_start")

nv = (NV + 7) // 8 * 8
src = HEADER + f"; @launch grid=(256,1,1) block=(512,1,1) lds={LDS_TOTAL}\n" + f""".amdgcn_target "amdgcn-amd-amdhsa--gfx950"
.text
.globl {NAME}
.p2align 8
.type {NAME},@function
""" + "\n".join(L) + f"""
.section .rodata,"a"
.p2align 6
.amdhsa_kernel {NAME}
  .amdhsa_next_free_vgpr {nv}
  .amdhsa_next_free_sgpr 80
  .amdhsa_accum_offset {nv}
  .amdhsa_group_segment_fixed_size 0
  .amdhsa_kernarg_size 56
  .amdhsa_user_sgpr_count 2
  .amdhsa_user_sgpr_kernarg_segment_ptr 1
  .amdhsa_system_sgpr_workgroup_id_x 1
.end_amdhsa_kernel
"""
open(sys.argv[1], "w").write(src)
print("vgprs", NV, "->", nv)
```

```python
import sys
OPT = dict(a.split("=") for a in sys.argv[2:] if "=" in a)
def opt(name, default): return type(default)(OPT.get(name, default))
STAMP = opt("stamp", 0)
PRIO = opt("prio", 1)
NORMV = opt("normv", 3)
ROT = opt("rot", 1)
NORMAT = opt("normat", 2)
STFLAGS = OPT.get("stflags", "")

HEADER = open("standalone__qk_norm__prompt.s.ref").read().split("; Override launch")[0]
NAME = "standalone__qk_norm__prompt_kernel"
L = []
def e(s=""): L.append("    " + s if s and not s.endswith(":") else s)
def c(s): L.append("    ; " + s)

class VA:
    def __init__(s): s.n = 1
    def get(s, k=1, al=1):
        s.n = (s.n + al - 1) // al * al
        b = s.n; s.n += k; return b
va = VA()
def vr(b, n): return f"v[{b}:{b+n-1}]"
vLANE = va.get(); vKR = va.get(); vVR = va.get(); vKRl = va.get(); vVRl = va.get(); vKWl = va.get(); vKW = va.get()
vG32 = va.get(); vG16 = va.get(); vIDX = va.get(); vT0 = va.get(); vT1 = va.get(); vTL = va.get(); vT2 = va.get(1, 2); vT3 = va.get()
ONES = va.get(4, 4)
UA = va.get(8, 4)
QA = va.get(8, 4); QB = va.get(8, 4)
KF = va.get(8, 4); VF0 = va.get(4, 4); VF1 = va.get(4, 4)
LA = va.get(4, 4); LB = va.get(4, 4)
RAW = va.get(8, 4); UNP = va.get(16, 4); PK = va.get(8, 4)
SA = va.get(16, 4); SB = va.get(16, 4)
OA = va.get(16, 4); OB = va.get(16, 4)
CA = va.get(16, 4); CB = va.get(16, 4)
vST = va.get(); vST2 = va.get()
NV = va.n

sQ, sK, sV, sO = 16, 20, 24, 28
sHEAD = 32; sPART = 33; sWAVE = 34; sSTG = 35; sT = 36; sGOFF = 37; sSLOT2 = 38; sSLOT1 = 39
sTMP = 40; sTMP2 = 41; sW2K = 42; sCH = 43; sM0V = 44; sQOFF = 45
LDS_Q = 131072; LDS_RED = 0; LDS_TOTAL = 147456

def st_issue():
    if STAMP:
        e("s_memtime s[52:53]"); e("s_memrealtime s[54:55]")
def st_put(lane):
    if STAMP:
        e(f"v_writelane_b32 v{vST}, s52, {lane}"); e(f"v_writelane_b32 v{vST2}, s54, {lane}")
def stamp(lane):
    if STAMP:
        st_issue(); e("s_waitcnt lgkmcnt(0)"); st_put(lane)

def norm(raw, extra_scale=None, dpp=True):
    def red():
        if dpp:
            e(f"v_add_f32_dpp v{vT0}, v{vT0}, v{vT0} quad_perm:[1,0,3,2] row_mask:0xf bank_mask:0xf")
        else:
            e(f"v_mov_b32 v{vT1}, v{vT0}"); e("s_nop 1")
            e(f"v_permlane32_swap_b32 v{vT0}, v{vT1}"); e("s_nop 1")
            e(f"v_add_f32 v{vT0}, v{vT0}, v{vT1}")
    if NORMV == 3:
        e(f"v_mfma_f32_32x32x16_bf16 {vr(UNP,16)}, {vr(UA,4)}, {vr(raw,4)}, 0")
        e(f"v_dot2_f32_bf16 v{vT0}, v{raw}, v{raw}, 0")
        for j in range(1, 4): e(f"v_dot2_f32_bf16 v{vT0}, v{raw+j}, v{raw+j}, v{vT0}")
        e(f"v_mfma_f32_32x32x16_bf16 {vr(UNP,16)}, {vr(UA+4,4)}, {vr(raw+4,4)}, {vr(UNP,16)}")
        for j in range(4, 8): e(f"v_dot2_f32_bf16 v{vT0}, v{raw+j}, v{raw+j}, v{vT0}")
        e("s_nop 2")
        red()
        e(f"v_sqrt_f32 v{vT0}, v{vT0}")
        e("s_nop 0")
        e(f"v_add_f32 v{vT0}, 0x358637bd, v{vT0}")
        e(f"v_rcp_f32 v{vT2}, v{vT0}")
        e("s_nop 0")
        if extra_scale is not None: e(f"v_mul_f32 v{vT2}, v{vT2}, v{extra_scale}")
        for j in range(8):
            e(f"v_pk_mul_f32 {vr(UNP+2*j,2)}, {vr(UNP+2*j,2)}, {vr(vT2,2)} op_sel_hi:[1,0]")
        for j in range(8):
            e(f"v_cvt_pk_bf16_f32 v{PK+j}, v{UNP+2*j}, v{UNP+2*j+1}")
        return
    e(f"v_dot2_f32_bf16 v{vT0}, v{raw}, v{raw}, 0")
    e(f"v_dot2_f32_bf16 v{vT1}, v{raw+1}, v{raw+1}, 0")
    for j in range(2, 8, 2):
        e(f"v_dot2_f32_bf16 v{vT0}, v{raw+j}, v{raw+j}, v{vT0}")
        e(f"v_dot2_f32_bf16 v{vT1}, v{raw+j+1}, v{raw+j+1}, v{vT1}")
    def unp(a, b):
        for j in range(a, b):
            e(f"v_lshlrev_b32 v{UNP+2*j}, 16, v{raw+j}")
            e(f"v_and_b32 v{UNP+2*j+1}, 0xffff0000, v{raw+j}")
    unp(0, 2)
    e(f"v_add_f32 v{vT0}, v{vT0}, v{vT1}")
    unp(2, 3); red()
    e(f"v_sqrt_f32 v{vT0}, v{vT0}")
    unp(3, 4)
    e(f"v_add_f32 v{vT0}, 0x358637bd, v{vT0}")
    e(f"v_rcp_f32 v{vT2}, v{vT0}")
    unp(4, 8)
    if extra_scale is not None: e(f"v_mul_f32 v{vT2}, v{vT2}, v{extra_scale}")
    for j in range(8):
        e(f"v_pk_mul_f32 {vr(UNP+2*j,2)}, {vr(UNP+2*j,2)}, {vr(vT2,2)} op_sel_hi:[1,0]")
    for j in range(8):
        e(f"v_cvt_pk_bf16_f32 v{PK+j}, v{UNP+2*j}, v{UNP+2*j+1}")

def qk(S, Q, C):
    return [f"v_mfma_f32_32x32x16_bf16 {vr(S,16)}, {vr(KF,4)}, {vr(Q,4)}, {vr(C,16)}",
            f"v_mfma_f32_32x32x16_bf16 {vr(S,16)}, {vr(KF+4,4)}, {vr(Q+4,4)}, {vr(S,16)}"]
def pv(O, VF, S): return f"v_smfmac_f32_32x32x32_bf16 {vr(O,16)}, {vr(VF,4)}, {vr(S,8)}, v{vIDX}"
def sm(Lr, S): return f"v_smfmac_f32_16x16x64_bf16 {vr(Lr,4)}, {vr(ONES,4)}, {vr(S,8)}, v{vIDX}"
def ex(S, a, b):
    for j in range(a, b): e(f"v_exp_f32 v{S+j}, v{S+j}")
def rdK(t):
    e(f"ds_read_b128 {vr(KF,4)}, v{vKR} offset:{t*2048}")
    e(f"ds_read_b128 {vr(KF+4,4)}, v{vKR} offset:{t*2048+1024}")
def rdV(VF, t, half):
    e(f"ds_read_b64_tr_b16 {vr(VF,2)}, v{vVR} offset:{t*2048+half*1024}")
    e(f"ds_read_b64_tr_b16 {vr(VF+2,2)}, v{vVR} offset:{t*2048+half*1024+256}")

def slotA(kt):
    c(f"--- slot A kt={kt}")
    if PRIO: e(f"s_setprio {3-kt}")
    q = qk(SB, QB, CB)
    ex(SA, 0, 2); e(pv(OB, VF1, SB+8)); ex(SA, 2, 5); e(sm(LB, SB+8))
    rdV(VF1, kt, 1)
    ex(SA, 5, 7); e(q[0]); ex(SA, 7, 10); e(q[1])
    if kt == 3: e(f"v_add_u32 v{vKR}, s{sSLOT1}, v{vKRl}")
    rdK((kt + 1) & 3)
    ex(SA, 10, 13)
    e("s_waitcnt lgkmcnt(4)")
    e(pv(OA, VF0, SA)); ex(SA, 13, 16); e(sm(LA, SA))
def slotB(kt):
    c(f"--- slot B kt={kt}")
    q = qk(SA, QA, CA)
    ex(SB, 0, 2)
    e("s_waitcnt lgkmcnt(2)")
    if kt == 3: st_issue()
    e(pv(OA, VF1, SA+8)); ex(SB, 2, 5); e(sm(LA, SA+8)); ex(SB, 5, 7)
    e("s_waitcnt lgkmcnt(0)")
    if kt == 3 and STAMP:
        e(f"s_add_u32 s56, s{sSTG}, 8"); st_put("s56") if False else None
        e(f"s_mov_b32 m0, s56"); st_put("m0")
    e(q[0]); ex(SB, 7, 10); e(q[1])
    if kt == 3: e(f"v_add_u32 v{vVR}, s{sSLOT1}, v{vVRl}")
    ex(SB, 10, 13)
    e(pv(OB, VF0, SB))
    rdV(VF0, (kt + 1) & 3, 0)
    ex(SB, 13, 16); e(sm(LB, SB))

def loadK(rawdst, soff, srd=sK):
    e(f"buffer_load_dwordx4 {vr(rawdst,4)}, v{vG32}, s[{srd}:{srd+3}], s{soff} offen")
    e(f"buffer_load_dwordx4 {vr(rawdst+4,4)}, v{vG32}, s[{srd}:{srd+3}], s{soff} offen offset:16")
def loadV(soff, m0src):
    e(f"s_mov_b32 m0, s{m0src}")
    e("s_nop 0")
    e(f"buffer_load_dwordx4 v{vG16}, s[{sV}:{sV+3}], s{soff} offen lds")
    e(f"buffer_load_dwordx4 v{vG16}, s[{sV}:{sV+3}], s{soff} offen offset:1024 lds")
def wrPK(addr):
    e(f"ds_write_b128 v{addr}, {vr(PK,4)}")
    e(f"ds_write_b128 v{addr}, {vr(PK+4,4)} offset:1024")
def next_chunk():
    e(f"s_add_u32 s{sCH}, s{sCH}, 16384")
    e(f"s_and_b32 s{sCH}, s{sCH}, 0x1ffff")
    e(f"s_add_u32 s{sGOFF}, s{sHEAD}, s{sCH}")

e(f"{NAME}:")
e("s_load_dwordx8 s[4:11], s[0:1], 0")
e("s_load_dwordx2 s[12:13], s[0:1], 32")
if STAMP:
    st_issue()
    e("s_load_dwordx2 s[48:49], s[0:1], 48")
    e("s_mov_b32 s50, 0x100000"); e("s_mov_b32 s51, 0x00020000")
e("s_cmp_ge_u32 s2, 256")
e("s_cbranch_scc1 L_end")
c("head = (wg&7)*4 + ((wg>>3)&3), part = wg>>5")
e("s_and_b32 s3, s2, 7")
e("s_lshl_b32 s3, s3, 2")
e(f"s_bfe_u32 s{sTMP}, s2, 0x20003")
e(f"s_add_u32 s3, s3, s{sTMP}")
e(f"s_lshl_b32 s{sHEAD}, s3, 17")
e(f"s_lshr_b32 s{sPART}, s2, 5")
e(f"v_lshrrev_b32 v{vT0}, 6, v0")
e(f"v_and_b32 v{vLANE}, 63, v0")
e(f"v_readfirstlane_b32 s{sWAVE}, v{vT0}")
e(f"v_lshlrev_b32 v{vG32}, 5, v{vLANE}")
e(f"v_lshlrev_b32 v{vG16}, 4, v{vLANE}")
e(f"s_lshl_b32 s{sW2K}, s{sWAVE}, 11")
e(f"s_add_u32 s{sHEAD}, s{sHEAD}, s{sW2K}")
e(f"s_lshl_b32 s{sTMP}, s{sPART}, 14")
e(f"s_add_u32 s{sQOFF}, s{sHEAD}, s{sTMP}")
if ROT == 0: e(f"s_mov_b32 s{sCH}, 0")
elif ROT == 1:
    e(f"s_and_b32 s{sCH}, s3, 7"); e(f"s_lshl_b32 s{sCH}, s{sCH}, 14")
else: e(f"s_mov_b32 s{sCH}, s{sTMP}")
e(f"s_add_u32 s{sGOFF}, s{sHEAD}, s{sCH}")
e(f"s_add_u32 s{sM0V}, s{sW2K}, 16384")
e(f"s_lshr_b32 s{sTMP2}, s3, 1")
e(f"s_lshl_b32 s{sTMP2}, s{sTMP2}, 2")
for s in (sQ, sK, sV, sO):
    e(f"s_mov_b32 s{s+2}, 0x400000")
    e(f"s_mov_b32 s{s+3}, 0x00020000")
e("s_waitcnt lgkmcnt(0)")
for s, p in ((sK, 6), (sQ, 4), (sV, 8)):
    e(f"s_mov_b64 s[{s}:{s+1}], s[{p}:{p+1}]")
c("prologue loads: K(0) Q V(0)")
loadK(SA, sGOFF)
loadK(SA+8, sQOFF, sQ)
loadV(sGOFF, sM0V)
e(f"s_load_dword s{sT}, s[10:11], s{sTMP2}")
e(f"s_mov_b64 s[{sO}:{sO+1}], s[12:13]")
if STAMP:
    e(f"v_mov_b32 v{vST}, 0"); e(f"v_mov_b32 v{vST2}, 0"); st_put(0)
c("lane constants")
e(f"v_and_b32 v{vT0}, 1, v{vLANE}")
e(f"v_lshrrev_b32 v{vT1}, 1, v{vLANE}")
e(f"v_lshlrev_b32 v{vT2}, 2, v{vT0}")
e(f"v_xor_b32 v{vT1}, v{vT1}, v{vT2}")
e(f"v_lshlrev_b32 v{vT1}, 4, v{vT1}")
e(f"v_lshl_add_u32 v{vT1}, v{vT0}, 9, v{vT1}")
e(f"v_add_u32 v{vKWl}, s{sW2K}, v{vT1}")
if NORMV == 3:
    c("unpack selection matrices: lane (m=l&31,hA=l>>5): A_i has 1.0 at e=(m&3)+4*((m>>3)&1) iff (m>>4)==i and ((m>>2)&1)==hA")
    e(f"v_bfe_u32 v{vT0}, v{vLANE}, 2, 1")
    e(f"v_lshrrev_b32 v{vT1}, 5, v{vLANE}")
    e(f"v_cmp_eq_u32 vcc, v{vT0}, v{vT1}")
    e(f"v_and_b32 v{vT0}, 1, v{vLANE}")
    e(f"v_lshlrev_b32 v{vT0}, 4, v{vT0}")
    e(f"v_mov_b32 v{vT1}, 0x3f80")
    e(f"v_lshlrev_b32 v{vT1}, v{vT0}, v{vT1}")
    e(f"v_cndmask_b32 v{vT1}, 0, v{vT1}, vcc")
    e(f"v_bfe_u32 v{vT0}, v{vLANE}, 1, 1")
    e(f"v_bfe_u32 v{vT2}, v{vLANE}, 3, 2")
    e(f"v_lshl_add_u32 v{vT0}, v{vT2}, 1, v{vT0}")
    for r in range(8):
        e(f"v_cmp_eq_u32 vcc, {r}, v{vT0}")
        e("s_nop 1")
        e(f"v_cndmask_b32 v{UA+r}, 0, v{vT1}, vcc")
e(f"v_lshrrev_b32 v{vT0}, 5, v{vLANE}")
e(f"v_lshlrev_b32 v{vT0}, 2, v{vT0}")
e(f"v_xor_b32 v{vT0}, v{vT0}, v{vLANE}")
e(f"v_lshlrev_b32 v{vT3}, 4, v{vT0}")
e(f"s_and_b32 s{sTMP}, s{sWAVE}, 4")
e(f"s_lshl_b32 s{sTMP}, s{sTMP}, 11")
e(f"v_add_u32 v{vKRl}, s{sTMP}, v{vT3}")
e(f"v_lshrrev_b32 v{vT0}, 5, v{vLANE}")
e(f"v_lshlrev_b32 v{vT0}, 9, v{vT0}")
e(f"v_bfe_u32 v{vT1}, v{vLANE}, 2, 2")
e(f"v_lshl_add_u32 v{vT0}, v{vT1}, 6, v{vT0}")
e(f"v_bfe_u32 v{vT1}, v{vLANE}, 4, 1")
e(f"v_lshl_add_u32 v{vT0}, v{vT1}, 5, v{vT0}")
e(f"v_and_b32 v{vT1}, 3, v{vLANE}")
e(f"v_lshl_add_u32 v{vT0}, v{vT1}, 3, v{vT0}")
e(f"s_add_u32 s{sTMP}, s{sTMP}, 16384")
e(f"v_add_u32 v{vVRl}, s{sTMP}, v{vT0}")
e(f"v_mov_b32 v{vKR}, v{vKRl}")
e(f"v_mov_b32 v{vVR}, v{vVRl}")
e(f"v_mov_b32 v{vIDX}, 0xdddddddd")
e(f"v_bfe_i32 v{vT0}, v{vLANE}, 2, 1")
e(f"v_and_b32 v{ONES+2}, 0x3f803f80, v{vT0}")
e(f"v_mov_b32 v{ONES+3}, v{ONES+2}")
e(f"v_xor_b32 v{ONES}, 0x3f803f80, v{ONES+2}")
e(f"v_mov_b32 v{ONES+1}, v{ONES}")
def zero(regs):
    regs = list(regs)
    for r in regs[::2]: e(f"v_mov_b64 {vr(r,2)}, 0")
zero(list(range(OA, OA+16)) + list(range(OB, OB+16)) + list(range(LA, LA+4)) + list(range(LB, LB+4)) + list(range(VF1, VF1+4)) + list(range(SB+8, SB+16)))
c("second chunk loads go behind everybody's first loads")
next_chunk()
e(f"s_add_u32 s{sTMP2}, s{sM0V}, 32768")
loadK(SB, sGOFF)
loadV(sGOFF, sTMP2)
e("s_waitcnt lgkmcnt(0)")
e(f"s_lshl_b32 s{sTMP}, s{sT}, 16")
e(f"s_and_b32 s{sTMP2}, s{sT}, 0xffff0000")
e("s_bitcmp1_b32 s3, 0")
e(f"s_cselect_b32 s{sT}, s{sTMP2}, s{sTMP}")
e(f"v_mov_b32 v{vTL}, 0x3fb8aa3b")
e(f"v_mul_f32 v{vTL}, s{sT}, v{vTL}")
e(f"v_or_b32 v{CA}, 0x80000000, v{vTL}")
e(f"v_mov_b32 v{CA+1}, v{CA}")
for j in range(2, 32, 2): e(f"v_mov_b64 {vr(CA+j,2)}, {vr(CA,2)}")
stamp(1)
c("K(0)")
e("s_waitcnt vmcnt(8)")
stamp(2)
norm(SA)
wrPK(vKWl)
c("Q tile")
e("s_waitcnt vmcnt(6)")
norm(SA+8, extra_scale=vTL)
e(f"v_add_u32 v{vKW}, {LDS_Q}, v{vKWl}")
wrPK(vKW)
e(f"s_add_u32 s{sTMP}, s{sW2K}, {LDS_Q}")
e(f"v_add_u32 v{vT0}, s{sTMP}, v{vT3}")
e(f"v_xor_b32 v{vT1}, 8192, v{vT0}")
stamp(3)
e("s_waitcnt vmcnt(4) lgkmcnt(0)")
stamp(4)
e("s_barrier")
e(f"ds_read_b128 {vr(QA,4)}, v{vT0}")
e(f"ds_read_b128 {vr(QA+4,4)}, v{vT0} offset:1024")
rdK(0)
e(f"ds_read_b128 {vr(QB,4)}, v{vT1}")
e(f"ds_read_b128 {vr(QB+4,4)}, v{vT1} offset:1024")
rdV(VF0, 0, 0)
stamp(5)
c("fast path check: |t| <= 16")
e(f"s_and_b32 s{sTMP}, s{sT}, 0x7fffffff")
e(f"s_cmp_le_u32 s{sTMP}, 0x41800000")
e("s_cbranch_scc0 L_maxpass")
e("L_start:")
e(f"s_mov_b32 s{sSTG}, 0")
e(f"s_mov_b32 s{sSLOT1}, 32768")
e(f"s_mov_b32 s{sSLOT2}, 65536")
e("s_waitcnt lgkmcnt(4)")
for s in qk(SA, QA, CA): e(s)
c("K(1): normalise under the first QK latency; a second barrier publishes it before stage 0 prefetches from slot 1")
e("s_waitcnt vmcnt(2)")
norm(SB)
e(f"v_add_u32 v{vKW}, 32768, v{vKWl}")
e("s_waitcnt lgkmcnt(0)")
wrPK(vKW)
stamp(6)
e(".p2align 6")
e("L_stage:")
e(f"s_cmp_ge_u32 s{sSTG}, 6")
e("s_cbranch_scc0 L_load")
e("s_waitcnt vmcnt(0)")
e("s_branch L_noload")
e("L_load:")
next_chunk()
e(f"s_add_u32 s{sTMP}, s{sM0V}, s{sSLOT2}")
loadK(RAW, sGOFF)
loadV(sGOFF, sTMP)
e("L_noload:")
for kt in range(4):
    if kt == 3:
        c("barrier: publishes data(stage+1) [written before the previous barrier or, for stage 0, in the prologue]")
    slotA(kt) if kt != 3 else None
    if kt == 3:
        pass
    if kt != 3: slotB(kt)
    if kt == 2:
        e(f"s_cmp_ge_u32 s{sSTG}, 7")
        e("s_cbranch_scc1 L_nobar")
        e("s_waitcnt vmcnt(4)")
        e("s_barrier")
        e("L_nobar:")
    if kt == 3:
        slotA(3);
        e(f"s_cmp_ge_u32 s{sSTG}, 6")
        e("s_cbranch_scc1 L_nonorm")
        e("s_waitcnt vmcnt(2)")
        norm(RAW)
        e(f"v_add_u32 v{vKW}, s{sSLOT2}, v{vKWl}")
        wrPK(vKW)
        e("L_nonorm:")
        slotB(3)
e(f"s_add_u32 s{sSTG}, s{sSTG}, 1")
e(f"s_mov_b32 s{sSLOT1}, s{sSLOT2}")
e(f"s_add_u32 s{sSLOT2}, s{sSLOT2}, 32768")
e(f"s_and_b32 s{sSLOT2}, s{sSLOT2}, 0x1ffff")
e(f"s_cmp_lg_u32 s{sSTG}, 8")
e("s_cbranch_scc1 L_stage")
e("L_done:")
e(pv(OB, VF1, SB+8))
e(sm(LB, SB+8))
c("exchange partial sums: write B partials for tile w^4, read partials for tile w")
e(f"s_lshl_b32 s{sTMP}, s{sWAVE}, 13")
e(f"v_add_u32 v{vT0}, s{sTMP}, v{vG16}")
e(f"v_xor_b32 v{vT1}, 0x8000, v{vT0}")
e("s_nop 3")
e(f"v_and_b32 v{vT2}, 31, v{vLANE}")
e(f"v_lshlrev_b32 v{vT2}, 6, v{vT2}")
e(f"v_lshrrev_b32 v{vT3}, 5, v{vLANE}")
e(f"v_lshl_add_u32 v{vKW}, v{vT3}, 4, v{vT2}")
e("s_nop 1")
e("s_waitcnt lgkmcnt(0)")
for j in range(4): e(f"ds_write_b128 v{vT1}, {vr(OB+4*j,4)} offset:{1024*j}")
e(f"ds_write_b32 v{vT1}, v{LB} offset:4096")
e("s_waitcnt lgkmcnt(0)")
stamp(16)
e("s_barrier")
e(f"ds_read_b32 v{LB}, v{vT0} offset:4096")
for j in range(4): e(f"ds_read_b128 {vr(OB+4*j,4)}, v{vT0} offset:{1024*j}")
e("s_waitcnt lgkmcnt(4)")
e(f"v_add_f32 v{LA}, v{LA}, v{LB}")
e(f"v_rcp_f32 v{vT2}, v{LA}")
for j in range(4):
    e(f"s_waitcnt lgkmcnt({3-j})")
    for i in range(2):
        r = 4*j + 2*i
        e(f"v_pk_add_f32 {vr(OA+r,2)}, {vr(OA+r,2)}, {vr(OB+r,2)}")
for i in range(8):
    e(f"v_pk_mul_f32 {vr(OA+2*i,2)}, {vr(OA+2*i,2)}, {vr(vT2,2)} op_sel_hi:[1,0]")
for i in range(8):
    e(f"v_cvt_pk_bf16_f32 v{PK+i}, v{OA+2*i}, v{OA+2*i+1}")
e("s_nop 1")
e(f"v_permlane32_swap_b32 v{PK+0}, v{PK+2}")
e(f"v_permlane32_swap_b32 v{PK+1}, v{PK+3}")
e(f"v_permlane32_swap_b32 v{PK+4}, v{PK+6}")
e(f"v_permlane32_swap_b32 v{PK+5}, v{PK+7}")
e("s_nop 1")
e(f"buffer_store_dwordx4 {vr(PK,4)}, v{vKW}, s[{sO}:{sO+3}], s{sQOFF} offen {STFLAGS}")
e(f"buffer_store_dwordx4 {vr(PK+4,4)}, v{vKW}, s[{sO}:{sO+3}], s{sQOFF} offen offset:32 {STFLAGS}")
if STAMP:
    stamp(17)
    e("s_waitcnt vmcnt(0)")
    stamp(18)
    e(f"s_lshl_b32 s56, s2, 3"); e(f"s_add_u32 s56, s56, s{sWAVE}"); e(f"s_lshl_b32 s56, s56, 9")
    e(f"v_lshlrev_b32 v{vT0}, 2, v{vLANE}")
    e(f"buffer_store_dword v{vST}, v{vT0}, s[48:51], s56 offen")
    e(f"buffer_store_dword v{vST2}, v{vT0}, s[48:51], s56 offen offset:256")
e("L_end:")
e("s_endpgm")

c("|t| large (or NaN): find the true row max of the logits first, then run the main loop with C = -max")
e("L_maxpass:")
e("s_waitcnt vmcnt(0) lgkmcnt(0)")
e(f"v_and_b32 v{vT0}, 31, v{vLANE}")
e(f"v_lshlrev_b32 v{vT0}, 6, v{vT0}")
e(f"v_lshrrev_b32 v{vT1}, 5, v{vLANE}")
e(f"v_lshl_add_u32 v{vKW}, v{vT1}, 5, v{vT0}")
e(f"s_sub_u32 s{sTMP}, s{sHEAD}, s{sW2K}")
e(f"s_mov_b32 s{sSTG}, 0")
e(f"v_mov_b32 v{CA}, 0xff800000")
e(f"v_mov_b32 v{CB}, 0xff800000")
e("L_maxloop:")
e(f"buffer_load_dwordx4 {vr(RAW,4)}, v{vKW}, s[{sK}:{sK+3}], s{sTMP} offen")
e(f"buffer_load_dwordx4 {vr(RAW+4,4)}, v{vKW}, s[{sK}:{sK+3}], s{sTMP} offen offset:16")
e("s_waitcnt vmcnt(0)")
norm(RAW, dpp=False)
e("s_nop 1")
for S, Q in ((SA, QA), (UNP, QB)):
    e(f"v_mfma_f32_32x32x16_bf16 {vr(S,16)}, {vr(PK,4)}, {vr(Q,4)}, 0")
    e(f"v_mfma_f32_32x32x16_bf16 {vr(S,16)}, {vr(PK+4,4)}, {vr(Q+4,4)}, {vr(S,16)}")
e("s_nop 15")
for S, C in ((SA, CA), (UNP, CB)):
    for j in range(8): e(f"v_max3_f32 v{C}, v{S+2*j}, v{S+2*j+1}, v{C}")
e(f"s_add_u32 s{sTMP}, s{sTMP}, 2048")
e(f"s_add_u32 s{sSTG}, s{sSTG}, 1")
e(f"s_cmp_lt_u32 s{sSTG}, 64")
e("s_cbranch_scc1 L_maxloop")
for C in (CA, CB):
    e(f"v_mov_b32 v{vT0}, v{C}")
    e("s_nop 1")
    e(f"v_permlane32_swap_b32 v{vT0}, v{C}")
    e("s_nop 1")
    e(f"v_max_f32 v{C}, v{C}, v{vT0}")
    e(f"v_xor_b32 v{C}, 0x80000000, v{C}")
    for j in range(1, 16): e(f"v_mov_b32 v{C+j}, v{C}")
e("s_branch L_start")

nv = (NV + 7) // 8 * 8
src = HEADER + f"; @launch grid=(256,1,1) block=(512,1,1) lds={LDS_TOTAL}\n" + f""".amdgcn_target "amdgcn-amd-amdhsa--gfx950"
.text
.globl {NAME}
.p2align 8
.type {NAME},@function
""" + "\n".join(L) + f"""
.section .rodata,"a"
.p2align 6
.amdhsa_kernel {NAME}
  .amdhsa_next_free_vgpr {nv}
  .amdhsa_next_free_sgpr 64
  .amdhsa_accum_offset {nv}
  .amdhsa_group_segment_fixed_size 0
  .amdhsa_kernarg_size 56
  .amdhsa_user_sgpr_count 2
  .amdhsa_user_sgpr_kernarg_segment_ptr 1
  .amdhsa_system_sgpr_workgroup_id_x 1
.end_amdhsa_kernel
"""
open(sys.argv[1], "w").write(src)
print("vgprs", NV, "->", nv)
```

```python
import sys
OPT = dict(a.split("=") for a in sys.argv[2:] if "=" in a)
def opt(name, default): return type(default)(OPT.get(name, default))
STAMP = opt("stamp", 0)
PRIO = OPT.get("prio", "2210")
COOP = opt("coop", 1)
NPOLL = opt("npoll", 8)
PAT = opt("pat", 0)
EARLY = opt("early", 1)
PUBFL = OPT.get("pubfl", "").replace("+", " ")
PPRIO = opt("pprio", 3)
ROT = opt("rot", 1)
CZERO = opt("czero", 0)
STFLAGS = OPT.get("stflags", "").replace("+", " ")
QFLAGS = OPT.get("qflags", "nt").replace("+", " ").replace("none", "")
KFLAGS = OPT.get("kflags", "").replace("+", " ")
VFLAGS = OPT.get("vflags", "").replace("+", " ")
BARAT = opt("barat", 2)

HEADER = open("standalone__qk_norm__prompt.s.ref").read().split("; Override launch")[0]
NAME = "standalone__qk_norm__prompt_kernel"
L = []
def e(s=""): L.append("    " + s if s and not s.endswith(":") else s)
def c(s): L.append("    ; " + s)

class VA:
    def __init__(s, n=1): s.n = n
    def get(s, k=1, al=1):
        s.n = (s.n + al - 1) // al * al
        b = s.n; s.n += k; return b
def vr(b, n): return f"v[{b}:{b+n-1}]"
va = VA()
vLANE = va.get(); vG16 = va.get(); vT0 = va.get(); vT1 = va.get(); vT3 = va.get(); vT2 = va.get(2, 2); vT4 = va.get(2, 2)
vST = va.get(); vST2 = va.get()
UA = va.get(8, 4)
base = va.n
vKR = va.get(); vVR = va.get(); vKRl = va.get(); vVRl = va.get(); vIDX = va.get(); vTL = va.get(); vRED = va.get(); vOUT = va.get()
vQR = va.get(); vQW = va.get()
KF = UA
ONES = va.get(4, 4)
QA = va.get(8, 4); QB = va.get(8, 4)
VF0 = va.get(4, 4); VF1 = va.get(4, 4)
LA = va.get(4, 4); LB = va.get(4, 4)
SA = va.get(16, 4); SB = va.get(16, 4)
OA = va.get(16, 4); OB = va.get(16, 4)
CA = va.get(16, 4); CB = va.get(16, 4)
NV = va.n
vp = VA(base)
vG64 = vp.get(); vKWl = vp.get(); vKW = vp.get()
vFA = vp.get(); vFL = vp.get(); vTAG = vp.get(); vTG2 = vp.get(2, 2)
RAW = vp.get(16, 4); RAW2 = vp.get(16, 4); UNP = vp.get(32, 4); PK = vp.get(16, 4)
assert vp.n <= NV and NV <= 168

sQ, sK, sV, sO = 16, 20, 24, 28
sHEAD = 32; sPART = 33; sWAVE = 34; sSTG = 35; sT = 36; sGOFF = 37; sSLOT = 38
sTMP = 40; sTMP2 = 41; sW = 42; sCH = 43; sM0V = 44; sQOFF = 45
sWS = 60; sDB = 64; sFLG = 46; sWOFF = 47; sCNT = 39; sFOFF = 57; sIDX = 58; sC0 = 59
LDS_Q = 131072; QSTR = 2176; LDS_TOTAL = LDS_Q + 8 * QSTR

def st_issue(force=False):
    if STAMP == 1 or (STAMP and force):
        e("s_memtime s[52:53]"); e("s_memrealtime s[54:55]")
def st_put(lane):
    if STAMP == 1 or (STAMP and lane in (0, 18)):
        e(f"v_writelane_b32 v{vST}, s52, {lane}"); e(f"v_writelane_b32 v{vST2}, s54, {lane}")
def stamp(lane):
    if STAMP == 1 or (STAMP and lane == 18):
        st_issue(True); e("s_waitcnt lgkmcnt(0)"); st_put(lane)
def st_flush(slot_sgpr):
    if STAMP:
        e(f"s_mul_i32 s56, s2, 12"); e(f"s_add_u32 s56, s56, s{slot_sgpr}"); e(f"s_lshl_b32 s56, s56, 9")
        e(f"v_lshlrev_b32 v{vT0}, 2, v{vLANE}")
        e(f"buffer_store_dword v{vST}, v{vT0}, s[48:51], s56 offen")
        e(f"buffer_store_dword v{vST2}, v{vT0}, s[48:51], s56 offen offset:256")

def unpack(raw, dst):
    e(f"v_mfma_f32_32x32x16_bf16 {vr(dst,16)}, {vr(UA,4)}, {vr(raw,4)}, 0")
    e(f"v_mfma_f32_32x32x16_bf16 {vr(dst,16)}, {vr(UA+4,4)}, {vr(raw+4,4)}, {vr(dst,16)}")
def dots(acc, raw, n):
    e(f"v_dot2_f32_bf16 v{acc}, v{raw}, v{raw}, 0")
    for j in range(1, n): e(f"v_dot2_f32_bf16 v{acc}, v{raw+j}, v{raw+j}, v{acc}")
def scale_pack(unp, n, sc, pk):
    for j in range(n): e(f"v_pk_mul_f32 {vr(unp+2*j,2)}, {vr(unp+2*j,2)}, {vr(sc,2)} op_sel_hi:[1,0]")
    for j in range(n): e(f"v_cvt_pk_bf16_f32 v{pk+j}, v{unp+2*j}, v{unp+2*j+1}")
def zero(regs):
    for r in list(regs)[::2]: e(f"v_mov_b64 {vr(r,2)}, 0")

def qk(S, Q, C):
    return [f"v_mfma_f32_32x32x16_bf16 {vr(S,16)}, {vr(KF,4)}, {vr(Q,4)}, " + ("0" if CZERO else vr(C,16)),
            f"v_mfma_f32_32x32x16_bf16 {vr(S,16)}, {vr(KF+4,4)}, {vr(Q+4,4)}, {vr(S,16)}"]
def pv(O, VF, S): return f"v_smfmac_f32_32x32x32_bf16 {vr(O,16)}, {vr(VF,4)}, {vr(S,8)}, v{vIDX}"
def sm(Lr, S): return f"v_smfmac_f32_16x16x64_bf16 {vr(Lr,4)}, {vr(ONES,4)}, {vr(S,8)}, v{vIDX}"
def ex(S, a, b):
    for j in range(a, b): e(f"v_exp_f32 v{S+j}, v{S+j}")
def rdK(t):
    e(f"ds_read_b128 {vr(KF,4)}, v{vKR} offset:{t*2048}")
    e(f"ds_read_b128 {vr(KF+4,4)}, v{vKR} offset:{t*2048+1024}")
def rdV(VF, t, half):
    e(f"ds_read_b64_tr_b16 {vr(VF,2)}, v{vVR} offset:{t*2048+half*1024}")
    e(f"ds_read_b64_tr_b16 {vr(VF+2,2)}, v{vVR} offset:{t*2048+half*1024+256}")

def slotA(kt):
    c(f"--- slot A kt={kt}")
    if PRIO != "none" and (kt == 0 or PRIO[kt] != PRIO[kt-1]): e(f"s_setprio {PRIO[kt]}")
    q = qk(SB, QB, CB)
    if PAT == 0:
        ex(SA, 0, 2); e(pv(OB, VF1, SB+8)); ex(SA, 2, 5); e(sm(LB, SB+8))
        rdV(VF1, kt, 1)
        ex(SA, 5, 7)
    else:
        ex(SA, 0, 2); e(sm(LB, SB+8)); ex(SA, 2, 4); e(pv(OB, VF1, SB+8))
        rdV(VF1, kt, 1)
        ex(SA, 4, 7)
    e(q[0]); ex(SA, 7, 10); e(q[1])
    if kt == 3: e(f"v_add_u32 v{vKR}, s{sSLOT}, v{vKRl}")
    rdK((kt + 1) & 3)
    ex(SA, 10, 13)
    if PAT == 0:
        e("s_waitcnt lgkmcnt(4)")
        e(pv(OA, VF0, SA)); ex(SA, 13, 16); e(sm(LA, SA))
    else:
        e(sm(LA, SA)); ex(SA, 13, 15)
        e("s_waitcnt lgkmcnt(4)")
        e(pv(OA, VF0, SA)); ex(SA, 15, 16)
def slotB(kt, last=False):
    c(f"--- slot B kt={kt}" + (" (last)" if last else ""))
    q = qk(SA, QA, CA)
    ex(SB, 0, 2)
    if PAT == 0 or last:
        e("s_waitcnt lgkmcnt(2)")
        if kt == 3: st_issue()
        e(pv(OA, VF1, SA+8)); ex(SB, 2, 5); e(sm(LA, SA+8)); ex(SB, 5, 7)
    else:
        e(sm(LA, SA+8)); ex(SB, 2, 4)
        e("s_waitcnt lgkmcnt(2)")
        if kt == 3: st_issue()
        e(pv(OA, VF1, SA+8)); ex(SB, 4, 7)
    if not last or STAMP == 1: e("s_waitcnt lgkmcnt(0)")
    if kt == 3 and STAMP == 1:
        e(f"s_add_u32 s56, s{sSTG}, 8"); e(f"s_mov_b32 m0, s56"); st_put("m0")
    if last:
        ex(SB, 7, 10)
        e(pv(OB, VF0, SB))
        ex(SB, 10, 12)
        c("tile A is complete: hand its partial sums to the partner wave")
        for j in range(4): e(f"ds_write_b128 v{vRED}, {vr(OA+4*j,4)} offset:{1024*j}")
        e(f"ds_write_b32 v{vRED}, v{LA} offset:4096")
        ex(SB, 12, 13)
        e(sm(LB, SB))
        ex(SB, 13, 16)
        return
    e(q[0]); ex(SB, 7, 10); e(q[1])
    if kt == 3: e(f"v_add_u32 v{vVR}, s{sSLOT}, v{vVRl}")
    ex(SB, 10, 13)
    if PAT == 0:
        e(pv(OB, VF0, SB))
        rdV(VF0, (kt + 1) & 3, 0)
        ex(SB, 13, 16); e(sm(LB, SB))
    else:
        e(sm(LB, SB)); ex(SB, 13, 15)
        e(pv(OB, VF0, SB))
        rdV(VF0, (kt + 1) & 3, 0)
        ex(SB, 15, 16)

def ua_consts():
    c("unpack selection matrices: lane (m=l&31,hA=l>>5): A_i has 1.0 at e=(m&3)+4*((m>>3)&1) iff (m>>4)==i and ((m>>2)&1)==hA")
    e(f"v_bfe_u32 v{vT0}, v{vLANE}, 2, 1")
    e(f"v_lshrrev_b32 v{vT1}, 5, v{vLANE}")
    e(f"v_cmp_eq_u32 vcc, v{vT0}, v{vT1}")
    e(f"v_and_b32 v{vT0}, 1, v{vLANE}")
    e(f"v_lshlrev_b32 v{vT0}, 4, v{vT0}")
    e(f"v_mov_b32 v{vT1}, 0x3f80")
    e(f"v_lshlrev_b32 v{vT1}, v{vT0}, v{vT1}")
    e(f"v_cndmask_b32 v{vT1}, 0, v{vT1}, vcc")
    e(f"v_bfe_u32 v{vT0}, v{vLANE}, 1, 1")
    e(f"v_bfe_u32 v{vT2}, v{vLANE}, 3, 2")
    e(f"v_lshl_add_u32 v{vT0}, v{vT2}, 1, v{vT0}")
    for r in range(8):
        e(f"v_cmp_eq_u32 vcc, {r}, v{vT0}")
        e("s_nop 1")
        e(f"v_cndmask_b32 v{UA+r}, 0, v{vT1}, vcc")

e(f"{NAME}:")
e("s_load_dwordx8 s[4:11], s[0:1], 0")
e("s_load_dwordx2 s[12:13], s[0:1], 32")
if STAMP:
    st_issue(True)
    e("s_load_dwordx2 s[48:49], s[0:1], 48")
    e("s_mov_b32 s50, 0x200000"); e("s_mov_b32 s51, 0x00020000")
e("s_cmp_ge_u32 s2, 256")
e("s_cbranch_scc1 L_end")
c("head = (wg&7)*4 + ((wg>>3)&3), part = wg>>5")
e(f"v_lshrrev_b32 v{vT0}, 6, v0")
e(f"v_and_b32 v{vLANE}, 63, v0")
e(f"v_readfirstlane_b32 s{sWAVE}, v{vT0}")
e("s_and_b32 s3, s2, 7")
e("s_lshl_b32 s3, s3, 2")
e(f"s_bfe_u32 s{sTMP}, s2, 0x20003")
e(f"s_add_u32 s3, s3, s{sTMP}")
e(f"s_lshl_b32 s{sHEAD}, s3, 17")
e(f"v_lshlrev_b32 v{vG16}, 4, v{vLANE}")
for s in (sQ, sK, sV, sO):
    e(f"s_mov_b32 s{s+2}, 0x400000")
    e(f"s_mov_b32 s{s+3}, 0x00020000")
e(f"s_cmp_ge_u32 s{sWAVE}, 4")
e("s_cbranch_scc1 L_consumer")

c("===== producer waves 0..3: K tiles 2w,2w+1 and V tiles 2w,2w+1 of every chunk =====")
e(f"s_load_dwordx4 s[68:71], s[0:1], 40")
e(f"s_setprio {PPRIO}")
e(f"s_lshl_b32 s{sW}, s{sWAVE}, 12")
e(f"s_add_u32 s{sHEAD}, s{sHEAD}, s{sW}")
e(f"s_and_b32 s{sCH}, s3, 7"); e(f"s_lshl_b32 s{sCH}, s{sCH}, 14")
e(f"s_add_u32 s{sGOFF}, s{sHEAD}, s{sCH}")
e(f"s_add_u32 s{sM0V}, s{sW}, 16384")
e(f"v_lshlrev_b32 v{vG64}, 6, v{vLANE}")
e(f"s_mov_b32 m0, s{sM0V}")
e(f"s_lshr_b32 s{sPART}, s2, 5")
e(f"s_mov_b32 s{sWS+2}, 0x804000"); e(f"s_mov_b32 s{sWS+3}, 0x00020000")
e("s_waitcnt lgkmcnt(0)")
if STAMP:
    e(f"v_mov_b32 v{vST}, 0"); e(f"v_mov_b32 v{vST2}, 0"); st_put(0)
e(f"s_mov_b64 s[{sK}:{sK+1}], s[6:7]")
e(f"s_mov_b64 s[{sV}:{sV+1}], s[8:9]")
def loadK(dst=RAW, soff=sGOFF, fl=KFLAGS):
    for j in range(4): e(f"buffer_load_dwordx4 {vr(dst+4*j,4)}, v{vG64}, s[{sK}:{sK+3}], s{soff} offen offset:{16*j} {fl}")
def loadV():
    for j in range(4): e(f"buffer_load_dwordx4 v{vG16}, s[{sV}:{sV+3}], s{sGOFF} offen offset:{1024*j} {VFLAGS} lds")
def pstamp(lane):
    if STAMP == 1: stamp(lane)
def pnorm(raw):
    acc = [vT0, vT1, vT4, vT4+1]
    for j in range(16):
        a_ = acc[j & 3]
        e(f"v_dot2_f32_bf16 v{a_}, v{raw+j}, v{raw+j}, " + ("0" if j < 4 else f"v{a_}"))
    unpack(raw, UNP); unpack(raw+8, UNP+16)
    e(f"v_add_f32 v{vT0}, v{vT0}, v{vT1}")
    e(f"v_add_f32 v{vT4}, v{vT4}, v{vT4+1}")
    e(f"v_add_f32 v{vT0}, v{vT0}, v{vT4}")
    e(f"v_sqrt_f32 v{vT0}, v{vT0}"); e("s_nop 0")
    e(f"v_add_f32 v{vT0}, 0x358637bd, v{vT0}")
    e(f"v_rcp_f32 v{vT2}, v{vT0}")
    e("s_nop 5")
    scale_pack(UNP, 16, vT2, PK)
def advance(first=False):
    e(f"v_add_u32 v{vKW}, s{sSLOT}, v{vKWl}")
    e(f"s_add_u32 s{sSLOT}, s{sSLOT}, 32768")
    e(f"s_and_b32 s{sSLOT}, s{sSLOT}, 0x1ffff")
    if first == 0: e(f"s_mov_b32 s{sIDX}, 1")
    elif first == 1:
        c("third stage: chunk index 2 + (part mod 6), then cyclically through 2..7")
        e(f"s_add_u32 s{sIDX}, s{sPART}, 2") if COOP else e(f"s_mov_b32 s{sIDX}, 2")
    else: e(f"s_add_u32 s{sIDX}, s{sIDX}, 1")
    if first != 0:
        e(f"s_sub_u32 s{sTMP}, s{sIDX}, 6")
        e(f"s_cmp_ge_u32 s{sIDX}, 8")
        e(f"s_cselect_b32 s{sIDX}, s{sTMP}, s{sIDX}")
    e(f"s_lshl_b32 s{sCH}, s{sIDX}, 14")
    e(f"s_add_u32 s{sTMP}, s{sCH}, s{sC0}")
    e(f"s_and_b32 s{sTMP}, s{sTMP}, 0x1ffff")
    e(f"s_add_u32 s{sGOFF}, s{sHEAD}, s{sTMP}")
    e(f"s_add_u32 s{sTMP}, s{sM0V}, s{sSLOT}")
    e(f"s_mov_b32 m0, s{sTMP}")
def wrK():
    for j in range(4): e(f"ds_write_b128 v{vKW}, {vr(PK+4*j,4)} offset:{512*j}")
loadK(); loadV()
e(f"s_mov_b32 s{sC0}, s{sCH}")
WSK = 0x400000; WSF = 0x800000
if COOP:
    e(f"s_mov_b64 s[{sWS}:{sWS+1}], s[70:71]")
    c("hand-off line of (head, wave): dwords 0,1 = generation G, dwords 2+2p,3+2p = flag of part p")
    e(f"s_lshl_b32 s{sFOFF}, s3, 2")
    e(f"s_add_u32 s{sFOFF}, s{sFOFF}, s{sWAVE}")
    e(f"s_lshl_b32 s{sFOFF}, s{sFOFF}, 7")
    e(f"s_add_u32 s{sFOFF}, s{sFOFF}, {WSF}")
    e(f"v_min_u32 v{vFA}, 17, v{vLANE}")
    e(f"v_lshlrev_b32 v{vFA}, 2, v{vFA}")
    e(f"s_add_u32 s{sWOFF}, s{sHEAD}, {WSK}")
ua_consts()
c("K' write address: tile (l>>5)*2048 + key*16 (+ chunk c*512)")
e(f"v_and_b32 v{vT0}, 31, v{vLANE}")
e(f"v_lshlrev_b32 v{vT0}, 4, v{vT0}")
e(f"v_lshrrev_b32 v{vT1}, 5, v{vLANE}")
e(f"v_lshl_add_u32 v{vT0}, v{vT1}, 11, v{vT0}")
e(f"v_add_u32 v{vKWl}, s{sW}, v{vT0}")
e(f"s_mov_b32 s{sSLOT}, 0")
e(f"s_mov_b32 s{sFLG}, 0")
c("--- stage 0 data")
e(f"s_waitcnt vmcnt(4)")
pstamp(20)
pnorm(RAW); advance(0); wrK()
loadK(); loadV()
e(f"s_waitcnt vmcnt(8) lgkmcnt(0)")
pstamp(8)
e("s_barrier")
c("--- stage 1 data")
if COOP and EARLY:
    advance(1)
    e(f"buffer_load_dword v{vFL}, v{vFA}, s[{sWS}:{sWS+3}], s{sFOFF} offen sc1")
    loadK(RAW2, sGOFF, PUBFL)
    e(f"s_waitcnt vmcnt(9)")
    pstamp(21)
    pnorm(RAW); wrK()
    if EARLY == 1:
        loadV()
        e(f"s_waitcnt vmcnt(9) lgkmcnt(0)")
    else:
        e(f"s_waitcnt vmcnt(5) lgkmcnt(0)")
else:
    e(f"s_waitcnt vmcnt(4)")
    pstamp(21)
    pnorm(RAW); advance(1); wrK()
    if COOP: e(f"buffer_load_dword v{vFL}, v{vFA}, s[{sWS}:{sWS+3}], s{sFOFF} offen sc1")
    loadK(RAW2 if COOP else RAW, sGOFF, PUBFL); loadV()
    e(f"s_waitcnt vmcnt({9 if COOP else 8}) lgkmcnt(0)")
pstamp(9)
e("s_barrier")
if COOP and EARLY == 2: loadV()
def poll():
    e(f"buffer_load_dword v{vFL}, v{vFA}, s[{sWS}:{sWS+3}], s{sFOFF} offen sc1")
    e("s_waitcnt vmcnt(0)")
    e(f"v_cmp_eq_u32 vcc, v{vFL}, v{vTAG}")
    e("s_nop 0")
    e(f"s_lshr_b32 s{sFLG}, vcc_lo, 2")
    e(f"s_lshr_b32 s{sTMP}, vcc_lo, 3")
    e(f"s_and_b32 s{sFLG}, s{sFLG}, s{sTMP}")
if COOP:
    c("--- stage 2 data: own chunk, normalised here and published for the other workgroups of this head")
    e(f"s_waitcnt vmcnt(4)")
    pstamp(22)
    pnorm(RAW2)
    e(f"s_add_u32 s{sTMP2}, s{sWOFF}, s{sCH}")
    e(f"s_cmp_ge_u32 s{sPART}, 6")
    e("s_cbranch_scc1 L_nopub")
    for j in range(4): e(f"buffer_store_dwordx4 {vr(PK+4*j,4)}, v{vG16}, s[{sWS}:{sWS+3}], s{sTMP2} offen offset:{1024*j} sc1")
    e("L_nopub:")
    advance(2); wrK(); loadV()
    c("tag of this launch: T = G + golden ratio (64 bit)")
    e(f"v_readlane_b32 s{sDB}, v{vFL}, 0")
    e(f"v_readlane_b32 s{sDB+1}, v{vFL}, 1")
    e(f"v_and_b32 v{vT0}, 1, v{vLANE}")
    e(f"s_add_u32 s{sDB}, s{sDB}, 0x7f4a7c15")
    e(f"s_addc_u32 s{sDB+1}, s{sDB+1}, 0x9e3779b9")
    e(f"v_cmp_eq_u32 vcc, 1, v{vT0}")
    e(f"v_mov_b32 v{vTG2}, s{sDB}")
    e(f"v_mov_b32 v{vTG2+1}, s{sDB+1}")
    e(f"v_cndmask_b32 v{vTAG}, v{vTG2}, v{vTG2+1}, vcc")
    e(f"s_lshl_b32 s{sTMP}, s{sPART}, 3")
    e(f"s_add_u32 s{sTMP}, s{sTMP}, s{sFOFF}")
    c("stores acknowledged -> raise this wave's flag")
    e("s_waitcnt vmcnt(4) lgkmcnt(0)")
    pstamp(29)
    e("s_mov_b64 exec, 1")
    e(f"buffer_store_dwordx2 {vr(vTG2,2)}, v{vFA}, s[{sWS}:{sWS+3}], s{sTMP} offen offset:8 sc1")
    e("s_mov_b64 exec, -1")
    e(f"s_mov_b32 s{sSTG}, 3")
    pstamp(10)
    e("s_barrier")
else:
    e(f"s_mov_b32 s{sSTG}, 2")
e("L_ploop:")
if COOP:
    c("is the normalised chunk of this stage published (by part idx-2)?  bounded polling, else normalise locally")
    e(f"s_mov_b32 s{sCNT}, {NPOLL}")
    e("L_poll:")
    e(f"s_lshl_b32 s{sTMP}, s{sIDX}, 1")
    e(f"s_sub_u32 s{sTMP}, s{sTMP}, 4")
    e(f"s_bitcmp1_b32 s{sFLG}, s{sTMP}")
    e("s_cbranch_scc1 L_ready")
    e(f"s_cmp_eq_u32 s{sCNT}, 0")
    e("s_cbranch_scc1 L_local")
    e(f"s_sub_u32 s{sCNT}, s{sCNT}, 1")
    poll()
    e("s_branch L_poll")
    e("L_local:")
    loadK()
    e("s_waitcnt vmcnt(0)")
    pnorm(RAW)
    e("s_branch L_have")
    e("L_ready:")
    e(f"s_add_u32 s{sTMP}, s{sWOFF}, s{sCH}")
    for j in range(4): e(f"buffer_load_dwordx4 {vr(PK+4*j,4)}, v{vG16}, s[{sWS}:{sWS+3}], s{sTMP} offen offset:{1024*j} sc1")
    e("s_waitcnt vmcnt(0)")
    e("L_have:")
    if STAMP == 1:
        st_issue(); e("s_waitcnt lgkmcnt(0)"); e(f"s_add_u32 s56, s{sSTG}, 20"); e("s_mov_b32 m0, s56"); st_put("m0")
        e(f"s_add_u32 s56, s{sSTG}, 40"); e("s_mov_b32 m0, s56"); e(f"v_writelane_b32 v{vST}, s{sCNT}, m0")
    advance(2); wrK()
    e(f"s_cmp_eq_u32 s{sSTG}, 7")
    e("s_cbranch_scc1 L_plast")
    loadV()
    e(f"s_add_u32 s{sSTG}, s{sSTG}, 1")
    e("s_waitcnt lgkmcnt(0)")
else:
    e("s_waitcnt vmcnt(4)")
    pnorm(RAW); advance(2); wrK()
    e(f"s_cmp_eq_u32 s{sSTG}, 7")
    e("s_cbranch_scc1 L_plast")
    loadK(); loadV()
    e(f"s_add_u32 s{sSTG}, s{sSTG}, 1")
    e("s_waitcnt vmcnt(8) lgkmcnt(0)")
if STAMP == 1:
    st_issue(); e("s_waitcnt lgkmcnt(0)"); e(f"s_add_u32 s56, s{sSTG}, 7"); e("s_mov_b32 m0, s56"); st_put("m0")
e("s_barrier")
e("s_branch L_ploop")
e("L_plast:")
e("s_waitcnt vmcnt(0) lgkmcnt(0)")
e("s_barrier")
if COOP:
    c("part 0: once every part has raised its flag (so has read G), advance the generation for the next launch")
    e(f"s_cmp_lg_u32 s{sPART}, 0")
    e("s_cbranch_scc1 L_pend")
    e("L_fin:")
    e(f"s_and_b32 s{sTMP}, s{sFLG}, 0x5555")
    e(f"s_cmp_eq_u32 s{sTMP}, 0x5555")
    e("s_cbranch_scc1 L_bump")
    poll()
    e("s_branch L_fin")
    e("L_bump:")
    e("s_mov_b64 exec, 1")
    e(f"buffer_store_dwordx2 {vr(vTG2,2)}, v{vFA}, s[{sWS}:{sWS+3}], s{sFOFF} offen sc1")
    e("s_mov_b64 exec, -1")
    e("L_pend:")
if STAMP:
    stamp(18)
    e(f"s_add_u32 s{sTMP}, s{sWAVE}, 8")
    st_flush(sTMP)
e("s_endpgm")

c("===== consumer waves 4..11 =====")
e("L_consumer:")
e(f"s_sub_u32 s{sWAVE}, s{sWAVE}, 4")
e(f"s_lshl_b32 s{sW}, s{sWAVE}, 11")
e(f"s_lshr_b32 s{sPART}, s2, 5")
e(f"s_lshl_b32 s{sTMP}, s{sPART}, 14")
e(f"s_add_u32 s{sQOFF}, s{sHEAD}, s{sTMP}")
e(f"s_add_u32 s{sQOFF}, s{sQOFF}, s{sW}")
e(f"s_lshr_b32 s{sTMP2}, s3, 1")
e(f"s_lshl_b32 s{sTMP2}, s{sTMP2}, 2")
e("s_waitcnt lgkmcnt(0)")
if STAMP:
    e(f"v_mov_b32 v{vST}, 0"); e(f"v_mov_b32 v{vST2}, 0"); st_put(0)
e(f"s_mov_b64 s[{sQ}:{sQ+1}], s[4:5]")
e(f"buffer_load_dwordx4 {vr(SA,4)}, v{vG16}, s[{sQ}:{sQ+3}], s{sQOFF} offen {QFLAGS}")
e(f"buffer_load_dwordx4 {vr(SA+4,4)}, v{vG16}, s[{sQ}:{sQ+3}], s{sQOFF} offen offset:1024 {QFLAGS}")
e(f"s_load_dword s{sT}, s[10:11], s{sTMP2}")
e(f"s_mov_b64 s[{sK}:{sK+1}], s[6:7]")
e(f"s_mov_b64 s[{sO}:{sO+1}], s[12:13]")
ua_consts()
c("K' read: group*8192 + lane*16")
e(f"s_and_b32 s{sTMP}, s{sWAVE}, 4")
e(f"s_lshl_b32 s{sTMP}, s{sTMP}, 11")
e(f"v_add_u32 v{vKRl}, s{sTMP}, v{vG16}")
c("V read: (8*hA + (i>>2))*64 + dhalf*32 + (i&3)*8 + 16384 + group*8192")
e(f"v_lshrrev_b32 v{vT0}, 5, v{vLANE}")
e(f"v_lshlrev_b32 v{vT0}, 9, v{vT0}")
e(f"v_bfe_u32 v{vT1}, v{vLANE}, 2, 2")
e(f"v_lshl_add_u32 v{vT0}, v{vT1}, 6, v{vT0}")
e(f"v_bfe_u32 v{vT1}, v{vLANE}, 4, 1")
e(f"v_lshl_add_u32 v{vT0}, v{vT1}, 5, v{vT0}")
e(f"v_and_b32 v{vT1}, 3, v{vLANE}")
e(f"v_lshl_add_u32 v{vT0}, v{vT1}, 3, v{vT0}")
e(f"s_add_u32 s{sTMP}, s{sTMP}, 16384")
e(f"v_add_u32 v{vVRl}, s{sTMP}, v{vT0}")
e(f"v_mov_b32 v{vKR}, v{vKRl}")
e(f"v_mov_b32 v{vVR}, v{vVRl}")
e(f"v_mov_b32 v{vIDX}, 0xdddddddd")
c("Q' write: LDS_Q + w*QSTR + (l&3)*544 + (l>>2)*16 ; read: LDS_Q + (w&3)*QSTR + (l>>5)*544 + (l&31)*16")
e(f"s_mul_i32 s{sTMP}, s{sWAVE}, {QSTR}")
e(f"s_add_u32 s{sTMP}, s{sTMP}, {LDS_Q}")
e(f"v_mul_u32_u24 v{vT0}, 544, v{vT1}")
e(f"v_lshrrev_b32 v{vT1}, 2, v{vLANE}")
e(f"v_lshl_add_u32 v{vT0}, v{vT1}, 4, v{vT0}")
e(f"v_add_u32 v{vQW}, s{sTMP}, v{vT0}")
e(f"v_lshrrev_b32 v{vT1}, 5, v{vLANE}")
e(f"v_lshl_add_u32 v{vT0}, v{vT1}, 5, v{vG16}")
e(f"v_add_u32 v{vQR}, s{sTMP}, v{vT0}")
e(f"s_xor_b32 s{sTMP2}, s{sWAVE}, 4")
e(f"s_mul_i32 s{sTMP2}, s{sTMP2}, {QSTR}")
e(f"s_add_u32 s{sTMP2}, s{sTMP2}, {LDS_Q}")
e(f"v_add_u32 v{vT3}, s{sTMP2}, v{vT0}")
c("row-sum selector: only rows 0 (q 0..15) and 4 (q 16..31) carry ones")
e(f"v_and_b32 v{vT0}, 15, v{vLANE}")
e(f"v_mov_b32 v{vT1}, 0x3f803f80")
e(f"v_cmp_eq_u32 vcc, 0, v{vT0}")
e("s_nop 1")
e(f"v_cndmask_b32 v{ONES}, 0, v{vT1}, vcc")
e(f"v_cmp_eq_u32 vcc, 4, v{vT0}")
e(f"v_mov_b32 v{ONES+1}, v{ONES}")
e("s_nop 0")
e(f"v_cndmask_b32 v{ONES+2}, 0, v{vT1}, vcc")
e(f"v_mov_b32 v{ONES+3}, v{ONES+2}")
c("epilogue addresses")
e(f"s_lshl_b32 s{sTMP}, s{sWAVE}, 13")
e(f"s_xor_b32 s{sTMP}, s{sTMP}, 0x8000")
e(f"v_add_u32 v{vRED}, s{sTMP}, v{vG16}")
e(f"v_and_b32 v{vT0}, 31, v{vLANE}")
e(f"v_lshlrev_b32 v{vT0}, 6, v{vT0}")
e(f"v_lshrrev_b32 v{vT1}, 5, v{vLANE}")
e(f"v_lshl_add_u32 v{vOUT}, v{vT1}, 4, v{vT0}")
zero(list(range(OA, OA+16)) + list(range(OB, OB+16)) + list(range(LA, LA+4)) + list(range(LB, LB+4)) + list(range(VF1, VF1+4)))
e("s_waitcnt lgkmcnt(0)")
e(f"s_lshl_b32 s{sTMP}, s{sT}, 16")
e(f"s_and_b32 s{sTMP2}, s{sT}, 0xffff0000")
e("s_bitcmp1_b32 s3, 0")
e(f"s_cselect_b32 s{sT}, s{sTMP2}, s{sTMP}")
e(f"v_mov_b32 v{vTL}, 0x3fb8aa3b")
e(f"v_mul_f32 v{vTL}, s{sT}, v{vTL}")
e(f"v_or_b32 v{CA}, 0x80000000, v{vTL}")
e(f"v_mov_b32 v{CA+1}, v{CA}")
for j in range(2, 32, 2): e(f"v_mov_b64 {vr(CA+j,2)}, {vr(CA,2)}")
e(f"s_mov_b32 s{sSTG}, 0")
e(f"s_mov_b32 s{sSLOT}, 32768")
stamp(1)
c("Q tile: rows 16j + (l>>2), 8 elements per lane and j")
e("s_waitcnt vmcnt(0)")
stamp(2)
unpack(SA, SB)
dots(vT0, SA, 4); dots(vT1, SA+4, 4)
e("s_nop 1")
for qp in ("[1,0,3,2]", "[2,3,0,1]"):
    e(f"v_add_f32_dpp v{vT0}, v{vT0}, v{vT0} quad_perm:{qp} row_mask:0xf bank_mask:0xf")
    e("s_nop 0")
    e(f"v_add_f32_dpp v{vT1}, v{vT1}, v{vT1} quad_perm:{qp} row_mask:0xf bank_mask:0xf")
    if qp == "[1,0,3,2]": e("s_nop 0")
e(f"v_sqrt_f32 v{vT0}, v{vT0}")
e(f"v_sqrt_f32 v{vT1}, v{vT1}")
e(f"v_add_f32 v{vT0}, 0x358637bd, v{vT0}")
e(f"v_add_f32 v{vT1}, 0x358637bd, v{vT1}")
e(f"v_rcp_f32 v{vT0}, v{vT0}")
e(f"v_rcp_f32 v{vT1}, v{vT1}")
e(f"v_mul_f32 v{vT2}, v{vT0}, v{vTL}")
e(f"v_mul_f32 v{vT4}, v{vT1}, v{vTL}")
scale_pack(SB, 4, vT2, SA+8)
e(f"ds_write_b128 v{vQW}, {vr(SA+8,4)}")
scale_pack(SB+8, 4, vT4, SA+12)
e(f"ds_write_b128 v{vQW}, {vr(SA+12,4)} offset:256")
zero(range(SB+8, SB+16))
stamp(3)
e("s_waitcnt lgkmcnt(0)")
e("s_barrier")
e(f"ds_read_b128 {vr(QA,4)}, v{vT3}")
e(f"ds_read_b128 {vr(QA+4,4)}, v{vT3} offset:1088")
c("fast path check: |t| <= 16")
e(f"s_and_b32 s{sTMP}, s{sT}, 0x7fffffff")
e(f"s_cmp_le_u32 s{sTMP}, 0x41800000")
e("s_cbranch_scc0 L_maxpass")
e("L_start:")
rdK(0)
e(f"ds_read_b128 {vr(QB,4)}, v{vQR}")
e(f"ds_read_b128 {vr(QB+4,4)}, v{vQR} offset:1088")
rdV(VF0, 0, 0)
stamp(5)
e("s_waitcnt lgkmcnt(4)")
for s in qk(SA, QA, CA): e(s)
e("s_waitcnt lgkmcnt(2)")
e("s_nop 7")
e("s_nop 3")
stamp(6)
e(".p2align 6")
e("L_stage:")
for kt in range(4):
    slotA(kt)
    if kt == 3:
        e(f"s_cmp_eq_u32 s{sSTG}, 7")
        e("s_cbranch_scc1 L_last")
    slotB(kt)
    if kt == BARAT: e("s_barrier")
e(f"s_add_u32 s{sSTG}, s{sSTG}, 1")
e(f"s_add_u32 s{sSLOT}, s{sSLOT}, 32768")
e(f"s_and_b32 s{sSLOT}, s{sSLOT}, 0x1ffff")
e("s_branch L_stage")
e("L_last:")
slotB(3, last=True)
e(f"v_xor_b32 v{vT0}, 0x8000, v{vRED}")
e("s_waitcnt lgkmcnt(0)")
e(pv(OB, VF1, SB+8))
e(sm(LB, SB+8))
stamp(16)
e("s_barrier")
e(f"ds_read_b32 v{LA}, v{vT0} offset:4096")
for j in range(4): e(f"ds_read_b128 {vr(OA+4*j,4)}, v{vT0} offset:{1024*j}")
e("s_nop 3")
e("s_waitcnt lgkmcnt(4)")
e(f"v_add_f32 v{LA}, v{LA}, v{LB}")
e(f"v_rcp_f32 v{vT2}, v{LA}")
e("s_nop 0")
e(f"v_mov_b32 v{vT1}, v{vT2}")
PKo = SA
for j in range(4):
    e(f"s_waitcnt lgkmcnt({3-j})")
    for i in range(2):
        r = 4*j + 2*i
        e(f"v_pk_add_f32 {vr(OA+r,2)}, {vr(OA+r,2)}, {vr(OB+r,2)}")
    if j == 0: e(f"v_permlane32_swap_b32 v{vT2}, v{vT1}")
for i in range(8):
    e(f"v_pk_mul_f32 {vr(OA+2*i,2)}, {vr(OA+2*i,2)}, {vr(vT2,2)} op_sel_hi:[1,0]")
for i in range(8):
    e(f"v_cvt_pk_bf16_f32 v{PKo+i}, v{OA+2*i}, v{OA+2*i+1}")
    if i == 5:
        e(f"v_permlane32_swap_b32 v{PKo+0}, v{PKo+2}")
        e(f"v_permlane32_swap_b32 v{PKo+1}, v{PKo+3}")
e(f"buffer_store_dwordx4 {vr(PKo,4)}, v{vOUT}, s[{sO}:{sO+3}], s{sQOFF} offen {STFLAGS}")
e("s_nop 0")
e(f"v_permlane32_swap_b32 v{PKo+4}, v{PKo+6}")
e(f"v_permlane32_swap_b32 v{PKo+5}, v{PKo+7}")
e("s_nop 1")
e(f"buffer_store_dwordx4 {vr(PKo+4,4)}, v{vOUT}, s[{sO}:{sO+3}], s{sQOFF} offen offset:32 {STFLAGS}")
if STAMP:
    stamp(17)
    e("s_waitcnt vmcnt(0)")
    stamp(18)
    st_flush(sWAVE)
e("L_end:")
e("s_endpgm")

c("|t| large (or NaN): find the true row max of the logits first, then run the main loop with C = -max")
e("L_maxpass:")
e(f"ds_read_b128 {vr(QB,4)}, v{vQR}")
e(f"ds_read_b128 {vr(QB+4,4)}, v{vQR} offset:1088")
c("lane (key=l&31,h=l>>5): frag i = bytes key*64 + i*32 + h*16")
e(f"s_mov_b32 s{sTMP}, s{sHEAD}")
e(f"s_mov_b32 s{sTMP2}, 0")
e(f"v_mov_b32 v{vT3}, 0xff800000")
e(f"v_mov_b32 v{vT4}, 0xff800000")
e("s_waitcnt lgkmcnt(0)")
e("L_maxloop:")
e(f"buffer_load_dwordx4 {vr(SB,4)}, v{vOUT}, s[{sK}:{sK+3}], s{sTMP} offen")
e(f"buffer_load_dwordx4 {vr(SB+4,4)}, v{vOUT}, s[{sK}:{sK+3}], s{sTMP} offen offset:32")
e("s_waitcnt vmcnt(0)")
unpack(SB, OA)
dots(vT0, SB, 8)
e("s_nop 2")
e(f"v_mov_b32 v{vT1}, v{vT0}"); e("s_nop 1")
e(f"v_permlane32_swap_b32 v{vT0}, v{vT1}"); e("s_nop 1")
e(f"v_add_f32 v{vT0}, v{vT0}, v{vT1}")
e(f"v_sqrt_f32 v{vT0}, v{vT0}"); e("s_nop 0")
e(f"v_add_f32 v{vT0}, 0x358637bd, v{vT0}")
e(f"v_rcp_f32 v{vT2}, v{vT0}"); e("s_nop 0")
scale_pack(OA, 8, vT2, OB)
e("s_nop 1")
for S, Q in ((CA, QA), (CB, QB)):
    e(f"v_mfma_f32_32x32x16_bf16 {vr(S,16)}, {vr(OB,4)}, {vr(Q,4)}, 0")
    e(f"v_mfma_f32_32x32x16_bf16 {vr(S,16)}, {vr(OB+4,4)}, {vr(Q+4,4)}, {vr(S,16)}")
e("s_nop 15")
for S, M in ((CA, vT3), (CB, vT4)):
    for j in range(8): e(f"v_max3_f32 v{M}, v{S+2*j}, v{S+2*j+1}, v{M}")
e(f"s_add_u32 s{sTMP}, s{sTMP}, 2048")
e(f"s_add_u32 s{sTMP2}, s{sTMP2}, 1")
e(f"s_cmp_lt_u32 s{sTMP2}, 64")
e("s_cbranch_scc1 L_maxloop")
for C, M in ((CA, vT3), (CB, vT4)):
    e(f"v_mov_b32 v{vT0}, v{M}")
    e("s_nop 1")
    e(f"v_permlane32_swap_b32 v{vT0}, v{M}")
    e("s_nop 1")
    e(f"v_max_f32 v{M}, v{M}, v{vT0}")
    e(f"v_xor_b32 v{C}, 0x80000000, v{M}")
    for j in range(1, 16): e(f"v_mov_b32 v{C+j}, v{C}")
zero(list(range(OA, OA+16)) + list(range(OB, OB+16)))
e("s_branch L_start")

nv = max(136, (NV + 7) // 8 * 8)
src = HEADER + f"; @launch grid=(256,1,1) block=(768,1,1) lds={LDS_TOTAL}\n" + f""".amdgcn_target "amdgcn-amd-amdhsa--gfx950"
.text
.globl {NAME}
.p2align 8
.type {NAME},@function
""" + "\n".join(L) + f"""
.section .rodata,"a"
.p2align 6
.amdhsa_kernel {NAME}
  .amdhsa_next_free_vgpr {nv}
  .amdhsa_next_free_sgpr 72
  .amdhsa_accum_offset {nv}
  .amdhsa_group_segment_fixed_size 0
  .amdhsa_kernarg_size 56
  .amdhsa_user_sgpr_count 2
  .amdhsa_user_sgpr_kernarg_segment_ptr 1
  .amdhsa_system_sgpr_workgroup_id_x 1
.end_amdhsa_kernel
"""
open(sys.argv[1], "w").write(src)
print("vgprs", NV, "->", nv)
```

```python
import sys
OPT = dict(a.split("=") for a in sys.argv[2:] if "=" in a)
def opt(name, default): return type(default)(OPT.get(name, default))
STAMP = opt("stamp", 0)
PRIO = OPT.get("prio", "3210")
PPRIO = opt("pprio", 3)
ROT = opt("rot", 1)
CZERO = opt("czero", 0)
STFLAGS = OPT.get("stflags", "").replace("+", " ")
QFLAGS = OPT.get("qflags", "nt").replace("+", " ").replace("none", "")
KFLAGS = OPT.get("kflags", "").replace("+", " ")
VFLAGS = OPT.get("vflags", "").replace("+", " ")
BARAT = opt("barat", 2)

HEADER = open("standalone__qk_norm__prompt.s.ref").read().split("; Override launch")[0]
NAME = "standalone__qk_norm__prompt_kernel"
L = []
def e(s=""): L.append("    " + s if s and not s.endswith(":") else s)
def c(s): L.append("    ; " + s)

class VA:
    def __init__(s, n=1): s.n = n
    def get(s, k=1, al=1):
        s.n = (s.n + al - 1) // al * al
        b = s.n; s.n += k; return b
def vr(b, n): return f"v[{b}:{b+n-1}]"
va = VA()
vLANE = va.get(); vG16 = va.get(); vT0 = va.get(); vT1 = va.get(); vT3 = va.get(); vT2 = va.get(2, 2); vT4 = va.get(2, 2)
vST = va.get(); vST2 = va.get()
UA = va.get(8, 4)
base = va.n
vKR = va.get(); vVR = va.get(); vKRl = va.get(); vVRl = va.get(); vIDX = va.get(); vTL = va.get(); vRED = va.get(); vOUT = va.get()
vQR = va.get(); vQW = va.get()
KF = UA
ONES = va.get(4, 4)
QA = va.get(8, 4); QB = va.get(8, 4)
VF0 = va.get(4, 4); VF1 = va.get(4, 4)
LA = va.get(4, 4); LB = va.get(4, 4)
SA = va.get(16, 4); SB = va.get(16, 4)
OA = va.get(16, 4); OB = va.get(16, 4)
CA = va.get(16, 4); CB = va.get(16, 4)
NV = va.n
vp = VA(base)
vG64 = vp.get(); vKWl = vp.get(); vKW = vp.get()
RAW = vp.get(16, 4); UNP = vp.get(32, 4); PK = vp.get(16, 4)
assert vp.n <= NV and NV <= 168

sQ, sK, sV, sO = 16, 20, 24, 28
sHEAD = 32; sPART = 33; sWAVE = 34; sSTG = 35; sT = 36; sGOFF = 37; sSLOT = 38
sTMP = 40; sTMP2 = 41; sW = 42; sCH = 43; sM0V = 44; sQOFF = 45
LDS_Q = 131072; QSTR = 2176; LDS_TOTAL = LDS_Q + 8 * QSTR

def st_issue(force=False):
    if STAMP == 1 or (STAMP and force):
        e("s_memtime s[52:53]"); e("s_memrealtime s[54:55]")
def st_put(lane):
    if STAMP == 1 or (STAMP and lane in (0, 18)):
        e(f"v_writelane_b32 v{vST}, s52, {lane}"); e(f"v_writelane_b32 v{vST2}, s54, {lane}")
def stamp(lane):
    if STAMP == 1 or (STAMP and lane == 18):
        st_issue(True); e("s_waitcnt lgkmcnt(0)"); st_put(lane)
def st_flush(slot_sgpr):
    if STAMP:
        e(f"s_mul_i32 s56, s2, 12"); e(f"s_add_u32 s56, s56, s{slot_sgpr}"); e(f"s_lshl_b32 s56, s56, 9")
        e(f"v_lshlrev_b32 v{vT0}, 2, v{vLANE}")
        e(f"buffer_store_dword v{vST}, v{vT0}, s[48:51], s56 offen")
        e(f"buffer_store_dword v{vST2}, v{vT0}, s[48:51], s56 offen offset:256")

def unpack(raw, dst):
    e(f"v_mfma_f32_32x32x16_bf16 {vr(dst,16)}, {vr(UA,4)}, {vr(raw,4)}, 0")
    e(f"v_mfma_f32_32x32x16_bf16 {vr(dst,16)}, {vr(UA+4,4)}, {vr(raw+4,4)}, {vr(dst,16)}")
def dots(acc, raw, n):
    e(f"v_dot2_f32_bf16 v{acc}, v{raw}, v{raw}, 0")
    for j in range(1, n): e(f"v_dot2_f32_bf16 v{acc}, v{raw+j}, v{raw+j}, v{acc}")
def scale_pack(unp, n, sc, pk):
    for j in range(n): e(f"v_pk_mul_f32 {vr(unp+2*j,2)}, {vr(unp+2*j,2)}, {vr(sc,2)} op_sel_hi:[1,0]")
    for j in range(n): e(f"v_cvt_pk_bf16_f32 v{pk+j}, v{unp+2*j}, v{unp+2*j+1}")
def zero(regs):
    for r in list(regs)[::2]: e(f"v_mov_b64 {vr(r,2)}, 0")

def qk(S, Q, C):
    return [f"v_mfma_f32_32x32x16_bf16 {vr(S,16)}, {vr(KF,4)}, {vr(Q,4)}, " + ("0" if CZERO else vr(C,16)),
            f"v_mfma_f32_32x32x16_bf16 {vr(S,16)}, {vr(KF+4,4)}, {vr(Q+4,4)}, {vr(S,16)}"]
def pv(O, VF, S): return f"v_smfmac_f32_32x32x32_bf16 {vr(O,16)}, {vr(VF,4)}, {vr(S,8)}, v{vIDX}"
def sm(Lr, S): return f"v_smfmac_f32_16x16x64_bf16 {vr(Lr,4)}, {vr(ONES,4)}, {vr(S,8)}, v{vIDX}"
def ex(S, a, b):
    for j in range(a, b): e(f"v_exp_f32 v{S+j}, v{S+j}")
def rdK(t):
    e(f"ds_read_b128 {vr(KF,4)}, v{vKR} offset:{t*2048}")
    e(f"ds_read_b128 {vr(KF+4,4)}, v{vKR} offset:{t*2048+1024}")
def rdV(VF, t, half):
    e(f"ds_read_b64_tr_b16 {vr(VF,2)}, v{vVR} offset:{t*2048+half*1024}")
    e(f"ds_read_b64_tr_b16 {vr(VF+2,2)}, v{vVR} offset:{t*2048+half*1024+256}")

def slotA(kt):
    c(f"--- slot A kt={kt}")
    if PRIO != "none" and (kt == 0 or PRIO[kt] != PRIO[kt-1]): e(f"s_setprio {PRIO[kt]}")
    q = qk(SB, QB, CB)
    ex(SA, 0, 2); e(pv(OB, VF1, SB+8)); ex(SA, 2, 5); e(sm(LB, SB+8))
    rdV(VF1, kt, 1)
    ex(SA, 5, 7); e(q[0]); ex(SA, 7, 10); e(q[1])
    if kt == 3: e(f"v_add_u32 v{vKR}, s{sSLOT}, v{vKRl}")
    rdK((kt + 1) & 3)
    ex(SA, 10, 13)
    e("s_waitcnt lgkmcnt(4)")
    e(pv(OA, VF0, SA)); ex(SA, 13, 16); e(sm(LA, SA))
def slotB(kt, last=False):
    c(f"--- slot B kt={kt}" + (" (last)" if last else ""))
    q = qk(SA, QA, CA)
    ex(SB, 0, 2)
    e("s_waitcnt lgkmcnt(2)")
    if kt == 3: st_issue()
    e(pv(OA, VF1, SA+8)); ex(SB, 2, 5); e(sm(LA, SA+8)); ex(SB, 5, 7)
    if not last or STAMP == 1: e("s_waitcnt lgkmcnt(0)")
    if kt == 3 and STAMP == 1:
        e(f"s_add_u32 s56, s{sSTG}, 8"); e(f"s_mov_b32 m0, s56"); st_put("m0")
    if last:
        ex(SB, 7, 10)
        e(pv(OB, VF0, SB))
        ex(SB, 10, 12)
        c("tile A is complete: hand its partial sums to the partner wave")
        for j in range(4): e(f"ds_write_b128 v{vRED}, {vr(OA+4*j,4)} offset:{1024*j}")
        e(f"ds_write_b32 v{vRED}, v{LA} offset:4096")
        ex(SB, 12, 13)
        e(sm(LB, SB))
        ex(SB, 13, 16)
        return
    e(q[0]); ex(SB, 7, 10); e(q[1])
    if kt == 3: e(f"v_add_u32 v{vVR}, s{sSLOT}, v{vVRl}")
    ex(SB, 10, 13)
    e(pv(OB, VF0, SB))
    rdV(VF0, (kt + 1) & 3, 0)
    ex(SB, 13, 16); e(sm(LB, SB))

def ua_consts():
    c("unpack selection matrices: lane (m=l&31,hA=l>>5): A_i has 1.0 at e=(m&3)+4*((m>>3)&1) iff (m>>4)==i and ((m>>2)&1)==hA")
    e(f"v_bfe_u32 v{vT0}, v{vLANE}, 2, 1")
    e(f"v_lshrrev_b32 v{vT1}, 5, v{vLANE}")
    e(f"v_cmp_eq_u32 vcc, v{vT0}, v{vT1}")
    e(f"v_and_b32 v{vT0}, 1, v{vLANE}")
    e(f"v_lshlrev_b32 v{vT0}, 4, v{vT0}")
    e(f"v_mov_b32 v{vT1}, 0x3f80")
    e(f"v_lshlrev_b32 v{vT1}, v{vT0}, v{vT1}")
    e(f"v_cndmask_b32 v{vT1}, 0, v{vT1}, vcc")
    e(f"v_bfe_u32 v{vT0}, v{vLANE}, 1, 1")
    e(f"v_bfe_u32 v{vT2}, v{vLANE}, 3, 2")
    e(f"v_lshl_add_u32 v{vT0}, v{vT2}, 1, v{vT0}")
    for r in range(8):
        e(f"v_cmp_eq_u32 vcc, {r}, v{vT0}")
        e("s_nop 1")
        e(f"v_cndmask_b32 v{UA+r}, 0, v{vT1}, vcc")

e(f"{NAME}:")
e("s_load_dwordx8 s[4:11], s[0:1], 0")
e("s_load_dwordx2 s[12:13], s[0:1], 32")
if STAMP:
    st_issue(True)
    e("s_load_dwordx2 s[48:49], s[0:1], 48")
    e("s_mov_b32 s50, 0x200000"); e("s_mov_b32 s51, 0x00020000")
e("s_cmp_ge_u32 s2, 256")
e("s_cbranch_scc1 L_end")
c("head = (wg&7)*4 + ((wg>>3)&3), part = wg>>5")
e(f"v_lshrrev_b32 v{vT0}, 6, v0")
e(f"v_and_b32 v{vLANE}, 63, v0")
e(f"v_readfirstlane_b32 s{sWAVE}, v{vT0}")
e("s_and_b32 s3, s2, 7")
e("s_lshl_b32 s3, s3, 2")
e(f"s_bfe_u32 s{sTMP}, s2, 0x20003")
e(f"s_add_u32 s3, s3, s{sTMP}")
e(f"s_lshl_b32 s{sHEAD}, s3, 17")
e(f"v_lshlrev_b32 v{vG16}, 4, v{vLANE}")
for s in (sQ, sK, sV, sO):
    e(f"s_mov_b32 s{s+2}, 0x400000")
    e(f"s_mov_b32 s{s+3}, 0x00020000")
e(f"s_cmp_ge_u32 s{sWAVE}, 4")
e("s_cbranch_scc1 L_consumer")

c("===== producer waves 0..3: K tiles 2w,2w+1 and V tiles 2w,2w+1 of every chunk =====")
e(f"s_setprio {PPRIO}")
e(f"s_lshl_b32 s{sW}, s{sWAVE}, 12")
e(f"s_add_u32 s{sHEAD}, s{sHEAD}, s{sW}")
if ROT == 0: e(f"s_mov_b32 s{sCH}, 0")
else:
    e(f"s_and_b32 s{sCH}, s3, 7"); e(f"s_lshl_b32 s{sCH}, s{sCH}, 14")
e(f"s_add_u32 s{sGOFF}, s{sHEAD}, s{sCH}")
e(f"s_add_u32 s{sM0V}, s{sW}, 16384")
e(f"v_lshlrev_b32 v{vG64}, 6, v{vLANE}")
e(f"s_mov_b32 m0, s{sM0V}")
e("s_waitcnt lgkmcnt(0)")
if STAMP:
    e(f"v_mov_b32 v{vST}, 0"); e(f"v_mov_b32 v{vST2}, 0"); st_put(0)
e(f"s_mov_b64 s[{sK}:{sK+1}], s[6:7]")
e(f"s_mov_b64 s[{sV}:{sV+1}], s[8:9]")
def loadK():
    for j in range(4): e(f"buffer_load_dwordx4 {vr(RAW+4*j,4)}, v{vG64}, s[{sK}:{sK+3}], s{sGOFF} offen offset:{16*j} {KFLAGS}")
def loadV():
    for j in range(4): e(f"buffer_load_dwordx4 v{vG16}, s[{sV}:{sV+3}], s{sGOFF} offen offset:{1024*j} {VFLAGS} lds")
loadK(); loadV()
ua_consts()
c("K' write address: tile (l>>5)*2048 + key*16 (+ chunk c*512)")
e(f"v_and_b32 v{vT0}, 31, v{vLANE}")
e(f"v_lshlrev_b32 v{vT0}, 4, v{vT0}")
e(f"v_lshrrev_b32 v{vT1}, 5, v{vLANE}")
e(f"v_lshl_add_u32 v{vT0}, v{vT1}, 11, v{vT0}")
e(f"v_add_u32 v{vKWl}, s{sW}, v{vT0}")
e(f"s_mov_b32 s{sSTG}, 0")
e(f"s_mov_b32 s{sSLOT}, 0")
e("L_ploop:")
e("s_waitcnt vmcnt(4)")
if STAMP == 1:
    st_issue(); e("s_waitcnt lgkmcnt(0)"); e(f"s_add_u32 s56, s{sSTG}, 20"); e("s_mov_b32 m0, s56"); st_put("m0")
PMODE = opt("pmode", 1)
def salu_block():
    e(f"v_add_u32 v{vKW}, s{sSLOT}, v{vKWl}")
    e(f"s_add_u32 s{sSLOT}, s{sSLOT}, 32768")
    e(f"s_and_b32 s{sSLOT}, s{sSLOT}, 0x1ffff")
    e(f"s_add_u32 s{sCH}, s{sCH}, 16384")
    e(f"s_and_b32 s{sCH}, s{sCH}, 0x1ffff")
    e(f"s_add_u32 s{sGOFF}, s{sHEAD}, s{sCH}")
    e(f"s_add_u32 s{sTMP}, s{sM0V}, s{sSLOT}")
    e(f"s_mov_b32 m0, s{sTMP}")
def scal():
    e(f"v_sqrt_f32 v{vT0}, v{vT0}"); e("s_nop 0")
    e(f"v_add_f32 v{vT0}, 0x358637bd, v{vT0}")
    e(f"v_rcp_f32 v{vT2}, v{vT0}"); e("s_nop 0")
if PMODE == 0:
    unpack(RAW, UNP); unpack(RAW+8, UNP+16)
    dots(vT0, RAW, 16)
    salu_block(); scal()
    scale_pack(UNP, 16, vT2, PK)
elif PMODE == 1:
    acc = [vT0, vT1, vT4, vT4+1]
    for j in range(16):
        a_ = acc[j & 3]
        e(f"v_dot2_f32_bf16 v{a_}, v{RAW+j}, v{RAW+j}, " + ("0" if j < 4 else f"v{a_}"))
    unpack(RAW, UNP); unpack(RAW+8, UNP+16)
    e(f"v_add_f32 v{vT0}, v{vT0}, v{vT1}")
    e(f"v_add3_f32 v{vT0}, v{vT0}, v{vT4}, v{vT4+1}") if False else (e(f"v_add_f32 v{vT4}, v{vT4}, v{vT4+1}"), e(f"v_add_f32 v{vT0}, v{vT0}, v{vT4}"))
    scal(); salu_block()
    scale_pack(UNP, 16, vT2, PK)
else:
    unpack(RAW, UNP); unpack(RAW+8, UNP+16)
    salu_block(); e("s_nop 3")
    acc = [vT0, vT1, vT4, vT4+1]
    for j in range(32):
        a_ = acc[j & 3]
        e(f"v_mul_f32 v{a_}, v{UNP+j}, v{UNP+j}" if j < 4 else f"v_fmac_f32 v{a_}, v{UNP+j}, v{UNP+j}")
    e(f"v_add_f32 v{vT0}, v{vT0}, v{vT1}"); e(f"v_add_f32 v{vT4}, v{vT4}, v{vT4+1}"); e(f"v_add_f32 v{vT0}, v{vT0}, v{vT4}")
    scal()
    for j in range(32): e(f"v_mul_f32 v{UNP+j}, v{UNP+j}, v{vT2}")
    for j in range(16): e(f"v_cvt_pk_bf16_f32 v{PK+j}, v{UNP+2*j}, v{UNP+2*j+1}")
for j in range(4): e(f"ds_write_b128 v{vKW}, {vr(PK+4*j,4)} offset:{512*j}")
e(f"s_cmp_eq_u32 s{sSTG}, {opt('nst', 8)-1}")
e("s_cbranch_scc1 L_plast")
loadK(); loadV()
e(f"s_add_u32 s{sSTG}, s{sSTG}, 1")
e("s_waitcnt vmcnt(8) lgkmcnt(0)")
if STAMP == 1:
    st_issue(); e("s_waitcnt lgkmcnt(0)"); e(f"s_add_u32 s56, s{sSTG}, 7"); e("s_mov_b32 m0, s56"); st_put("m0")
e("s_barrier")
e("s_branch L_ploop")
e("L_plast:")
e("s_waitcnt vmcnt(0) lgkmcnt(0)")
e("s_barrier")
if STAMP:
    stamp(18)
    e(f"s_add_u32 s{sTMP}, s{sWAVE}, 8")
    st_flush(sTMP)
e("s_endpgm")

c("===== consumer waves 4..11 =====")
e("L_consumer:")
e(f"s_sub_u32 s{sWAVE}, s{sWAVE}, 4")
e(f"s_lshl_b32 s{sW}, s{sWAVE}, 11")
e(f"s_lshr_b32 s{sPART}, s2, 5")
e(f"s_lshl_b32 s{sTMP}, s{sPART}, 14")
e(f"s_add_u32 s{sQOFF}, s{sHEAD}, s{sTMP}")
e(f"s_add_u32 s{sQOFF}, s{sQOFF}, s{sW}")
e(f"s_lshr_b32 s{sTMP2}, s3, 1")
e(f"s_lshl_b32 s{sTMP2}, s{sTMP2}, 2")
e("s_waitcnt lgkmcnt(0)")
if STAMP:
    e(f"v_mov_b32 v{vST}, 0"); e(f"v_mov_b32 v{vST2}, 0"); st_put(0)
e(f"s_mov_b64 s[{sQ}:{sQ+1}], s[4:5]")
e(f"buffer_load_dwordx4 {vr(SA,4)}, v{vG16}, s[{sQ}:{sQ+3}], s{sQOFF} offen {QFLAGS}")
e(f"buffer_load_dwordx4 {vr(SA+4,4)}, v{vG16}, s[{sQ}:{sQ+3}], s{sQOFF} offen offset:1024 {QFLAGS}")
e(f"s_load_dword s{sT}, s[10:11], s{sTMP2}")
e(f"s_mov_b64 s[{sK}:{sK+1}], s[6:7]")
e(f"s_mov_b64 s[{sO}:{sO+1}], s[12:13]")
ua_consts()
c("K' read: group*8192 + lane*16")
e(f"s_and_b32 s{sTMP}, s{sWAVE}, 4")
e(f"s_lshl_b32 s{sTMP}, s{sTMP}, 11")
e(f"v_add_u32 v{vKRl}, s{sTMP}, v{vG16}")
c("V read: (8*hA + (i>>2))*64 + dhalf*32 + (i&3)*8 + 16384 + group*8192")
e(f"v_lshrrev_b32 v{vT0}, 5, v{vLANE}")
e(f"v_lshlrev_b32 v{vT0}, 9, v{vT0}")
e(f"v_bfe_u32 v{vT1}, v{vLANE}, 2, 2")
e(f"v_lshl_add_u32 v{vT0}, v{vT1}, 6, v{vT0}")
e(f"v_bfe_u32 v{vT1}, v{vLANE}, 4, 1")
e(f"v_lshl_add_u32 v{vT0}, v{vT1}, 5, v{vT0}")
e(f"v_and_b32 v{vT1}, 3, v{vLANE}")
e(f"v_lshl_add_u32 v{vT0}, v{vT1}, 3, v{vT0}")
e(f"s_add_u32 s{sTMP}, s{sTMP}, 16384")
e(f"v_add_u32 v{vVRl}, s{sTMP}, v{vT0}")
e(f"v_mov_b32 v{vKR}, v{vKRl}")
e(f"v_mov_b32 v{vVR}, v{vVRl}")
e(f"v_mov_b32 v{vIDX}, 0xdddddddd")
c("Q' write: LDS_Q + w*QSTR + (l&3)*544 + (l>>2)*16 ; read: LDS_Q + (w&3)*QSTR + (l>>5)*544 + (l&31)*16")
e(f"s_mul_i32 s{sTMP}, s{sWAVE}, {QSTR}")
e(f"s_add_u32 s{sTMP}, s{sTMP}, {LDS_Q}")
e(f"v_mul_u32_u24 v{vT0}, 544, v{vT1}")
e(f"v_lshrrev_b32 v{vT1}, 2, v{vLANE}")
e(f"v_lshl_add_u32 v{vT0}, v{vT1}, 4, v{vT0}")
e(f"v_add_u32 v{vQW}, s{sTMP}, v{vT0}")
e(f"v_lshrrev_b32 v{vT1}, 5, v{vLANE}")
e(f"v_lshl_add_u32 v{vT0}, v{vT1}, 5, v{vG16}")
e(f"v_add_u32 v{vQR}, s{sTMP}, v{vT0}")
e(f"s_xor_b32 s{sTMP2}, s{sWAVE}, 4")
e(f"s_mul_i32 s{sTMP2}, s{sTMP2}, {QSTR}")
e(f"s_add_u32 s{sTMP2}, s{sTMP2}, {LDS_Q}")
e(f"v_add_u32 v{vT3}, s{sTMP2}, v{vT0}")
c("row-sum selector: only rows 0 (q 0..15) and 4 (q 16..31) carry ones")
e(f"v_and_b32 v{vT0}, 15, v{vLANE}")
e(f"v_mov_b32 v{vT1}, 0x3f803f80")
e(f"v_cmp_eq_u32 vcc, 0, v{vT0}")
e("s_nop 1")
e(f"v_cndmask_b32 v{ONES}, 0, v{vT1}, vcc")
e(f"v_cmp_eq_u32 vcc, 4, v{vT0}")
e(f"v_mov_b32 v{ONES+1}, v{ONES}")
e("s_nop 0")
e(f"v_cndmask_b32 v{ONES+2}, 0, v{vT1}, vcc")
e(f"v_mov_b32 v{ONES+3}, v{ONES+2}")
c("epilogue addresses")
e(f"s_lshl_b32 s{sTMP}, s{sWAVE}, 13")
e(f"s_xor_b32 s{sTMP}, s{sTMP}, 0x8000")
e(f"v_add_u32 v{vRED}, s{sTMP}, v{vG16}")
e(f"v_and_b32 v{vT0}, 31, v{vLANE}")
e(f"v_lshlrev_b32 v{vT0}, 6, v{vT0}")
e(f"v_lshrrev_b32 v{vT1}, 5, v{vLANE}")
e(f"v_lshl_add_u32 v{vOUT}, v{vT1}, 4, v{vT0}")
zero(list(range(OA, OA+16)) + list(range(OB, OB+16)) + list(range(LA, LA+4)) + list(range(LB, LB+4)) + list(range(VF1, VF1+4)))
e("s_waitcnt lgkmcnt(0)")
e(f"s_lshl_b32 s{sTMP}, s{sT}, 16")
e(f"s_and_b32 s{sTMP2}, s{sT}, 0xffff0000")
e("s_bitcmp1_b32 s3, 0")
e(f"s_cselect_b32 s{sT}, s{sTMP2}, s{sTMP}")
e(f"v_mov_b32 v{vTL}, 0x3fb8aa3b")
e(f"v_mul_f32 v{vTL}, s{sT}, v{vTL}")
e(f"v_or_b32 v{CA}, 0x80000000, v{vTL}")
e(f"v_mov_b32 v{CA+1}, v{CA}")
for j in range(2, 32, 2): e(f"v_mov_b64 {vr(CA+j,2)}, {vr(CA,2)}")
e(f"s_mov_b32 s{sSTG}, 0")
e(f"s_mov_b32 s{sSLOT}, 32768")
stamp(1)
c("Q tile: rows 16j + (l>>2), 8 elements per lane and j")
e("s_waitcnt vmcnt(0)")
stamp(2)
unpack(SA, SB)
dots(vT0, SA, 4); dots(vT1, SA+4, 4)
e("s_nop 1")
for qp in ("[1,0,3,2]", "[2,3,0,1]"):
    e(f"v_add_f32_dpp v{vT0}, v{vT0}, v{vT0} quad_perm:{qp} row_mask:0xf bank_mask:0xf")
    e("s_nop 0")
    e(f"v_add_f32_dpp v{vT1}, v{vT1}, v{vT1} quad_perm:{qp} row_mask:0xf bank_mask:0xf")
    if qp == "[1,0,3,2]": e("s_nop 0")
e(f"v_sqrt_f32 v{vT0}, v{vT0}")
e(f"v_sqrt_f32 v{vT1}, v{vT1}")
e(f"v_add_f32 v{vT0}, 0x358637bd, v{vT0}")
e(f"v_add_f32 v{vT1}, 0x358637bd, v{vT1}")
e(f"v_rcp_f32 v{vT0}, v{vT0}")
e(f"v_rcp_f32 v{vT1}, v{vT1}")
e(f"v_mul_f32 v{vT2}, v{vT0}, v{vTL}")
e(f"v_mul_f32 v{vT4}, v{vT1}, v{vTL}")
scale_pack(SB, 4, vT2, SA+8)
e(f"ds_write_b128 v{vQW}, {vr(SA+8,4)}")
scale_pack(SB+8, 4, vT4, SA+12)
e(f"ds_write_b128 v{vQW}, {vr(SA+12,4)} offset:256")
zero(range(SB+8, SB+16))
stamp(3)
e("s_waitcnt lgkmcnt(0)")
e("s_barrier")
e(f"ds_read_b128 {vr(QA,4)}, v{vT3}")
e(f"ds_read_b128 {vr(QA+4,4)}, v{vT3} offset:1088")
c("fast path check: |t| <= 16")
e(f"s_and_b32 s{sTMP}, s{sT}, 0x7fffffff")
e(f"s_cmp_le_u32 s{sTMP}, 0x41800000")
e("s_cbranch_scc0 L_maxpass")
e("L_start:")
rdK(0)
e(f"ds_read_b128 {vr(QB,4)}, v{vQR}")
e(f"ds_read_b128 {vr(QB+4,4)}, v{vQR} offset:1088")
rdV(VF0, 0, 0)
stamp(5)
e("s_waitcnt lgkmcnt(4)")
for s in qk(SA, QA, CA): e(s)
e("s_waitcnt lgkmcnt(2)")
e("s_nop 7")
e("s_nop 3")
stamp(6)
e(".p2align 6")
e("L_stage:")
for kt in range(4):
    slotA(kt)
    if kt == 3:
        e(f"s_cmp_eq_u32 s{sSTG}, {opt('nst', 8)-1}")
        e("s_cbranch_scc1 L_last")
    slotB(kt)
    if kt == BARAT: e("s_barrier")
e(f"s_add_u32 s{sSTG}, s{sSTG}, 1")
e(f"s_add_u32 s{sSLOT}, s{sSLOT}, 32768")
e(f"s_and_b32 s{sSLOT}, s{sSLOT}, 0x1ffff")
e("s_branch L_stage")
e("L_last:")
slotB(3, last=True)
e(f"v_xor_b32 v{vT0}, 0x8000, v{vRED}")
e("s_waitcnt lgkmcnt(0)")
e(pv(OB, VF1, SB+8))
e(sm(LB, SB+8))
stamp(16)
e("s_barrier")
e(f"ds_read_b32 v{LA}, v{vT0} offset:4096")
for j in range(4): e(f"ds_read_b128 {vr(OA+4*j,4)}, v{vT0} offset:{1024*j}")
e("s_nop 3")
e("s_waitcnt lgkmcnt(4)")
e(f"v_add_f32 v{LA}, v{LA}, v{LB}")
e(f"v_rcp_f32 v{vT2}, v{LA}")
e("s_nop 0")
e(f"v_mov_b32 v{vT1}, v{vT2}")
PKo = SA
for j in range(4):
    e(f"s_waitcnt lgkmcnt({3-j})")
    for i in range(2):
        r = 4*j + 2*i
        e(f"v_pk_add_f32 {vr(OA+r,2)}, {vr(OA+r,2)}, {vr(OB+r,2)}")
    if j == 0: e(f"v_permlane32_swap_b32 v{vT2}, v{vT1}")
for i in range(8):
    e(f"v_pk_mul_f32 {vr(OA+2*i,2)}, {vr(OA+2*i,2)}, {vr(vT2,2)} op_sel_hi:[1,0]")
for i in range(8):
    e(f"v_cvt_pk_bf16_f32 v{PKo+i}, v{OA+2*i}, v{OA+2*i+1}")
    if i == 5:
        e(f"v_permlane32_swap_b32 v{PKo+0}, v{PKo+2}")
        e(f"v_permlane32_swap_b32 v{PKo+1}, v{PKo+3}")
e(f"buffer_store_dwordx4 {vr(PKo,4)}, v{vOUT}, s[{sO}:{sO+3}], s{sQOFF} offen {STFLAGS}")
e("s_nop 0")
e(f"v_permlane32_swap_b32 v{PKo+4}, v{PKo+6}")
e(f"v_permlane32_swap_b32 v{PKo+5}, v{PKo+7}")
e("s_nop 1")
e(f"buffer_store_dwordx4 {vr(PKo+4,4)}, v{vOUT}, s[{sO}:{sO+3}], s{sQOFF} offen offset:32 {STFLAGS}")
if STAMP:
    stamp(17)
    e("s_waitcnt vmcnt(0)")
    stamp(18)
    st_flush(sWAVE)
e("L_end:")
e("s_endpgm")

c("|t| large (or NaN): find the true row max of the logits first, then run the main loop with C = -max")
e("L_maxpass:")
e(f"ds_read_b128 {vr(QB,4)}, v{vQR}")
e(f"ds_read_b128 {vr(QB+4,4)}, v{vQR} offset:1088")
c("lane (key=l&31,h=l>>5): frag i = bytes key*64 + i*32 + h*16")
e(f"s_mov_b32 s{sTMP}, s{sHEAD}")
e(f"s_mov_b32 s{sTMP2}, 0")
e(f"v_mov_b32 v{vT3}, 0xff800000")
e(f"v_mov_b32 v{vT4}, 0xff800000")
e("s_waitcnt lgkmcnt(0)")
e("L_maxloop:")
e(f"buffer_load_dwordx4 {vr(SB,4)}, v{vOUT}, s[{sK}:{sK+3}], s{sTMP} offen")
e(f"buffer_load_dwordx4 {vr(SB+4,4)}, v{vOUT}, s[{sK}:{sK+3}], s{sTMP} offen offset:32")
e("s_waitcnt vmcnt(0)")
unpack(SB, OA)
dots(vT0, SB, 8)
e("s_nop 2")
e(f"v_mov_b32 v{vT1}, v{vT0}"); e("s_nop 1")
e(f"v_permlane32_swap_b32 v{vT0}, v{vT1}"); e("s_nop 1")
e(f"v_add_f32 v{vT0}, v{vT0}, v{vT1}")
e(f"v_sqrt_f32 v{vT0}, v{vT0}"); e("s_nop 0")
e(f"v_add_f32 v{vT0}, 0x358637bd, v{vT0}")
e(f"v_rcp_f32 v{vT2}, v{vT0}"); e("s_nop 0")
scale_pack(OA, 8, vT2, OB)
e("s_nop 1")
for S, Q in ((CA, QA), (CB, QB)):
    e(f"v_mfma_f32_32x32x16_bf16 {vr(S,16)}, {vr(OB,4)}, {vr(Q,4)}, 0")
    e(f"v_mfma_f32_32x32x16_bf16 {vr(S,16)}, {vr(OB+4,4)}, {vr(Q+4,4)}, {vr(S,16)}")
e("s_nop 15")
for S, M in ((CA, vT3), (CB, vT4)):
    for j in range(8): e(f"v_max3_f32 v{M}, v{S+2*j}, v{S+2*j+1}, v{M}")
e(f"s_add_u32 s{sTMP}, s{sTMP}, 2048")
e(f"s_add_u32 s{sTMP2}, s{sTMP2}, 1")
e(f"s_cmp_lt_u32 s{sTMP2}, 64")
e("s_cbranch_scc1 L_maxloop")
for C, M in ((CA, vT3), (CB, vT4)):
    e(f"v_mov_b32 v{vT0}, v{M}")
    e("s_nop 1")
    e(f"v_permlane32_swap_b32 v{vT0}, v{M}")
    e("s_nop 1")
    e(f"v_max_f32 v{M}, v{M}, v{vT0}")
    e(f"v_xor_b32 v{C}, 0x80000000, v{M}")
    for j in range(1, 16): e(f"v_mov_b32 v{C+j}, v{C}")
zero(list(range(OA, OA+16)) + list(range(OB, OB+16)))
e("s_branch L_start")

nv = max(136, (NV + 7) // 8 * 8)
src = HEADER + f"; @launch grid=(256,1,1) block=(768,1,1) lds={LDS_TOTAL}\n" + f""".amdgcn_target "amdgcn-amd-amdhsa--gfx950"
.text
.globl {NAME}
.p2align 8
.type {NAME},@function
""" + "\n".join(L) + f"""
.section .rodata,"a"
.p2align 6
.amdhsa_kernel {NAME}
  .amdhsa_next_free_vgpr {nv}
  .amdhsa_next_free_sgpr 64
  .amdhsa_accum_offset {nv}
  .amdhsa_group_segment_fixed_size 0
  .amdhsa_kernarg_size 56
  .amdhsa_user_sgpr_count 2
  .amdhsa_user_sgpr_kernarg_segment_ptr 1
  .amdhsa_system_sgpr_workgroup_id_x 1
.end_amdhsa_kernel
"""
open(sys.argv[1], "w").write(src)
print("vgprs", NV, "->", nv)
```

```python
import sys
OPT = dict(a.split("=") for a in sys.argv[2:] if "=" in a)
def opt(name, default): return type(default)(OPT.get(name, default))
STAMP = opt("stamp", 0)
PRIO = OPT.get("prio", "2210")
COOP = opt("coop", 1)
NPOLL = opt("npoll", 8)
PAT = opt("pat", 0)
EARLY = opt("early", 1)
PUBFL = OPT.get("pubfl", "").replace("+", " ")
PPRIO = opt("pprio", 3)
ROT = opt("rot", 1)
CZERO = opt("czero", 0)
STFLAGS = OPT.get("stflags", "").replace("+", " ")
QFLAGS = OPT.get("qflags", "nt").replace("+", " ").replace("none", "")
KFLAGS = OPT.get("kflags", "").replace("+", " ")
VFLAGS = OPT.get("vflags", "").replace("+", " ")
BARAT = opt("barat", 2)

AMP = OPT.get("amp", "")
HEADER = open("standalone__qk_norm__prompt.s.ref").read().split("; Override launch")[0]
NAME = "standalone__qk_norm__prompt_kernel"
L = []
def e(s=""): L.append("    " + s if s and not s.endswith(":") else s)
def c(s): L.append("    ; " + s)

class VA:
    def __init__(s, n=1): s.n = n
    def get(s, k=1, al=1):
        s.n = (s.n + al - 1) // al * al
        b = s.n; s.n += k; return b
def vr(b, n): return f"v[{b}:{b+n-1}]"
va = VA()
vLANE = va.get(); vG16 = va.get(); vT0 = va.get(); vT1 = va.get(); vT3 = va.get(); vT2 = va.get(2, 2); vT4 = va.get(2, 2)
vST = va.get(); vST2 = va.get()
UA = va.get(8, 4)
base = va.n
vKR = va.get(); vVR = va.get(); vKRl = va.get(); vVRl = va.get(); vIDX = va.get(); vTL = va.get(); vRED = va.get(); vOUT = va.get()
vQR = va.get(); vQW = va.get()
KF = UA
ONES = va.get(4, 4)
QA = va.get(8, 4); QB = va.get(8, 4)
VF0 = va.get(4, 4); VF1 = va.get(4, 4)
LA = va.get(4, 4); LB = va.get(4, 4)
SA = va.get(16, 4); SB = va.get(16, 4)
OA = va.get(16, 4); OB = va.get(16, 4)
CA = va.get(16, 4); CB = va.get(16, 4)
NV = va.n
vp = VA(base)
vG64 = vp.get(); vKWl = vp.get(); vKW = vp.get()
vFA = vp.get(); vFL = vp.get(); vTAG = vp.get(); vTG2 = vp.get(2, 2)
RAW = vp.get(16, 4); RAW2 = vp.get(16, 4); UNP = vp.get(32, 4); PK = vp.get(16, 4)
assert vp.n <= NV and NV <= 168

sQ, sK, sV, sO = 16, 20, 24, 28
sHEAD = 32; sPART = 33; sWAVE = 34; sSTG = 35; sT = 36; sGOFF = 37; sSLOT = 38
sTMP = 40; sTMP2 = 41; sW = 42; sCH = 43; sM0V = 44; sQOFF = 45
sWS = 60; sDB = 64; sFLG = 46; sWOFF = 47; sCNT = 39; sFOFF = 57; sIDX = 58; sC0 = 59
LDS_Q = 131072; QSTR = 2176; LDS_TOTAL = LDS_Q + 8 * QSTR

def st_issue(force=False):
    if STAMP == 1 or (STAMP and force):
        e("s_memtime s[52:53]"); e("s_memrealtime s[54:55]")
def st_put(lane):
    if STAMP == 1 or (STAMP and lane in (0, 18)):
        e(f"v_writelane_b32 v{vST}, s52, {lane}"); e(f"v_writelane_b32 v{vST2}, s54, {lane}")
def stamp(lane):
    if STAMP == 1 or (STAMP and lane == 18):
        st_issue(True); e("s_waitcnt lgkmcnt(0)"); st_put(lane)
def st_flush(slot_sgpr):
    if STAMP:
        e(f"s_mul_i32 s56, s2, 12"); e(f"s_add_u32 s56, s56, s{slot_sgpr}"); e(f"s_lshl_b32 s56, s56, 9")
        e(f"v_lshlrev_b32 v{vT0}, 2, v{vLANE}")
        e(f"buffer_store_dword v{vST}, v{vT0}, s[48:51], s56 offen")
        e(f"buffer_store_dword v{vST2}, v{vT0}, s[48:51], s56 offen offset:256")

def unpack(raw, dst):
    e(f"v_mfma_f32_32x32x16_bf16 {vr(dst,16)}, {vr(UA,4)}, {vr(raw,4)}, 0")
    e(f"v_mfma_f32_32x32x16_bf16 {vr(dst,16)}, {vr(UA+4,4)}, {vr(raw+4,4)}, {vr(dst,16)}")
def dots(acc, raw, n):
    e(f"v_dot2_f32_bf16 v{acc}, v{raw}, v{raw}, 0")
    for j in range(1, n): e(f"v_dot2_f32_bf16 v{acc}, v{raw+j}, v{raw+j}, v{acc}")
def scale_pack(unp, n, sc, pk):
    for j in range(n): e(f"v_pk_mul_f32 {vr(unp+2*j,2)}, {vr(unp+2*j,2)}, {vr(sc,2)} op_sel_hi:[1,0]")
    for j in range(n): e(f"v_cvt_pk_bf16_f32 v{pk+j}, v{unp+2*j}, v{unp+2*j+1}")
def zero(regs):
    for r in list(regs)[::2]: e(f"v_mov_b64 {vr(r,2)}, 0")

def qk(S, Q, C):
    return [f"v_mfma_f32_32x32x16_bf16 {vr(S,16)}, {vr(KF,4)}, {vr(Q,4)}, " + ("0" if CZERO else vr(C,16)),
            f"v_mfma_f32_32x32x16_bf16 {vr(S,16)}, {vr(KF+4,4)}, {vr(Q+4,4)}, {vr(S,16)}"]
def pv(O, VF, S): return f"v_smfmac_f32_32x32x32_bf16 {vr(O,16)}, {vr(VF,4)}, {vr(S,8)}, v{vIDX}"
def sm(Lr, S): return f"v_smfmac_f32_16x16x64_bf16 {vr(Lr,4)}, {vr(ONES,4)}, {vr(S,8)}, v{vIDX}"
def ex(S, a, b):
    for j in range(a, b): e(f"v_exp_f32 v{S+j}, v{S+j}")
def rdK(t):
    e(f"ds_read_b128 {vr(KF,4)}, v{vKR} offset:{t*2048}")
    e(f"ds_read_b128 {vr(KF+4,4)}, v{vKR} offset:{t*2048+1024}")
def rdV(VF, t, half):
    e(f"ds_read_b64_tr_b16 {vr(VF,2)}, v{vVR} offset:{t*2048+half*1024}")
    e(f"ds_read_b64_tr_b16 {vr(VF+2,2)}, v{vVR} offset:{t*2048+half*1024+256}")

def slotA(kt):
    c(f"--- slot A kt={kt}")
    if PRIO != "none" and (kt == 0 or PRIO[kt] != PRIO[kt-1]): e(f"s_setprio {PRIO[kt]}")
    q = qk(SB, QB, CB)
    if PAT == 0:
        ex(SA, 0, 2); e(pv(OB, VF1, SB+8)); ex(SA, 2, 5); e(sm(LB, SB+8))
        rdV(VF1, kt, 1)
        ex(SA, 5, 7)
    else:
        ex(SA, 0, 2); e(sm(LB, SB+8)); ex(SA, 2, 4); e(pv(OB, VF1, SB+8))
        rdV(VF1, kt, 1)
        ex(SA, 4, 7)
    e(q[0]); ex(SA, 7, 10); e(q[1])
    if kt == 3: e(f"v_add_u32 v{vKR}, s{sSLOT}, v{vKRl}")
    rdK((kt + 1) & 3)
    ex(SA, 10, 13)
    if PAT == 0:
        e("s_waitcnt lgkmcnt(4)")
        e(pv(OA, VF0, SA)); ex(SA, 13, 16); e(sm(LA, SA))
    else:
        e(sm(LA, SA)); ex(SA, 13, 15)
        e("s_waitcnt lgkmcnt(4)")
        e(pv(OA, VF0, SA)); ex(SA, 15, 16)
def slotB(kt, last=False):
    c(f"--- slot B kt={kt}" + (" (last)" if last else ""))
    q = qk(SA, QA, CA)
    ex(SB, 0, 2)
    if PAT == 0 or last:
        e("s_waitcnt lgkmcnt(2)")
        if kt == 3: st_issue()
        e(pv(OA, VF1, SA+8)); ex(SB, 2, 5); e(sm(LA, SA+8)); ex(SB, 5, 7)
    else:
        e(sm(LA, SA+8)); ex(SB, 2, 4)
        e("s_waitcnt lgkmcnt(2)")
        if kt == 3: st_issue()
        e(pv(OA, VF1, SA+8)); ex(SB, 4, 7)
    if not last or STAMP == 1: e("s_waitcnt lgkmcnt(0)")
    if kt == 3 and STAMP == 1:
        e(f"s_add_u32 s56, s{sSTG}, 8"); e(f"s_mov_b32 m0, s56"); st_put("m0")
    if last:
        ex(SB, 7, 10)
        e(pv(OB, VF0, SB))
        ex(SB, 10, 12)
        c("tile A is complete: hand its partial sums to the partner wave")
        for j in range(4): e(f"ds_write_b128 v{vRED}, {vr(OA+4*j,4)} offset:{1024*j}")
        e(f"ds_write_b32 v{vRED}, v{LA} offset:4096")
        ex(SB, 12, 13)
        e(sm(LB, SB))
        ex(SB, 13, 16)
        return
    e(q[0]); ex(SB, 7, 10); e(q[1])
    if kt == 3: e(f"v_add_u32 v{vVR}, s{sSLOT}, v{vVRl}")
    ex(SB, 10, 13)
    if PAT == 0:
        e(pv(OB, VF0, SB))
        rdV(VF0, (kt + 1) & 3, 0)
        ex(SB, 13, 16); e(sm(LB, SB))
    else:
        e(sm(LB, SB)); ex(SB, 13, 15)
        e(pv(OB, VF0, SB))
        rdV(VF0, (kt + 1) & 3, 0)
        ex(SB, 15, 16)

def ua_consts():
    c("unpack selection matrices: lane (m=l&31,hA=l>>5): A_i has 1.0 at e=(m&3)+4*((m>>3)&1) iff (m>>4)==i and ((m>>2)&1)==hA")
    e(f"v_bfe_u32 v{vT0}, v{vLANE}, 2, 1")
    e(f"v_lshrrev_b32 v{vT1}, 5, v{vLANE}")
    e(f"v_cmp_eq_u32 vcc, v{vT0}, v{vT1}")
    e(f"v_and_b32 v{vT0}, 1, v{vLANE}")
    e(f"v_lshlrev_b32 v{vT0}, 4, v{vT0}")
    e(f"v_mov_b32 v{vT1}, 0x3f80")
    e(f"v_lshlrev_b32 v{vT1}, v{vT0}, v{vT1}")
    e(f"v_cndmask_b32 v{vT1}, 0, v{vT1}, vcc")
    e(f"v_bfe_u32 v{vT0}, v{vLANE}, 1, 1")
    e(f"v_bfe_u32 v{vT2}, v{vLANE}, 3, 2")
    e(f"v_lshl_add_u32 v{vT0}, v{vT2}, 1, v{vT0}")
    for r in range(8):
        e(f"v_cmp_eq_u32 vcc, {r}, v{vT0}")
        e("s_nop 1")
        e(f"v_cndmask_b32 v{UA+r}, 0, v{vT1}, vcc")

e(f"{NAME}:")
if AMP: e("s_memrealtime s[72:73]")
def amp(point):
    if AMP and AMP.split(",")[0] == point:
        e("s_memrealtime s[74:75]"); e("s_waitcnt lgkmcnt(0)")
e("s_load_dwordx8 s[4:11], s[0:1], 0")
e("s_load_dwordx2 s[12:13], s[0:1], 32")
if STAMP:
    st_issue(True)
    e("s_load_dwordx2 s[48:49], s[0:1], 48")
    e("s_mov_b32 s50, 0x200000"); e("s_mov_b32 s51, 0x00020000")
e("s_cmp_ge_u32 s2, 256")
e("s_cbranch_scc1 L_end")
c("head = (wg&7)*4 + ((wg>>3)&3), part = wg>>5")
e(f"v_lshrrev_b32 v{vT0}, 6, v0")
e(f"v_and_b32 v{vLANE}, 63, v0")
e(f"v_readfirstlane_b32 s{sWAVE}, v{vT0}")
e("s_and_b32 s3, s2, 7")
e("s_lshl_b32 s3, s3, 2")
e(f"s_bfe_u32 s{sTMP}, s2, 0x20003")
e(f"s_add_u32 s3, s3, s{sTMP}")
e(f"s_lshl_b32 s{sHEAD}, s3, 17")
e(f"v_lshlrev_b32 v{vG16}, 4, v{vLANE}")
for s in (sQ, sK, sV, sO):
    e(f"s_mov_b32 s{s+2}, 0x400000")
    e(f"s_mov_b32 s{s+3}, 0x00020000")
e(f"s_cmp_ge_u32 s{sWAVE}, 4")
e("s_cbranch_scc1 L_consumer")

c("===== producer waves 0..3: K tiles 2w,2w+1 and V tiles 2w,2w+1 of every chunk =====")
e(f"s_load_dwordx4 s[68:71], s[0:1], 40")
e(f"s_setprio {PPRIO}")
e(f"s_lshl_b32 s{sW}, s{sWAVE}, 12")
e(f"s_add_u32 s{sHEAD}, s{sHEAD}, s{sW}")
e(f"s_and_b32 s{sCH}, s3, 7"); e(f"s_lshl_b32 s{sCH}, s{sCH}, 14")
e(f"s_add_u32 s{sGOFF}, s{sHEAD}, s{sCH}")
e(f"s_add_u32 s{sM0V}, s{sW}, 16384")
e(f"v_lshlrev_b32 v{vG64}, 6, v{vLANE}")
e(f"s_mov_b32 m0, s{sM0V}")
e(f"s_lshr_b32 s{sPART}, s2, 5")
e(f"s_mov_b32 s{sWS+2}, 0x804000"); e(f"s_mov_b32 s{sWS+3}, 0x00020000")
e("s_waitcnt lgkmcnt(0)")
if STAMP:
    e(f"v_mov_b32 v{vST}, 0"); e(f"v_mov_b32 v{vST2}, 0"); st_put(0)
e(f"s_mov_b64 s[{sK}:{sK+1}], s[6:7]")
e(f"s_mov_b64 s[{sV}:{sV+1}], s[8:9]")
def loadK(dst=RAW, soff=sGOFF, fl=KFLAGS):
    for j in range(4): e(f"buffer_load_dwordx4 {vr(dst+4*j,4)}, v{vG64}, s[{sK}:{sK+3}], s{soff} offen offset:{16*j} {fl}")
def loadV():
    for j in range(4): e(f"buffer_load_dwordx4 v{vG16}, s[{sV}:{sV+3}], s{sGOFF} offen offset:{1024*j} {VFLAGS} lds")
def pstamp(lane):
    if STAMP == 1: stamp(lane)
def pnorm(raw):
    acc = [vT0, vT1, vT4, vT4+1]
    for j in range(16):
        a_ = acc[j & 3]
        e(f"v_dot2_f32_bf16 v{a_}, v{raw+j}, v{raw+j}, " + ("0" if j < 4 else f"v{a_}"))
    unpack(raw, UNP); unpack(raw+8, UNP+16)
    e(f"v_add_f32 v{vT0}, v{vT0}, v{vT1}")
    e(f"v_add_f32 v{vT4}, v{vT4}, v{vT4+1}")
    e(f"v_add_f32 v{vT0}, v{vT0}, v{vT4}")
    e(f"v_sqrt_f32 v{vT0}, v{vT0}"); e("s_nop 0")
    e(f"v_add_f32 v{vT0}, 0x358637bd, v{vT0}")
    e(f"v_rcp_f32 v{vT2}, v{vT0}")
    e("s_nop 5")
    scale_pack(UNP, 16, vT2, PK)
def advance(first=False):
    e(f"v_add_u32 v{vKW}, s{sSLOT}, v{vKWl}")
    e(f"s_add_u32 s{sSLOT}, s{sSLOT}, 32768")
    e(f"s_and_b32 s{sSLOT}, s{sSLOT}, 0x1ffff")
    if first == 0: e(f"s_mov_b32 s{sIDX}, 1")
    elif first == 1:
        c("third stage: chunk index 2 + (part mod 6), then cyclically through 2..7")
        e(f"s_add_u32 s{sIDX}, s{sPART}, 2") if COOP else e(f"s_mov_b32 s{sIDX}, 2")
    else: e(f"s_add_u32 s{sIDX}, s{sIDX}, 1")
    if first != 0:
        e(f"s_sub_u32 s{sTMP}, s{sIDX}, 6")
        e(f"s_cmp_ge_u32 s{sIDX}, 8")
        e(f"s_cselect_b32 s{sIDX}, s{sTMP}, s{sIDX}")
    e(f"s_lshl_b32 s{sCH}, s{sIDX}, 14")
    e(f"s_add_u32 s{sTMP}, s{sCH}, s{sC0}")
    e(f"s_and_b32 s{sTMP}, s{sTMP}, 0x1ffff")
    e(f"s_add_u32 s{sGOFF}, s{sHEAD}, s{sTMP}")
    e(f"s_add_u32 s{sTMP}, s{sM0V}, s{sSLOT}")
    e(f"s_mov_b32 m0, s{sTMP}")
def wrK():
    for j in range(4): e(f"ds_write_b128 v{vKW}, {vr(PK+4*j,4)} offset:{512*j}")
loadK(); loadV()
e(f"s_mov_b32 s{sC0}, s{sCH}")
WSK = 0x400000; WSF = 0x800000
if COOP:
    e(f"s_mov_b64 s[{sWS}:{sWS+1}], s[70:71]")
    c("hand-off line of (head, wave): dwords 0,1 = generation G, dwords 2+2p,3+2p = flag of part p")
    e(f"s_lshl_b32 s{sFOFF}, s3, 2")
    e(f"s_add_u32 s{sFOFF}, s{sFOFF}, s{sWAVE}")
    e(f"s_lshl_b32 s{sFOFF}, s{sFOFF}, 7")
    e(f"s_add_u32 s{sFOFF}, s{sFOFF}, {WSF}")
    e(f"v_min_u32 v{vFA}, 17, v{vLANE}")
    e(f"v_lshlrev_b32 v{vFA}, 2, v{vFA}")
    e(f"s_add_u32 s{sWOFF}, s{sHEAD}, {WSK}")
ua_consts()
c("K' write address: tile (l>>5)*2048 + key*16 (+ chunk c*512)")
e(f"v_and_b32 v{vT0}, 31, v{vLANE}")
e(f"v_lshlrev_b32 v{vT0}, 4, v{vT0}")
e(f"v_lshrrev_b32 v{vT1}, 5, v{vLANE}")
e(f"v_lshl_add_u32 v{vT0}, v{vT1}, 11, v{vT0}")
e(f"v_add_u32 v{vKWl}, s{sW}, v{vT0}")
e(f"s_mov_b32 s{sSLOT}, 0")
e(f"s_mov_b32 s{sFLG}, 0")
c("--- stage 0 data")
e(f"s_waitcnt vmcnt(4)")
pstamp(20)
pnorm(RAW); advance(0); wrK()
loadK(); loadV()
e(f"s_waitcnt vmcnt(8) lgkmcnt(0)")
pstamp(8)
e("s_barrier")
c("--- stage 1 data")
if COOP and EARLY:
    advance(1)
    e(f"buffer_load_dword v{vFL}, v{vFA}, s[{sWS}:{sWS+3}], s{sFOFF} offen sc1")
    loadK(RAW2, sGOFF, PUBFL)
    e(f"s_waitcnt vmcnt(9)")
    pstamp(21)
    pnorm(RAW); wrK()
    if EARLY == 1:
        loadV()
        e(f"s_waitcnt vmcnt(9) lgkmcnt(0)")
    else:
        e(f"s_waitcnt vmcnt(5) lgkmcnt(0)")
else:
    e(f"s_waitcnt vmcnt(4)")
    pstamp(21)
    pnorm(RAW); advance(1); wrK()
    if COOP: e(f"buffer_load_dword v{vFL}, v{vFA}, s[{sWS}:{sWS+3}], s{sFOFF} offen sc1")
    loadK(RAW2 if COOP else RAW, sGOFF, PUBFL); loadV()
    e(f"s_waitcnt vmcnt({9 if COOP else 8}) lgkmcnt(0)")
pstamp(9)
e("s_barrier")
if COOP and EARLY == 2: loadV()
def poll():
    e(f"buffer_load_dword v{vFL}, v{vFA}, s[{sWS}:{sWS+3}], s{sFOFF} offen sc1")
    e("s_waitcnt vmcnt(0)")
    e(f"v_cmp_eq_u32 vcc, v{vFL}, v{vTAG}")
    e("s_nop 0")
    e(f"s_lshr_b32 s{sFLG}, vcc_lo, 2")
    e(f"s_lshr_b32 s{sTMP}, vcc_lo, 3")
    e(f"s_and_b32 s{sFLG}, s{sFLG}, s{sTMP}")
if COOP:
    c("--- stage 2 data: own chunk, normalised here and published for the other workgroups of this head")
    e(f"s_waitcnt vmcnt(4)")
    pstamp(22)
    pnorm(RAW2)
    e(f"s_add_u32 s{sTMP2}, s{sWOFF}, s{sCH}")
    e(f"s_cmp_ge_u32 s{sPART}, 6")
    e("s_cbranch_scc1 L_nopub")
    for j in range(4): e(f"buffer_store_dwordx4 {vr(PK+4*j,4)}, v{vG16}, s[{sWS}:{sWS+3}], s{sTMP2} offen offset:{1024*j} sc1")
    e("L_nopub:")
    advance(2); wrK(); loadV()
    c("tag of this launch: T = G + golden ratio (64 bit)")
    e(f"v_readlane_b32 s{sDB}, v{vFL}, 0")
    e(f"v_readlane_b32 s{sDB+1}, v{vFL}, 1")
    e(f"v_and_b32 v{vT0}, 1, v{vLANE}")
    e(f"s_add_u32 s{sDB}, s{sDB}, 0x7f4a7c15")
    e(f"s_addc_u32 s{sDB+1}, s{sDB+1}, 0x9e3779b9")
    e(f"v_cmp_eq_u32 vcc, 1, v{vT0}")
    e(f"v_mov_b32 v{vTG2}, s{sDB}")
    e(f"v_mov_b32 v{vTG2+1}, s{sDB+1}")
    e(f"v_cndmask_b32 v{vTAG}, v{vTG2}, v{vTG2+1}, vcc")
    e(f"s_lshl_b32 s{sTMP}, s{sPART}, 3")
    e(f"s_add_u32 s{sTMP}, s{sTMP}, s{sFOFF}")
    c("stores acknowledged -> raise this wave's flag")
    e("s_waitcnt vmcnt(4) lgkmcnt(0)")
    pstamp(29)
    e("s_mov_b64 exec, 1")
    e(f"buffer_store_dwordx2 {vr(vTG2,2)}, v{vFA}, s[{sWS}:{sWS+3}], s{sTMP} offen offset:8 sc1")
    e("s_mov_b64 exec, -1")
    e(f"s_mov_b32 s{sSTG}, 3")
    pstamp(10)
    e("s_barrier")
else:
    e(f"s_mov_b32 s{sSTG}, 2")
e("L_ploop:")
if COOP:
    c("is the normalised chunk of this stage published (by part idx-2)?  bounded polling, else normalise locally")
    e(f"s_mov_b32 s{sCNT}, {NPOLL}")
    e("L_poll:")
    e(f"s_lshl_b32 s{sTMP}, s{sIDX}, 1")
    e(f"s_sub_u32 s{sTMP}, s{sTMP}, 4")
    e(f"s_bitcmp1_b32 s{sFLG}, s{sTMP}")
    e("s_cbranch_scc1 L_ready")
    e(f"s_cmp_eq_u32 s{sCNT}, 0")
    e("s_cbranch_scc1 L_local")
    e(f"s_sub_u32 s{sCNT}, s{sCNT}, 1")
    poll()
    e("s_branch L_poll")
    e("L_local:")
    loadK()
    e("s_waitcnt vmcnt(0)")
    pnorm(RAW)
    e("s_branch L_have")
    e("L_ready:")
    e(f"s_add_u32 s{sTMP}, s{sWOFF}, s{sCH}")
    for j in range(4): e(f"buffer_load_dwordx4 {vr(PK+4*j,4)}, v{vG16}, s[{sWS}:{sWS+3}], s{sTMP} offen offset:{1024*j} sc1")
    e("s_waitcnt vmcnt(0)")
    e("L_have:")
    if STAMP == 1:
        st_issue(); e("s_waitcnt lgkmcnt(0)"); e(f"s_add_u32 s56, s{sSTG}, 20"); e("s_mov_b32 m0, s56"); st_put("m0")
        e(f"s_add_u32 s56, s{sSTG}, 40"); e("s_mov_b32 m0, s56"); e(f"v_writelane_b32 v{vST}, s{sCNT}, m0")
    advance(2); wrK()
    e(f"s_cmp_eq_u32 s{sSTG}, 7")
    e("s_cbranch_scc1 L_plast")
    loadV()
    e(f"s_add_u32 s{sSTG}, s{sSTG}, 1")
    e("s_waitcnt lgkmcnt(0)")
else:
    e("s_waitcnt vmcnt(4)")
    pnorm(RAW); advance(2); wrK()
    e(f"s_cmp_eq_u32 s{sSTG}, 7")
    e("s_cbranch_scc1 L_plast")
    loadK(); loadV()
    e(f"s_add_u32 s{sSTG}, s{sSTG}, 1")
    e("s_waitcnt vmcnt(8) lgkmcnt(0)")
if STAMP == 1:
    st_issue(); e("s_waitcnt lgkmcnt(0)"); e(f"s_add_u32 s56, s{sSTG}, 7"); e("s_mov_b32 m0, s56"); st_put("m0")
e("s_barrier")
e("s_branch L_ploop")
e("L_plast:")
e("s_waitcnt vmcnt(0) lgkmcnt(0)")
e("s_barrier")
if COOP:
    c("part 0: once every part has raised its flag (so has read G), advance the generation for the next launch")
    e(f"s_cmp_lg_u32 s{sPART}, 0")
    e("s_cbranch_scc1 L_pend")
    e("L_fin:")
    e(f"s_and_b32 s{sTMP}, s{sFLG}, 0x5555")
    e(f"s_cmp_eq_u32 s{sTMP}, 0x5555")
    e("s_cbranch_scc1 L_bump")
    poll()
    e("s_branch L_fin")
    e("L_bump:")
    e("s_mov_b64 exec, 1")
    e(f"buffer_store_dwordx2 {vr(vTG2,2)}, v{vFA}, s[{sWS}:{sWS+3}], s{sFOFF} offen sc1")
    e("s_mov_b64 exec, -1")
    e("L_pend:")
if STAMP:
    stamp(18)
    e(f"s_add_u32 s{sTMP}, s{sWAVE}, 8")
    st_flush(sTMP)
e("s_endpgm")

c("===== consumer waves 4..11 =====")
e("L_consumer:")
e(f"s_sub_u32 s{sWAVE}, s{sWAVE}, 4")
e(f"s_lshl_b32 s{sW}, s{sWAVE}, 11")
e(f"s_lshr_b32 s{sPART}, s2, 5")
e(f"s_lshl_b32 s{sTMP}, s{sPART}, 14")
e(f"s_add_u32 s{sQOFF}, s{sHEAD}, s{sTMP}")
e(f"s_add_u32 s{sQOFF}, s{sQOFF}, s{sW}")
e(f"s_lshr_b32 s{sTMP2}, s3, 1")
e(f"s_lshl_b32 s{sTMP2}, s{sTMP2}, 2")
e("s_waitcnt lgkmcnt(0)")
if STAMP:
    e(f"v_mov_b32 v{vST}, 0"); e(f"v_mov_b32 v{vST2}, 0"); st_put(0)
e(f"s_mov_b64 s[{sQ}:{sQ+1}], s[4:5]")
e(f"buffer_load_dwordx4 {vr(SA,4)}, v{vG16}, s[{sQ}:{sQ+3}], s{sQOFF} offen {QFLAGS}")
e(f"buffer_load_dwordx4 {vr(SA+4,4)}, v{vG16}, s[{sQ}:{sQ+3}], s{sQOFF} offen offset:1024 {QFLAGS}")
e(f"s_load_dword s{sT}, s[10:11], s{sTMP2}")
e(f"s_mov_b64 s[{sK}:{sK+1}], s[6:7]")
e(f"s_mov_b64 s[{sO}:{sO+1}], s[12:13]")
ua_consts()
c("K' read: group*8192 + lane*16")
e(f"s_and_b32 s{sTMP}, s{sWAVE}, 4")
e(f"s_lshl_b32 s{sTMP}, s{sTMP}, 11")
e(f"v_add_u32 v{vKRl}, s{sTMP}, v{vG16}")
c("V read: (8*hA + (i>>2))*64 + dhalf*32 + (i&3)*8 + 16384 + group*8192")
e(f"v_lshrrev_b32 v{vT0}, 5, v{vLANE}")
e(f"v_lshlrev_b32 v{vT0}, 9, v{vT0}")
e(f"v_bfe_u32 v{vT1}, v{vLANE}, 2, 2")
e(f"v_lshl_add_u32 v{vT0}, v{vT1}, 6, v{vT0}")
e(f"v_bfe_u32 v{vT1}, v{vLANE}, 4, 1")
e(f"v_lshl_add_u32 v{vT0}, v{vT1}, 5, v{vT0}")
e(f"v_and_b32 v{vT1}, 3, v{vLANE}")
e(f"v_lshl_add_u32 v{vT0}, v{vT1}, 3, v{vT0}")
e(f"s_add_u32 s{sTMP}, s{sTMP}, 16384")
e(f"v_add_u32 v{vVRl}, s{sTMP}, v{vT0}")
e(f"v_mov_b32 v{vKR}, v{vKRl}")
e(f"v_mov_b32 v{vVR}, v{vVRl}")
e(f"v_mov_b32 v{vIDX}, 0xdddddddd")
c("Q' write: LDS_Q + w*QSTR + (l&3)*544 + (l>>2)*16 ; read: LDS_Q + (w&3)*QSTR + (l>>5)*544 + (l&31)*16")
e(f"s_mul_i32 s{sTMP}, s{sWAVE}, {QSTR}")
e(f"s_add_u32 s{sTMP}, s{sTMP}, {LDS_Q}")
e(f"v_mul_u32_u24 v{vT0}, 544, v{vT1}")
e(f"v_lshrrev_b32 v{vT1}, 2, v{vLANE}")
e(f"v_lshl_add_u32 v{vT0}, v{vT1}, 4, v{vT0}")
e(f"v_add_u32 v{vQW}, s{sTMP}, v{vT0}")
e(f"v_lshrrev_b32 v{vT1}, 5, v{vLANE}")
e(f"v_lshl_add_u32 v{vT0}, v{vT1}, 5, v{vG16}")
e(f"v_add_u32 v{vQR}, s{sTMP}, v{vT0}")
e(f"s_xor_b32 s{sTMP2}, s{sWAVE}, 4")
e(f"s_mul_i32 s{sTMP2}, s{sTMP2}, {QSTR}")
e(f"s_add_u32 s{sTMP2}, s{sTMP2}, {LDS_Q}")
e(f"v_add_u32 v{vT3}, s{sTMP2}, v{vT0}")
c("row-sum selector: only rows 0 (q 0..15) and 4 (q 16..31) carry ones")
e(f"v_and_b32 v{vT0}, 15, v{vLANE}")
e(f"v_mov_b32 v{vT1}, 0x3f803f80")
e(f"v_cmp_eq_u32 vcc, 0, v{vT0}")
e("s_nop 1")
e(f"v_cndmask_b32 v{ONES}, 0, v{vT1}, vcc")
e(f"v_cmp_eq_u32 vcc, 4, v{vT0}")
e(f"v_mov_b32 v{ONES+1}, v{ONES}")
e("s_nop 0")
e(f"v_cndmask_b32 v{ONES+2}, 0, v{vT1}, vcc")
e(f"v_mov_b32 v{ONES+3}, v{ONES+2}")
c("epilogue addresses")
e(f"s_lshl_b32 s{sTMP}, s{sWAVE}, 13")
e(f"s_xor_b32 s{sTMP}, s{sTMP}, 0x8000")
e(f"v_add_u32 v{vRED}, s{sTMP}, v{vG16}")
e(f"v_and_b32 v{vT0}, 31, v{vLANE}")
e(f"v_lshlrev_b32 v{vT0}, 6, v{vT0}")
e(f"v_lshrrev_b32 v{vT1}, 5, v{vLANE}")
e(f"v_lshl_add_u32 v{vOUT}, v{vT1}, 4, v{vT0}")
zero(list(range(OA, OA+16)) + list(range(OB, OB+16)) + list(range(LA, LA+4)) + list(range(LB, LB+4)) + list(range(VF1, VF1+4)))
e("s_waitcnt lgkmcnt(0)")
e(f"s_lshl_b32 s{sTMP}, s{sT}, 16")
e(f"s_and_b32 s{sTMP2}, s{sT}, 0xffff0000")
e("s_bitcmp1_b32 s3, 0")
e(f"s_cselect_b32 s{sT}, s{sTMP2}, s{sTMP}")
e(f"v_mov_b32 v{vTL}, 0x3fb8aa3b")
e(f"v_mul_f32 v{vTL}, s{sT}, v{vTL}")
e(f"v_or_b32 v{CA}, 0x80000000, v{vTL}")
e(f"v_mov_b32 v{CA+1}, v{CA}")
for j in range(2, 32, 2): e(f"v_mov_b64 {vr(CA+j,2)}, {vr(CA,2)}")
e(f"s_mov_b32 s{sSTG}, 0")
e(f"s_mov_b32 s{sSLOT}, 32768")
stamp(1)
c("Q tile: rows 16j + (l>>2), 8 elements per lane and j")
amp("pre")
e("s_waitcnt vmcnt(0)")
amp("q")
stamp(2)
unpack(SA, SB)
dots(vT0, SA, 4); dots(vT1, SA+4, 4)
e("s_nop 1")
for qp in ("[1,0,3,2]", "[2,3,0,1]"):
    e(f"v_add_f32_dpp v{vT0}, v{vT0}, v{vT0} quad_perm:{qp} row_mask:0xf bank_mask:0xf")
    e("s_nop 0")
    e(f"v_add_f32_dpp v{vT1}, v{vT1}, v{vT1} quad_perm:{qp} row_mask:0xf bank_mask:0xf")
    if qp == "[1,0,3,2]": e("s_nop 0")
e(f"v_sqrt_f32 v{vT0}, v{vT0}")
e(f"v_sqrt_f32 v{vT1}, v{vT1}")
e(f"v_add_f32 v{vT0}, 0x358637bd, v{vT0}")
e(f"v_add_f32 v{vT1}, 0x358637bd, v{vT1}")
e(f"v_rcp_f32 v{vT0}, v{vT0}")
e(f"v_rcp_f32 v{vT1}, v{vT1}")
e(f"v_mul_f32 v{vT2}, v{vT0}, v{vTL}")
e(f"v_mul_f32 v{vT4}, v{vT1}, v{vTL}")
scale_pack(SB, 4, vT2, SA+8)
e(f"ds_write_b128 v{vQW}, {vr(SA+8,4)}")
scale_pack(SB+8, 4, vT4, SA+12)
e(f"ds_write_b128 v{vQW}, {vr(SA+12,4)} offset:256")
zero(range(SB+8, SB+16))
stamp(3)
e("s_waitcnt lgkmcnt(0)")
e("s_barrier")
e(f"ds_read_b128 {vr(QA,4)}, v{vT3}")
e(f"ds_read_b128 {vr(QA+4,4)}, v{vT3} offset:1088")
c("fast path check: |t| <= 16")
e(f"s_and_b32 s{sTMP}, s{sT}, 0x7fffffff")
e(f"s_cmp_le_u32 s{sTMP}, 0x41800000")
e("s_cbranch_scc0 L_maxpass")
e("L_start:")
rdK(0)
e(f"ds_read_b128 {vr(QB,4)}, v{vQR}")
e(f"ds_read_b128 {vr(QB+4,4)}, v{vQR} offset:1088")
rdV(VF0, 0, 0)
stamp(5)
e("s_waitcnt lgkmcnt(4)")
for s in qk(SA, QA, CA): e(s)
e("s_waitcnt lgkmcnt(2)")
e("s_nop 7")
e("s_nop 3")
stamp(6)
amp("loop")
e(".p2align 6")
e("L_stage:")
for kt in range(4):
    slotA(kt)
    if kt == 3:
        e(f"s_cmp_eq_u32 s{sSTG}, 7")
        e("s_cbranch_scc1 L_last")
    slotB(kt)
    if kt == BARAT: e("s_barrier")
e(f"s_add_u32 s{sSTG}, s{sSTG}, 1")
e(f"s_add_u32 s{sSLOT}, s{sSLOT}, 32768")
e(f"s_and_b32 s{sSLOT}, s{sSLOT}, 0x1ffff")
e("s_branch L_stage")
e("L_last:")
amp("last")
slotB(3, last=True)
e(f"v_xor_b32 v{vT0}, 0x8000, v{vRED}")
e("s_waitcnt lgkmcnt(0)")
e(pv(OB, VF1, SB+8))
e(sm(LB, SB+8))
stamp(16)
e("s_barrier")
e(f"ds_read_b32 v{LA}, v{vT0} offset:4096")
for j in range(4): e(f"ds_read_b128 {vr(OA+4*j,4)}, v{vT0} offset:{1024*j}")
e("s_nop 3")
e("s_waitcnt lgkmcnt(4)")
e(f"v_add_f32 v{LA}, v{LA}, v{LB}")
e(f"v_rcp_f32 v{vT2}, v{LA}")
e("s_nop 0")
e(f"v_mov_b32 v{vT1}, v{vT2}")
PKo = SA
for j in range(4):
    e(f"s_waitcnt lgkmcnt({3-j})")
    for i in range(2):
        r = 4*j + 2*i
        e(f"v_pk_add_f32 {vr(OA+r,2)}, {vr(OA+r,2)}, {vr(OB+r,2)}")
    if j == 0: e(f"v_permlane32_swap_b32 v{vT2}, v{vT1}")
for i in range(8):
    e(f"v_pk_mul_f32 {vr(OA+2*i,2)}, {vr(OA+2*i,2)}, {vr(vT2,2)} op_sel_hi:[1,0]")
for i in range(8):
    e(f"v_cvt_pk_bf16_f32 v{PKo+i}, v{OA+2*i}, v{OA+2*i+1}")
    if i == 5:
        e(f"v_permlane32_swap_b32 v{PKo+0}, v{PKo+2}")
        e(f"v_permlane32_swap_b32 v{PKo+1}, v{PKo+3}")
e(f"buffer_store_dwordx4 {vr(PKo,4)}, v{vOUT}, s[{sO}:{sO+3}], s{sQOFF} offen {STFLAGS}")
e("s_nop 0")
e(f"v_permlane32_swap_b32 v{PKo+4}, v{PKo+6}")
e(f"v_permlane32_swap_b32 v{PKo+5}, v{PKo+7}")
e("s_nop 1")
e(f"buffer_store_dwordx4 {vr(PKo+4,4)}, v{vOUT}, s[{sO}:{sO+3}], s{sQOFF} offen offset:32 {STFLAGS}")
if STAMP:
    stamp(17)
    e("s_waitcnt vmcnt(0)")
    stamp(18)
    st_flush(sWAVE)
if AMP:
    e("s_waitcnt vmcnt(0)")
    amp("end")
    e("s_memrealtime s[76:77]"); e("s_waitcnt lgkmcnt(0)")
    e("s_sub_u32 s74, s74, s72")
    e(f"s_mul_i32 s74, s74, {AMP.split(',')[1]}")
    e("L_amp:")
    e("s_sleep 2")
    e("s_memrealtime s[78:79]"); e("s_waitcnt lgkmcnt(0)")
    e("s_sub_u32 s78, s78, s76")
    e("s_cmp_lt_u32 s78, s74")
    e("s_cbranch_scc1 L_amp")
e("L_end:")
e("s_endpgm")

c("|t| large (or NaN): find the true row max of the logits first, then run the main loop with C = -max")
e("L_maxpass:")
e(f"ds_read_b128 {vr(QB,4)}, v{vQR}")
e(f"ds_read_b128 {vr(QB+4,4)}, v{vQR} offset:1088")
c("lane (key=l&31,h=l>>5): frag i = bytes key*64 + i*32 + h*16")
e(f"s_mov_b32 s{sTMP}, s{sHEAD}")
e(f"s_mov_b32 s{sTMP2}, 0")
e(f"v_mov_b32 v{vT3}, 0xff800000")
e(f"v_mov_b32 v{vT4}, 0xff800000")
e("s_waitcnt lgkmcnt(0)")
e("L_maxloop:")
e(f"buffer_load_dwordx4 {vr(SB,4)}, v{vOUT}, s[{sK}:{sK+3}], s{sTMP} offen")
e(f"buffer_load_dwordx4 {vr(SB+4,4)}, v{vOUT}, s[{sK}:{sK+3}], s{sTMP} offen offset:32")
e("s_waitcnt vmcnt(0)")
unpack(SB, OA)
dots(vT0, SB, 8)
e("s_nop 2")
e(f"v_mov_b32 v{vT1}, v{vT0}"); e("s_nop 1")
e(f"v_permlane32_swap_b32 v{vT0}, v{vT1}"); e("s_nop 1")
e(f"v_add_f32 v{vT0}, v{vT0}, v{vT1}")
e(f"v_sqrt_f32 v{vT0}, v{vT0}"); e("s_nop 0")
e(f"v_add_f32 v{vT0}, 0x358637bd, v{vT0}")
e(f"v_rcp_f32 v{vT2}, v{vT0}"); e("s_nop 0")
scale_pack(OA, 8, vT2, OB)
e("s_nop 1")
for S, Q in ((CA, QA), (CB, QB)):
    e(f"v_mfma_f32_32x32x16_bf16 {vr(S,16)}, {vr(OB,4)}, {vr(Q,4)}, 0")
    e(f"v_mfma_f32_32x32x16_bf16 {vr(S,16)}, {vr(OB+4,4)}, {vr(Q+4,4)}, {vr(S,16)}")
e("s_nop 15")
for S, M in ((CA, vT3), (CB, vT4)):
    for j in range(8): e(f"v_max3_f32 v{M}, v{S+2*j}, v{S+2*j+1}, v{M}")
e(f"s_add_u32 s{sTMP}, s{sTMP}, 2048")
e(f"s_add_u32 s{sTMP2}, s{sTMP2}, 1")
e(f"s_cmp_lt_u32 s{sTMP2}, 64")
e("s_cbranch_scc1 L_maxloop")
for C, M in ((CA, vT3), (CB, vT4)):
    e(f"v_mov_b32 v{vT0}, v{M}")
    e("s_nop 1")
    e(f"v_permlane32_swap_b32 v{vT0}, v{M}")
    e("s_nop 1")
    e(f"v_max_f32 v{M}, v{M}, v{vT0}")
    e(f"v_xor_b32 v{C}, 0x80000000, v{M}")
    for j in range(1, 16): e(f"v_mov_b32 v{C+j}, v{C}")
zero(list(range(OA, OA+16)) + list(range(OB, OB+16)))
e("s_branch L_start")

nv = max(136, (NV + 7) // 8 * 8)
src = HEADER + f"; @launch grid=(256,1,1) block=(768,1,1) lds={LDS_TOTAL}\n" + f""".amdgcn_target "amdgcn-amd-amdhsa--gfx950"
.text
.globl {NAME}
.p2align 8
.type {NAME},@function
""" + "\n".join(L) + f"""
.section .rodata,"a"
.p2align 6
.amdhsa_kernel {NAME}
  .amdhsa_next_free_vgpr {nv}
  .amdhsa_next_free_sgpr 88
  .amdhsa_accum_offset {nv}
  .amdhsa_group_segment_fixed_size 0
  .amdhsa_kernarg_size 56
  .amdhsa_user_sgpr_count 2
  .amdhsa_user_sgpr_kernarg_segment_ptr 1
  .amdhsa_system_sgpr_workgroup_id_x 1
.end_amdhsa_kernel
"""
open(sys.argv[1], "w").write(src)
print("vgprs", NV, "->", nv)
```

```python
import sys
OPT = dict(a.split("=") for a in sys.argv[2:] if "=" in a)
def opt(name, default): return type(default)(OPT.get(name, default))
STAMP = opt("stamp", 0)
PRIO = OPT.get("prio", "2210")
COOP = opt("coop", 1)
NPOLL = opt("npoll", 8)
PAT = opt("pat", 0)
EARLY = opt("early", 1)
PUBFL = OPT.get("pubfl", "").replace("+", " ")
PPRIO = opt("pprio", 3)
ROT = opt("rot", 1)
CZERO = opt("czero", 0)
STFLAGS = OPT.get("stflags", "").replace("+", " ")
QFLAGS = OPT.get("qflags", "nt").replace("+", " ").replace("none", "")
KFLAGS = OPT.get("kflags", "").replace("+", " ")
VFLAGS = OPT.get("vflags", "").replace("+", " ")
BARAT = opt("barat", 2)

AMP = OPT.get("amp", "")
HEADER = open("standalone__qk_norm__prompt.s.ref").read().split("; Override launch")[0]
NAME = "standalone__qk_norm__prompt_kernel"
L = []
def e(s=""): L.append("    " + s if s and not s.endswith(":") else s)
def c(s): L.append("    ; " + s)

class VA:
    def __init__(s, n=1): s.n = n
    def get(s, k=1, al=1):
        s.n = (s.n + al - 1) // al * al
        b = s.n; s.n += k; return b
def vr(b, n): return f"v[{b}:{b+n-1}]"
va = VA()
vLANE = va.get(); vG16 = va.get(); vT0 = va.get(); vT1 = va.get(); vT3 = va.get(); vT2 = va.get(2, 2); vT4 = va.get(2, 2)
vST = va.get(); vST2 = va.get()
UA = va.get(8, 4)
base = va.n
vKR = va.get(); vVR = va.get(); vKRl = va.get(); vVRl = va.get(); vIDX = va.get(); vTL = va.get(); vRED = va.get(); vOUT = va.get()
vQR = va.get(); vQW = va.get()
KF = UA
ONES = va.get(4, 4)
QA = va.get(8, 4); QB = va.get(8, 4)
VF0 = va.get(4, 4); VF1 = va.get(4, 4)
LA = va.get(4, 4); LB = va.get(4, 4)
SA = va.get(16, 4); SB = va.get(16, 4)
OA = va.get(16, 4); OB = va.get(16, 4)
CA = va.get(16, 4); CB = va.get(16, 4)
NV = va.n
vp = VA(base)
vG64 = vp.get(); vKWl = vp.get(); vKW = vp.get()
vFA = vp.get(); vFL = vp.get(); vTAG = vp.get(); vTG2 = vp.get(2, 2)
RAW = vp.get(16, 4); RAW2 = vp.get(16, 4); UNP = vp.get(32, 4); PK = vp.get(16, 4)
assert vp.n <= NV and NV <= 168

sQ, sK, sV, sO = 16, 20, 24, 28
sHEAD = 32; sPART = 33; sWAVE = 34; sSTG = 35; sT = 36; sGOFF = 37; sSLOT = 38
sTMP = 40; sTMP2 = 41; sW = 42; sCH = 43; sM0V = 44; sQOFF = 45
sWS = 60; sDB = 64; sFLG = 46; sWOFF = 47; sCNT = 39; sFOFF = 57; sIDX = 58; sC0 = 59
LDS_Q = 131072; QSTR = 2176; LDS_TOTAL = LDS_Q + 8 * QSTR

def st_issue(force=False):
    if STAMP == 1 or (STAMP and force):
        e("s_memtime s[52:53]"); e("s_memrealtime s[54:55]")
def st_put(lane):
    if STAMP == 1 or (STAMP and lane in (0, 18)):
        e(f"v_writelane_b32 v{vST}, s52, {lane}"); e(f"v_writelane_b32 v{vST2}, s54, {lane}")
def stamp(lane):
    if STAMP == 1 or (STAMP and lane == 18):
        st_issue(True); e("s_waitcnt lgkmcnt(0)"); st_put(lane)
def st_flush(slot_sgpr):
    if STAMP:
        e(f"s_mul_i32 s56, s2, 12"); e(f"s_add_u32 s56, s56, s{slot_sgpr}"); e(f"s_lshl_b32 s56, s56, 9")
        e(f"v_lshlrev_b32 v{vT0}, 2, v{vLANE}")
        e(f"buffer_store_dword v{vST}, v{vT0}, s[48:51], s56 offen")
        e(f"buffer_store_dword v{vST2}, v{vT0}, s[48:51], s56 offen offset:256")

def unpack(raw, dst):
    e(f"v_mfma_f32_32x32x16_bf16 {vr(dst,16)}, {vr(UA,4)}, {vr(raw,4)}, 0")
    e(f"v_mfma_f32_32x32x16_bf16 {vr(dst,16)}, {vr(UA+4,4)}, {vr(raw+4,4)}, {vr(dst,16)}")
def dots(acc, raw, n):
    e(f"v_dot2_f32_bf16 v{acc}, v{raw}, v{raw}, 0")
    for j in range(1, n): e(f"v_dot2_f32_bf16 v{acc}, v{raw+j}, v{raw+j}, v{acc}")
def scale_pack(unp, n, sc, pk):
    for j in range(n): e(f"v_pk_mul_f32 {vr(unp+2*j,2)}, {vr(unp+2*j,2)}, {vr(sc,2)} op_sel_hi:[1,0]")
    for j in range(n): e(f"v_cvt_pk_bf16_f32 v{pk+j}, v{unp+2*j}, v{unp+2*j+1}")
def zero(regs):
    for r in list(regs)[::2]: e(f"v_mov_b64 {vr(r,2)}, 0")

def qk(S, Q, C):
    return [f"v_mfma_f32_32x32x16_bf16 {vr(S,16)}, {vr(KF,4)}, {vr(Q,4)}, " + ("0" if CZERO else vr(C,16)),
            f"v_mfma_f32_32x32x16_bf16 {vr(S,16)}, {vr(KF+4,4)}, {vr(Q+4,4)}, {vr(S,16)}"]
def pv(O, VF, S): return f"v_smfmac_f32_32x32x32_bf16 {vr(O,16)}, {vr(VF,4)}, {vr(S,8)}, v{vIDX}"
def sm(Lr, S): return f"v_smfmac_f32_16x16x64_bf16 {vr(Lr,4)}, {vr(ONES,4)}, {vr(S,8)}, v{vIDX}"
def ex(S, a, b):
    for j in range(a, b): e(f"v_exp_f32 v{S+j}, v{S+j}")
def rdK(t):
    e(f"ds_read_b128 {vr(KF,4)}, v{vKR} offset:{t*2048}")
    e(f"ds_read_b128 {vr(KF+4,4)}, v{vKR} offset:{t*2048+1024}")
def rdV(VF, t, half):
    e(f"ds_read_b64_tr_b16 {vr(VF,2)}, v{vVR} offset:{t*2048+half*1024}")
    e(f"ds_read_b64_tr_b16 {vr(VF+2,2)}, v{vVR} offset:{t*2048+half*1024+256}")

def slotA(kt):
    c(f"--- slot A kt={kt}")
    if PRIO != "none" and (kt == 0 or PRIO[kt] != PRIO[kt-1]): e(f"s_setprio {PRIO[kt]}")
    q = qk(SB, QB, CB)
    if PAT == 0:
        ex(SA, 0, 2); e(pv(OB, VF1, SB+8)); ex(SA, 2, 5); e(sm(LB, SB+8))
        rdV(VF1, kt, 1)
        ex(SA, 5, 7)
    else:
        ex(SA, 0, 2); e(sm(LB, SB+8)); ex(SA, 2, 4); e(pv(OB, VF1, SB+8))
        rdV(VF1, kt, 1)
        ex(SA, 4, 7)
    e(q[0]); ex(SA, 7, 10); e(q[1])
    if kt == 3: e(f"v_add_u32 v{vKR}, s{sSLOT}, v{vKRl}")
    rdK((kt + 1) & 3)
    ex(SA, 10, 13)
    if PAT == 0:
        e("s_waitcnt lgkmcnt(4)")
        e(pv(OA, VF0, SA)); ex(SA, 13, 16); e(sm(LA, SA))
    else:
        e(sm(LA, SA)); ex(SA, 13, 15)
        e("s_waitcnt lgkmcnt(4)")
        e(pv(OA, VF0, SA)); ex(SA, 15, 16)
def slotB(kt, last=False):
    c(f"--- slot B kt={kt}" + (" (last)" if last else ""))
    q = qk(SA, QA, CA)
    ex(SB, 0, 2)
    if PAT == 0 or last:
        e("s_waitcnt lgkmcnt(2)")
        if kt == 3: st_issue()
        e(pv(OA, VF1, SA+8)); ex(SB, 2, 5); e(sm(LA, SA+8)); ex(SB, 5, 7)
    else:
        e(sm(LA, SA+8)); ex(SB, 2, 4)
        e("s_waitcnt lgkmcnt(2)")
        if kt == 3: st_issue()
        e(pv(OA, VF1, SA+8)); ex(SB, 4, 7)
    if not last or STAMP == 1: e("s_waitcnt lgkmcnt(0)")
    if kt == 3 and STAMP == 1:
        e(f"s_add_u32 s56, s{sSTG}, 8"); e(f"s_mov_b32 m0, s56"); st_put("m0")
    if last:
        ex(SB, 7, 10)
        e(pv(OB, VF0, SB))
        ex(SB, 10, 12)
        c("tile A is complete: hand its partial sums to the partner wave")
        for j in range(4): e(f"ds_write_b128 v{vRED}, {vr(OA+4*j,4)} offset:{1024*j}")
        e(f"ds_write_b32 v{vRED}, v{LA} offset:4096")
        ex(SB, 12, 13)
        e(sm(LB, SB))
        ex(SB, 13, 16)
        return
    e(q[0]); ex(SB, 7, 10); e(q[1])
    if kt == 3: e(f"v_add_u32 v{vVR}, s{sSLOT}, v{vVRl}")
    ex(SB, 10, 13)
    if PAT == 0:
        e(pv(OB, VF0, SB))
        rdV(VF0, (kt + 1) & 3, 0)
        ex(SB, 13, 16); e(sm(LB, SB))
    else:
        e(sm(LB, SB)); ex(SB, 13, 15)
        e(pv(OB, VF0, SB))
        rdV(VF0, (kt + 1) & 3, 0)
        ex(SB, 15, 16)

def ua_consts():
    c("unpack selection matrices: lane (m=l&31,hA=l>>5): A_i has 1.0 at e=(m&3)+4*((m>>3)&1) iff (m>>4)==i and ((m>>2)&1)==hA")
    e(f"v_bfe_u32 v{vT0}, v{vLANE}, 2, 1")
    e(f"v_lshrrev_b32 v{vT1}, 5, v{vLANE}")
    e(f"v_cmp_eq_u32 vcc, v{vT0}, v{vT1}")
    e(f"v_and_b32 v{vT0}, 1, v{vLANE}")
    e(f"v_lshlrev_b32 v{vT0}, 4, v{vT0}")
    e(f"v_mov_b32 v{vT1}, 0x3f80")
    e(f"v_lshlrev_b32 v{vT1}, v{vT0}, v{vT1}")
    e(f"v_cndmask_b32 v{vT1}, 0, v{vT1}, vcc")
    e(f"v_bfe_u32 v{vT0}, v{vLANE}, 1, 1")
    e(f"v_bfe_u32 v{vT2}, v{vLANE}, 3, 2")
    e(f"v_lshl_add_u32 v{vT0}, v{vT2}, 1, v{vT0}")
    for r in range(8):
        e(f"v_cmp_eq_u32 vcc, {r}, v{vT0}")
        e("s_nop 1")
        e(f"v_cndmask_b32 v{UA+r}, 0, v{vT1}, vcc")

e(f"{NAME}:")
if AMP: e("s_memrealtime s[72:73]")
def amp(point):
    if AMP and AMP.split(",")[0] == point:
        e("s_memrealtime s[74:75]"); e("s_waitcnt lgkmcnt(0)")
e("s_load_dwordx8 s[4:11], s[0:1], 0")
e("s_load_dwordx2 s[12:13], s[0:1], 32")
if STAMP:
    st_issue(True)
    e("s_load_dwordx2 s[48:49], s[0:1], 48")
    e("s_mov_b32 s50, 0x200000"); e("s_mov_b32 s51, 0x00020000")
e("s_cmp_ge_u32 s2, 256")
e("s_cbranch_scc1 L_end")
c("head = (wg&7)*4 + ((wg>>3)&3), part = wg>>5")
e(f"v_lshrrev_b32 v{vT0}, 6, v0")
e(f"v_and_b32 v{vLANE}, 63, v0")
e(f"v_readfirstlane_b32 s{sWAVE}, v{vT0}")
e("s_and_b32 s3, s2, 7")
e("s_lshl_b32 s3, s3, 2")
e(f"s_bfe_u32 s{sTMP}, s2, 0x20003")
e(f"s_add_u32 s3, s3, s{sTMP}")
e(f"s_lshl_b32 s{sHEAD}, s3, 17")
e(f"v_lshlrev_b32 v{vG16}, 4, v{vLANE}")
for s in (sQ, sK, sV, sO):
    e(f"s_mov_b32 s{s+2}, 0x400000")
    e(f"s_mov_b32 s{s+3}, 0x00020000")
e(f"s_cmp_ge_u32 s{sWAVE}, 4")
e("s_cbranch_scc1 L_consumer")

c("===== producer waves 0..3: K tiles 2w,2w+1 and V tiles 2w,2w+1 of every chunk =====")
e(f"s_load_dwordx4 s[68:71], s[0:1], 40")
e(f"s_setprio {PPRIO}")
e(f"s_lshl_b32 s{sW}, s{sWAVE}, 12")
e(f"s_add_u32 s{sHEAD}, s{sHEAD}, s{sW}")
e(f"s_and_b32 s{sCH}, s3, 7"); e(f"s_lshl_b32 s{sCH}, s{sCH}, 14")
e(f"s_add_u32 s{sGOFF}, s{sHEAD}, s{sCH}")
e(f"s_add_u32 s{sM0V}, s{sW}, 16384")
e(f"v_lshlrev_b32 v{vG64}, 6, v{vLANE}")
e(f"s_mov_b32 m0, s{sM0V}")
e(f"s_lshr_b32 s{sPART}, s2, 5")
e(f"s_mov_b32 s{sWS+2}, 0x804000"); e(f"s_mov_b32 s{sWS+3}, 0x00020000")
e("s_waitcnt lgkmcnt(0)")
if STAMP:
    e(f"v_mov_b32 v{vST}, 0"); e(f"v_mov_b32 v{vST2}, 0"); st_put(0)
e(f"s_mov_b64 s[{sK}:{sK+1}], s[6:7]")
e(f"s_mov_b64 s[{sV}:{sV+1}], s[8:9]")
def loadK(dst=RAW, soff=sGOFF, fl=KFLAGS):
    for j in range(4): e(f"buffer_load_dwordx4 {vr(dst+4*j,4)}, v{vG64}, s[{sK}:{sK+3}], s{soff} offen offset:{16*j} {fl}")
def loadV():
    for j in range(4): e(f"buffer_load_dwordx4 v{vG16}, s[{sV}:{sV+3}], s{sGOFF} offen offset:{1024*j} {VFLAGS} lds")
def pstamp(lane):
    if STAMP == 1: stamp(lane)
def pnorm(raw):
    acc = [vT0, vT1, vT4, vT4+1]
    for j in range(16):
        a_ = acc[j & 3]
        e(f"v_dot2_f32_bf16 v{a_}, v{raw+j}, v{raw+j}, " + ("0" if j < 4 else f"v{a_}"))
    unpack(raw, UNP); unpack(raw+8, UNP+16)
    e(f"v_add_f32 v{vT0}, v{vT0}, v{vT1}")
    e(f"v_add_f32 v{vT4}, v{vT4}, v{vT4+1}")
    e(f"v_add_f32 v{vT0}, v{vT0}, v{vT4}")
    e(f"v_sqrt_f32 v{vT0}, v{vT0}"); e("s_nop 0")
    e(f"v_add_f32 v{vT0}, 0x358637bd, v{vT0}")
    e(f"v_rcp_f32 v{vT2}, v{vT0}")
    e("s_nop 5")
    scale_pack(UNP, 16, vT2, PK)
def advance(first=False):
    e(f"v_add_u32 v{vKW}, s{sSLOT}, v{vKWl}")
    e(f"s_add_u32 s{sSLOT}, s{sSLOT}, 32768")
    e(f"s_and_b32 s{sSLOT}, s{sSLOT}, 0x1ffff")
    if first == 0: e(f"s_mov_b32 s{sIDX}, 1")
    elif first == 1:
        c("third stage: chunk index 2 + (part mod 6), then cyclically through 2..7")
        e(f"s_add_u32 s{sIDX}, s{sPART}, 2") if COOP else e(f"s_mov_b32 s{sIDX}, 2")
    else: e(f"s_add_u32 s{sIDX}, s{sIDX}, 1")
    if first != 0:
        e(f"s_sub_u32 s{sTMP}, s{sIDX}, 6")
        e(f"s_cmp_ge_u32 s{sIDX}, 8")
        e(f"s_cselect_b32 s{sIDX}, s{sTMP}, s{sIDX}")
    e(f"s_lshl_b32 s{sCH}, s{sIDX}, 14")
    e(f"s_add_u32 s{sTMP}, s{sCH}, s{sC0}")
    e(f"s_and_b32 s{sTMP}, s{sTMP}, 0x1ffff")
    e(f"s_add_u32 s{sGOFF}, s{sHEAD}, s{sTMP}")
    e(f"s_add_u32 s{sTMP}, s{sM0V}, s{sSLOT}")
    e(f"s_mov_b32 m0, s{sTMP}")
def wrK():
    for j in range(4): e(f"ds_write_b128 v{vKW}, {vr(PK+4*j,4)} offset:{512*j}")
loadK(); loadV()
e(f"s_mov_b32 s{sC0}, s{sCH}")
WSK = 0x400000; WSF = 0x800000
if COOP:
    e(f"s_mov_b64 s[{sWS}:{sWS+1}], s[70:71]")
    c("hand-off line of (head, wave): dwords 0,1 = generation G, dwords 2+2p,3+2p = flag of part p")
    e(f"s_lshl_b32 s{sFOFF}, s3, 2")
    e(f"s_add_u32 s{sFOFF}, s{sFOFF}, s{sWAVE}")
    e(f"s_lshl_b32 s{sFOFF}, s{sFOFF}, 7")
    e(f"s_add_u32 s{sFOFF}, s{sFOFF}, {WSF}")
    e(f"v_min_u32 v{vFA}, 17, v{vLANE}")
    e(f"v_lshlrev_b32 v{vFA}, 2, v{vFA}")
    e(f"s_add_u32 s{sWOFF}, s{sHEAD}, {WSK}")
ua_consts()
c("K' write address: tile (l>>5)*2048 + key*16 (+ chunk c*512)")
e(f"v_and_b32 v{vT0}, 31, v{vLANE}")
e(f"v_lshlrev_b32 v{vT0}, 4, v{vT0}")
e(f"v_lshrrev_b32 v{vT1}, 5, v{vLANE}")
e(f"v_lshl_add_u32 v{vT0}, v{vT1}, 11, v{vT0}")
e(f"v_add_u32 v{vKWl}, s{sW}, v{vT0}")
e(f"s_mov_b32 s{sSLOT}, 0")
e(f"s_mov_b32 s{sFLG}, 0")
c("--- stage 0 data")
e(f"s_waitcnt vmcnt(4)")
pstamp(20)
pnorm(RAW); advance(0); wrK()
loadK(); loadV()
e(f"s_waitcnt vmcnt(8) lgkmcnt(0)")
pstamp(8)
e("s_barrier")
c("--- stage 1 data")
if COOP and EARLY:
    advance(1)
    e(f"buffer_load_dword v{vFL}, v{vFA}, s[{sWS}:{sWS+3}], s{sFOFF} offen sc1")
    loadK(RAW2, sGOFF, PUBFL)
    e(f"s_waitcnt vmcnt(9)")
    pstamp(21)
    pnorm(RAW); wrK()
    if EARLY == 1:
        loadV()
        e(f"s_waitcnt vmcnt(9) lgkmcnt(0)")
    else:
        e(f"s_waitcnt vmcnt(5) lgkmcnt(0)")
else:
    e(f"s_waitcnt vmcnt(4)")
    pstamp(21)
    pnorm(RAW); advance(1); wrK()
    if COOP: e(f"buffer_load_dword v{vFL}, v{vFA}, s[{sWS}:{sWS+3}], s{sFOFF} offen sc1")
    loadK(RAW2 if COOP else RAW, sGOFF, PUBFL); loadV()
    e(f"s_waitcnt vmcnt({9 if COOP else 8}) lgkmcnt(0)")
pstamp(9)
e("s_barrier")
if COOP and EARLY == 2: loadV()
def poll():
    e(f"buffer_load_dword v{vFL}, v{vFA}, s[{sWS}:{sWS+3}], s{sFOFF} offen sc1")
    e("s_waitcnt vmcnt(0)")
    e(f"v_cmp_eq_u32 vcc, v{vFL}, v{vTAG}")
    e("s_nop 0")
    e(f"s_lshr_b32 s{sFLG}, vcc_lo, 2")
    e(f"s_lshr_b32 s{sTMP}, vcc_lo, 3")
    e(f"s_and_b32 s{sFLG}, s{sFLG}, s{sTMP}")
if COOP:
    c("--- stage 2 data: own chunk, normalised here and published for the other workgroups of this head")
    e(f"s_waitcnt vmcnt(4)")
    pstamp(22)
    pnorm(RAW2)
    e(f"s_add_u32 s{sTMP2}, s{sWOFF}, s{sCH}")
    e(f"s_cmp_ge_u32 s{sPART}, 6")
    e("s_cbranch_scc1 L_nopub")
    for j in range(4): e(f"buffer_store_dwordx4 {vr(PK+4*j,4)}, v{vG16}, s[{sWS}:{sWS+3}], s{sTMP2} offen offset:{1024*j} sc1")
    e("L_nopub:")
    advance(2); wrK(); loadV()
    c("tag of this launch: T = G + golden ratio (64 bit)")
    e(f"v_readlane_b32 s{sDB}, v{vFL}, 0")
    e(f"v_readlane_b32 s{sDB+1}, v{vFL}, 1")
    e(f"v_and_b32 v{vT0}, 1, v{vLANE}")
    e(f"s_add_u32 s{sDB}, s{sDB}, 0x7f4a7c15")
    e(f"s_addc_u32 s{sDB+1}, s{sDB+1}, 0x9e3779b9")
    e(f"v_cmp_eq_u32 vcc, 1, v{vT0}")
    e(f"v_mov_b32 v{vTG2}, s{sDB}")
    e(f"v_mov_b32 v{vTG2+1}, s{sDB+1}")
    e(f"v_cndmask_b32 v{vTAG}, v{vTG2}, v{vTG2+1}, vcc")
    e(f"s_lshl_b32 s{sTMP}, s{sPART}, 3")
    e(f"s_add_u32 s{sTMP}, s{sTMP}, s{sFOFF}")
    c("stores acknowledged -> raise this wave's flag")
    e("s_waitcnt vmcnt(4) lgkmcnt(0)")
    pstamp(29)
    e("s_mov_b64 exec, 1")
    e(f"buffer_store_dwordx2 {vr(vTG2,2)}, v{vFA}, s[{sWS}:{sWS+3}], s{sTMP} offen offset:8 sc1")
    e("s_mov_b64 exec, -1")
    e(f"s_mov_b32 s{sSTG}, 3")
    pstamp(10)
    e("s_barrier")
else:
    e(f"s_mov_b32 s{sSTG}, 2")
e("L_ploop:")
if COOP:
    c("is the normalised chunk of this stage published (by part idx-2)?  bounded polling, else normalise locally")
    e(f"s_mov_b32 s{sCNT}, {NPOLL}")
    e("L_poll:")
    e(f"s_lshl_b32 s{sTMP}, s{sIDX}, 1")
    e(f"s_sub_u32 s{sTMP}, s{sTMP}, 4")
    e(f"s_bitcmp1_b32 s{sFLG}, s{sTMP}")
    e("s_cbranch_scc1 L_ready")
    e(f"s_cmp_eq_u32 s{sCNT}, 0")
    e("s_cbranch_scc1 L_local")
    e(f"s_sub_u32 s{sCNT}, s{sCNT}, 1")
    poll()
    e("s_branch L_poll")
    e("L_local:")
    loadK()
    e("s_waitcnt vmcnt(0)")
    pnorm(RAW)
    e("s_branch L_have")
    e("L_ready:")
    e(f"s_add_u32 s{sTMP}, s{sWOFF}, s{sCH}")
    for j in range(4): e(f"buffer_load_dwordx4 {vr(PK+4*j,4)}, v{vG16}, s[{sWS}:{sWS+3}], s{sTMP} offen offset:{1024*j} sc1")
    e("s_waitcnt vmcnt(0)")
    e("L_have:")
    if STAMP == 1:
        st_issue(); e("s_waitcnt lgkmcnt(0)"); e(f"s_add_u32 s56, s{sSTG}, 20"); e("s_mov_b32 m0, s56"); st_put("m0")
        e(f"s_add_u32 s56, s{sSTG}, 40"); e("s_mov_b32 m0, s56"); e(f"v_writelane_b32 v{vST}, s{sCNT}, m0")
    advance(2); wrK()
    e(f"s_cmp_eq_u32 s{sSTG}, 7")
    e("s_cbranch_scc1 L_plast")
    loadV()
    e(f"s_add_u32 s{sSTG}, s{sSTG}, 1")
    e("s_waitcnt lgkmcnt(0)")
else:
    e("s_waitcnt vmcnt(4)")
    pnorm(RAW); advance(2); wrK()
    e(f"s_cmp_eq_u32 s{sSTG}, 7")
    e("s_cbranch_scc1 L_plast")
    loadK(); loadV()
    e(f"s_add_u32 s{sSTG}, s{sSTG}, 1")
    e("s_waitcnt vmcnt(8) lgkmcnt(0)")
if STAMP == 1:
    st_issue(); e("s_waitcnt lgkmcnt(0)"); e(f"s_add_u32 s56, s{sSTG}, 7"); e("s_mov_b32 m0, s56"); st_put("m0")
e("s_barrier")
e("s_branch L_ploop")
e("L_plast:")
e("s_waitcnt vmcnt(0) lgkmcnt(0)")
e("s_barrier")
if COOP:
    c("part 0: once every part has raised its flag (so has read G), advance the generation for the next launch")
    e(f"s_cmp_lg_u32 s{sPART}, 0")
    e("s_cbranch_scc1 L_pend")
    e("L_fin:")
    e(f"s_and_b32 s{sTMP}, s{sFLG}, 0x5555")
    e(f"s_cmp_eq_u32 s{sTMP}, 0x5555")
    e("s_cbranch_scc1 L_bump")
    poll()
    e("s_branch L_fin")
    e("L_bump:")
    e("s_mov_b64 exec, 1")
    e(f"buffer_store_dwordx2 {vr(vTG2,2)}, v{vFA}, s[{sWS}:{sWS+3}], s{sFOFF} offen sc1")
    e("s_mov_b64 exec, -1")
    e("L_pend:")
if STAMP:
    stamp(18)
    e(f"s_add_u32 s{sTMP}, s{sWAVE}, 8")
    st_flush(sTMP)
e("s_endpgm")

c("===== consumer waves 4..11 =====")
e("L_consumer:")
e(f"s_sub_u32 s{sWAVE}, s{sWAVE}, 4")
e(f"s_lshl_b32 s{sW}, s{sWAVE}, 11")
e(f"s_lshr_b32 s{sPART}, s2, 5")
e(f"s_lshl_b32 s{sTMP}, s{sPART}, 14")
e(f"s_add_u32 s{sQOFF}, s{sHEAD}, s{sTMP}")
e(f"s_add_u32 s{sQOFF}, s{sQOFF}, s{sW}")
e(f"s_lshr_b32 s{sTMP2}, s3, 1")
e(f"s_lshl_b32 s{sTMP2}, s{sTMP2}, 2")
e("s_waitcnt lgkmcnt(0)")
if STAMP:
    e(f"v_mov_b32 v{vST}, 0"); e(f"v_mov_b32 v{vST2}, 0"); st_put(0)
e(f"s_mov_b64 s[{sQ}:{sQ+1}], s[4:5]")
e(f"buffer_load_dwordx4 {vr(SA,4)}, v{vG16}, s[{sQ}:{sQ+3}], s{sQOFF} offen {QFLAGS}")
e(f"buffer_load_dwordx4 {vr(SA+4,4)}, v{vG16}, s[{sQ}:{sQ+3}], s{sQOFF} offen offset:1024 {QFLAGS}")
e(f"s_load_dword s{sT}, s[10:11], s{sTMP2}")
e(f"s_mov_b64 s[{sK}:{sK+1}], s[6:7]")
e(f"s_mov_b64 s[{sO}:{sO+1}], s[12:13]")
ua_consts()
c("K' read: group*8192 + lane*16")
e(f"s_and_b32 s{sTMP}, s{sWAVE}, 4")
e(f"s_lshl_b32 s{sTMP}, s{sTMP}, 11")
e(f"v_add_u32 v{vKRl}, s{sTMP}, v{vG16}")
c("V read: (8*hA + (i>>2))*64 + dhalf*32 + (i&3)*8 + 16384 + group*8192")
e(f"v_lshrrev_b32 v{vT0}, 5, v{vLANE}")
e(f"v_lshlrev_b32 v{vT0}, 9, v{vT0}")
e(f"v_bfe_u32 v{vT1}, v{vLANE}, 2, 2")
e(f"v_lshl_add_u32 v{vT0}, v{vT1}, 6, v{vT0}")
e(f"v_bfe_u32 v{vT1}, v{vLANE}, 4, 1")
e(f"v_lshl_add_u32 v{vT0}, v{vT1}, 5, v{vT0}")
e(f"v_and_b32 v{vT1}, 3, v{vLANE}")
e(f"v_lshl_add_u32 v{vT0}, v{vT1}, 3, v{vT0}")
e(f"s_add_u32 s{sTMP}, s{sTMP}, 16384")
e(f"v_add_u32 v{vVRl}, s{sTMP}, v{vT0}")
e(f"v_mov_b32 v{vKR}, v{vKRl}")
e(f"v_mov_b32 v{vVR}, v{vVRl}")
e(f"v_mov_b32 v{vIDX}, 0xdddddddd")
c("Q' write: LDS_Q + w*QSTR + (l&3)*544 + (l>>2)*16 ; read: LDS_Q + (w&3)*QSTR + (l>>5)*544 + (l&31)*16")
e(f"s_mul_i32 s{sTMP}, s{sWAVE}, {QSTR}")
e(f"s_add_u32 s{sTMP}, s{sTMP}, {LDS_Q}")
e(f"v_mul_u32_u24 v{vT0}, 544, v{vT1}")
e(f"v_lshrrev_b32 v{vT1}, 2, v{vLANE}")
e(f"v_lshl_add_u32 v{vT0}, v{vT1}, 4, v{vT0}")
e(f"v_add_u32 v{vQW}, s{sTMP}, v{vT0}")
e(f"v_lshrrev_b32 v{vT1}, 5, v{vLANE}")
e(f"v_lshl_add_u32 v{vT0}, v{vT1}, 5, v{vG16}")
e(f"v_add_u32 v{vQR}, s{sTMP}, v{vT0}")
e(f"s_xor_b32 s{sTMP2}, s{sWAVE}, 4")
e(f"s_mul_i32 s{sTMP2}, s{sTMP2}, {QSTR}")
e(f"s_add_u32 s{sTMP2}, s{sTMP2}, {LDS_Q}")
e(f"v_add_u32 v{vT3}, s{sTMP2}, v{vT0}")
c("row-sum selector: only rows 0 (q 0..15) and 4 (q 16..31) carry ones")
e(f"v_and_b32 v{vT0}, 15, v{vLANE}")
e(f"v_mov_b32 v{vT1}, 0x3f803f80")
e(f"v_cmp_eq_u32 vcc, 0, v{vT0}")
e("s_nop 1")
e(f"v_cndmask_b32 v{ONES}, 0, v{vT1}, vcc")
e(f"v_cmp_eq_u32 vcc, 4, v{vT0}")
e(f"v_mov_b32 v{ONES+1}, v{ONES}")
e("s_nop 0")
e(f"v_cndmask_b32 v{ONES+2}, 0, v{vT1}, vcc")
e(f"v_mov_b32 v{ONES+3}, v{ONES+2}")
c("epilogue addresses")
e(f"s_lshl_b32 s{sTMP}, s{sWAVE}, 13")
e(f"s_xor_b32 s{sTMP}, s{sTMP}, 0x8000")
e(f"v_add_u32 v{vRED}, s{sTMP}, v{vG16}")
e(f"v_and_b32 v{vT0}, 31, v{vLANE}")
e(f"v_lshlrev_b32 v{vT0}, 6, v{vT0}")
e(f"v_lshrrev_b32 v{vT1}, 5, v{vLANE}")
e(f"v_lshl_add_u32 v{vOUT}, v{vT1}, 4, v{vT0}")
zero(list(range(OA, OA+16)) + list(range(OB, OB+16)) + list(range(LA, LA+4)) + list(range(LB, LB+4)) + list(range(VF1, VF1+4)))
e("s_waitcnt lgkmcnt(0)")
e(f"s_lshl_b32 s{sTMP}, s{sT}, 16")
e(f"s_and_b32 s{sTMP2}, s{sT}, 0xffff0000")
e("s_bitcmp1_b32 s3, 0")
e(f"s_cselect_b32 s{sT}, s{sTMP2}, s{sTMP}")
e(f"v_mov_b32 v{vTL}, 0x3fb8aa3b")
e(f"v_mul_f32 v{vTL}, s{sT}, v{vTL}")
e(f"v_or_b32 v{CA}, 0x80000000, v{vTL}")
e(f"v_mov_b32 v{CA+1}, v{CA}")
for j in range(2, 32, 2): e(f"v_mov_b64 {vr(CA+j,2)}, {vr(CA,2)}")
e(f"s_mov_b32 s{sSTG}, 0")
e(f"s_mov_b32 s{sSLOT}, 32768")
stamp(1)
c("Q tile: rows 16j + (l>>2), 8 elements per lane and j")
amp("pre")
if AMP.startswith("skew"):
    e("s_load_dwordx2 s[80:81], s[0:1], 40")
    e("s_mov_b32 s82, 256"); e("s_mov_b32 s83, 0x00020000")
    e(f"s_add_u32 s84, s2, s{sWAVE}")
    e("s_cmp_lg_u32 s84, 0"); e("s_cbranch_scc1 L_noskew")
    e("s_waitcnt lgkmcnt(0)")
    e(f"v_mov_b32 v{vT0}, 0"); e(f"v_mov_b32 v{vT1}, s72")
    e(f"buffer_store_dword v{vT1}, v{vT0}, s[80:83], 0 offen sc1")
    e("L_noskew:")
    e("s_waitcnt lgkmcnt(0)")
e("s_waitcnt vmcnt(0)")
amp("q")
stamp(2)
unpack(SA, SB)
dots(vT0, SA, 4); dots(vT1, SA+4, 4)
e("s_nop 1")
for qp in ("[1,0,3,2]", "[2,3,0,1]"):
    e(f"v_add_f32_dpp v{vT0}, v{vT0}, v{vT0} quad_perm:{qp} row_mask:0xf bank_mask:0xf")
    e("s_nop 0")
    e(f"v_add_f32_dpp v{vT1}, v{vT1}, v{vT1} quad_perm:{qp} row_mask:0xf bank_mask:0xf")
    if qp == "[1,0,3,2]": e("s_nop 0")
e(f"v_sqrt_f32 v{vT0}, v{vT0}")
e(f"v_sqrt_f32 v{vT1}, v{vT1}")
e(f"v_add_f32 v{vT0}, 0x358637bd, v{vT0}")
e(f"v_add_f32 v{vT1}, 0x358637bd, v{vT1}")
e(f"v_rcp_f32 v{vT0}, v{vT0}")
e(f"v_rcp_f32 v{vT1}, v{vT1}")
e(f"v_mul_f32 v{vT2}, v{vT0}, v{vTL}")
e(f"v_mul_f32 v{vT4}, v{vT1}, v{vTL}")
scale_pack(SB, 4, vT2, SA+8)
e(f"ds_write_b128 v{vQW}, {vr(SA+8,4)}")
scale_pack(SB+8, 4, vT4, SA+12)
e(f"ds_write_b128 v{vQW}, {vr(SA+12,4)} offset:256")
zero(range(SB+8, SB+16))
stamp(3)
e("s_waitcnt lgkmcnt(0)")
e("s_barrier")
e(f"ds_read_b128 {vr(QA,4)}, v{vT3}")
e(f"ds_read_b128 {vr(QA+4,4)}, v{vT3} offset:1088")
c("fast path check: |t| <= 16")
e(f"s_and_b32 s{sTMP}, s{sT}, 0x7fffffff")
e(f"s_cmp_le_u32 s{sTMP}, 0x41800000")
e("s_cbranch_scc0 L_maxpass")
e("L_start:")
rdK(0)
e(f"ds_read_b128 {vr(QB,4)}, v{vQR}")
e(f"ds_read_b128 {vr(QB+4,4)}, v{vQR} offset:1088")
rdV(VF0, 0, 0)
stamp(5)
e("s_waitcnt lgkmcnt(4)")
for s in qk(SA, QA, CA): e(s)
e("s_waitcnt lgkmcnt(2)")
e("s_nop 7")
e("s_nop 3")
stamp(6)
amp("loop")
e(".p2align 6")
e("L_stage:")
for kt in range(4):
    slotA(kt)
    if kt == 3:
        e(f"s_cmp_eq_u32 s{sSTG}, 7")
        e("s_cbranch_scc1 L_last")
    slotB(kt)
    if kt == BARAT: e("s_barrier")
e(f"s_add_u32 s{sSTG}, s{sSTG}, 1")
e(f"s_add_u32 s{sSLOT}, s{sSLOT}, 32768")
e(f"s_and_b32 s{sSLOT}, s{sSLOT}, 0x1ffff")
e("s_branch L_stage")
e("L_last:")
amp("last")
slotB(3, last=True)
e(f"v_xor_b32 v{vT0}, 0x8000, v{vRED}")
e("s_waitcnt lgkmcnt(0)")
e(pv(OB, VF1, SB+8))
e(sm(LB, SB+8))
stamp(16)
e("s_barrier")
e(f"ds_read_b32 v{LA}, v{vT0} offset:4096")
for j in range(4): e(f"ds_read_b128 {vr(OA+4*j,4)}, v{vT0} offset:{1024*j}")
e("s_nop 3")
e("s_waitcnt lgkmcnt(4)")
e(f"v_add_f32 v{LA}, v{LA}, v{LB}")
e(f"v_rcp_f32 v{vT2}, v{LA}")
e("s_nop 0")
e(f"v_mov_b32 v{vT1}, v{vT2}")
PKo = SA
for j in range(4):
    e(f"s_waitcnt lgkmcnt({3-j})")
    for i in range(2):
        r = 4*j + 2*i
        e(f"v_pk_add_f32 {vr(OA+r,2)}, {vr(OA+r,2)}, {vr(OB+r,2)}")
    if j == 0: e(f"v_permlane32_swap_b32 v{vT2}, v{vT1}")
for i in range(8):
    e(f"v_pk_mul_f32 {vr(OA+2*i,2)}, {vr(OA+2*i,2)}, {vr(vT2,2)} op_sel_hi:[1,0]")
for i in range(8):
    e(f"v_cvt_pk_bf16_f32 v{PKo+i}, v{OA+2*i}, v{OA+2*i+1}")
    if i == 5:
        e(f"v_permlane32_swap_b32 v{PKo+0}, v{PKo+2}")
        e(f"v_permlane32_swap_b32 v{PKo+1}, v{PKo+3}")
e(f"buffer_store_dwordx4 {vr(PKo,4)}, v{vOUT}, s[{sO}:{sO+3}], s{sQOFF} offen {STFLAGS}")
e("s_nop 0")
e(f"v_permlane32_swap_b32 v{PKo+4}, v{PKo+6}")
e(f"v_permlane32_swap_b32 v{PKo+5}, v{PKo+7}")
e("s_nop 1")
e(f"buffer_store_dwordx4 {vr(PKo+4,4)}, v{vOUT}, s[{sO}:{sO+3}], s{sQOFF} offen offset:32 {STFLAGS}")
if STAMP:
    stamp(17)
    e("s_waitcnt vmcnt(0)")
    stamp(18)
    st_flush(sWAVE)
if AMP:
    e("s_waitcnt vmcnt(0)")
    amp("end")
    e("s_memrealtime s[76:77]"); e("s_waitcnt lgkmcnt(0)")
    if AMP.startswith("skew"):
        e("s_load_dwordx2 s[80:81], s[0:1], 40")
        e("s_mov_b32 s82, 256"); e("s_mov_b32 s83, 0x00020000")
        e("s_cmp_lt_u32 s2, 240"); e("s_cbranch_scc1 L_end")
        e(f"s_cmp_lg_u32 s{sWAVE}, 0"); e("s_cbranch_scc1 L_end")
        e("s_waitcnt lgkmcnt(0)")
        e(f"v_mov_b32 v{vT0}, 0")
        e(f"buffer_load_dword v{vT1}, v{vT0}, s[80:83], 0 offen sc1")
        e("s_waitcnt vmcnt(0)")
        e(f"v_readfirstlane_b32 s84, v{vT1}")
        e("s_mov_b32 s74, s72"); e("s_mov_b32 s72, s84")
        e("s_sub_u32 s85, s74, s72"); e("s_cmp_gt_u32 s85, 2000"); e("s_cbranch_scc1 L_end")
    e("s_sub_u32 s74, s74, s72")
    e(f"s_mul_i32 s74, s74, {AMP.split(',')[1]}")
    e("L_amp:")
    e("s_sleep 2")
    e("s_memrealtime s[78:79]"); e("s_waitcnt lgkmcnt(0)")
    e("s_sub_u32 s78, s78, s76")
    e("s_cmp_lt_u32 s78, s74")
    e("s_cbranch_scc1 L_amp")
e("L_end:")
e("s_endpgm")

c("|t| large (or NaN): find the true row max of the logits first, then run the main loop with C = -max")
e("L_maxpass:")
e(f"ds_read_b128 {vr(QB,4)}, v{vQR}")
e(f"ds_read_b128 {vr(QB+4,4)}, v{vQR} offset:1088")
c("lane (key=l&31,h=l>>5): frag i = bytes key*64 + i*32 + h*16")
e(f"s_mov_b32 s{sTMP}, s{sHEAD}")
e(f"s_mov_b32 s{sTMP2}, 0")
e(f"v_mov_b32 v{vT3}, 0xff800000")
e(f"v_mov_b32 v{vT4}, 0xff800000")
e("s_waitcnt lgkmcnt(0)")
e("L_maxloop:")
e(f"buffer_load_dwordx4 {vr(SB,4)}, v{vOUT}, s[{sK}:{sK+3}], s{sTMP} offen")
e(f"buffer_load_dwordx4 {vr(SB+4,4)}, v{vOUT}, s[{sK}:{sK+3}], s{sTMP} offen offset:32")
e("s_waitcnt vmcnt(0)")
unpack(SB, OA)
dots(vT0, SB, 8)
e("s_nop 2")
e(f"v_mov_b32 v{vT1}, v{vT0}"); e("s_nop 1")
e(f"v_permlane32_swap_b32 v{vT0}, v{vT1}"); e("s_nop 1")
e(f"v_add_f32 v{vT0}, v{vT0}, v{vT1}")
e(f"v_sqrt_f32 v{vT0}, v{vT0}"); e("s_nop 0")
e(f"v_add_f32 v{vT0}, 0x358637bd, v{vT0}")
e(f"v_rcp_f32 v{vT2}, v{vT0}"); e("s_nop 0")
scale_pack(OA, 8, vT2, OB)
e("s_nop 1")
for S, Q in ((CA, QA), (CB, QB)):
    e(f"v_mfma_f32_32x32x16_bf16 {vr(S,16)}, {vr(OB,4)}, {vr(Q,4)}, 0")
    e(f"v_mfma_f32_32x32x16_bf16 {vr(S,16)}, {vr(OB+4,4)}, {vr(Q+4,4)}, {vr(S,16)}")
e("s_nop 15")
for S, M in ((CA, vT3), (CB, vT4)):
    for j in range(8): e(f"v_max3_f32 v{M}, v{S+2*j}, v{S+2*j+1}, v{M}")
e(f"s_add_u32 s{sTMP}, s{sTMP}, 2048")
e(f"s_add_u32 s{sTMP2}, s{sTMP2}, 1")
e(f"s_cmp_lt_u32 s{sTMP2}, 64")
e("s_cbranch_scc1 L_maxloop")
for C, M in ((CA, vT3), (CB, vT4)):
    e(f"v_mov_b32 v{vT0}, v{M}")
    e("s_nop 1")
    e(f"v_permlane32_swap_b32 v{vT0}, v{M}")
    e("s_nop 1")
    e(f"v_max_f32 v{M}, v{M}, v{vT0}")
    e(f"v_xor_b32 v{C}, 0x80000000, v{M}")
    for j in range(1, 16): e(f"v_mov_b32 v{C+j}, v{C}")
zero(list(range(OA, OA+16)) + list(range(OB, OB+16)))
e("s_branch L_start")

nv = max(136, (NV + 7) // 8 * 8)
src = HEADER + f"; @launch grid=(256,1,1) block=(768,1,1) lds={LDS_TOTAL}\n" + f""".amdgcn_target "amdgcn-amd-amdhsa--gfx950"
.text
.globl {NAME}
.p2align 8
.type {NAME},@function
""" + "\n".join(L) + f"""
.section .rodata,"a"
.p2align 6
.amdhsa_kernel {NAME}
  .amdhsa_next_free_vgpr {nv}
  .amdhsa_next_free_sgpr 88
  .amdhsa_accum_offset {nv}
  .amdhsa_group_segment_fixed_size 0
  .amdhsa_kernarg_size 56
  .amdhsa_user_sgpr_count 2
  .amdhsa_user_sgpr_kernarg_segment_ptr 1
  .amdhsa_system_sgpr_workgroup_id_x 1
.end_amdhsa_kernel
"""
open(sys.argv[1], "w").write(src)
print("vgprs", NV, "->", nv)
```

```python
import sys
OPT = dict(a.split("=") for a in sys.argv[2:] if "=" in a)
def opt(name, default): return type(default)(OPT.get(name, default))
def flags(name, default): return OPT.get(name, default).replace("+", " ").replace("none", "")
STAMP = opt("stamp", 0)
PRIO = OPT.get("prio", "2103")
B1 = opt("b1", 2)
K1AT = opt("k1at", 0)
PPRIO = opt("pprio", 3)
NPOLL = opt("npoll", 8)
CZERO = opt("czero", 0)
STFLAGS = flags("stflags", "nt"); QFLAGS = flags("qflags", "nt"); PUBFL = flags("pubfl", "none")
KDMA = opt("kdma", 1)
OWNISS = opt("owniss", 1)
OWNAT = opt("ownat", 0)
FULL = opt("full", 1)
XFLAG = opt("xflag", 1)
BARAT = opt("barat", 2)

HEADER = open("standalone__qk_norm__prompt.s.ref").read().split("; Override launch")[0]
NAME = "standalone__qk_norm__prompt_kernel"
L = []
def e(s=""): L.append("    " + s.rstrip() if s and not s.endswith(":") else s)
def c(s): L.append("    ; " + s)

class VA:
    def __init__(s, n=1): s.n = n
    def get(s, k=1, al=1):
        s.n = (s.n + al - 1) // al * al
        b = s.n; s.n += k; return b
def vr(b, n): return f"v[{b}:{b+n-1}]"
va = VA()
vLANE = va.get(); vG16 = va.get(); vT0 = va.get(); vT1 = va.get(); vT3 = va.get(); vT2 = va.get(2, 2); vT4 = va.get(2, 2)
vST = va.get(); vST2 = va.get()
UA = va.get(8, 4)
base = va.n
vKR = va.get(); vVR = va.get(); vKRl = va.get(); vVRl = va.get(); vIDX = va.get(); vTL = va.get(); vRED = va.get(); vOUT = va.get()
vQR = va.get(); vQW = va.get(); vXF = va.get(); vRD = va.get()
KF = UA
ONES = va.get(4, 4)
QA = va.get(8, 4); QB = va.get(8, 4)
VF0 = va.get(4, 4); VF1 = va.get(4, 4)
LA = va.get(4, 4); LB = va.get(4, 4)
SA = va.get(16, 4); SB = va.get(16, 4)
OA = va.get(16, 4); OB = va.get(16, 4)
CA = va.get(16, 4); CB = va.get(16, 4)
NV = va.n
vp = VA(base)
vG64 = vp.get(); vKWl = vp.get(); vKW = vp.get(); vFA = vp.get(); vFL = vp.get(); vTAG = vp.get(); vTG2 = vp.get(2, 2); vPUB = vp.get()
RAW = vp.get(16, 4); RAW2 = vp.get(16, 4); UNP = vp.get(32, 4); PK = vp.get(16, 4)
assert vp.n <= NV and NV <= 168

sQ, sK, sV, sO, sWS = 16, 20, 24, 28, 12
sHEAD = 32; sPART = 33; sWAVE = 34; sSTG = 35; sT = 36; sGOFF = 37; sSLOT = 38; sCNT = 39
sTMP = 40; sTMP2 = 41; sW = 42; sCH = 43; sM0V = 44; sQOFF = 45; sFLG = 46; sWOFF = 47
sFOFF = 4; sIDX = 5; sC0 = 6; sCUR = 7; sTAG = 8; sTP = 10
LDS_Q = 131072; QSTR = 2176; LDS_XF = LDS_Q + 8 * QSTR; LDS_TOTAL = LDS_XF + 64
WSK = 0x400000; WSF = 0x800000

def st_issue(force=False):
    if STAMP == 1 or (STAMP and force):
        e("s_memtime s[52:53]"); e("s_memrealtime s[54:55]")
def st_put(lane):
    if STAMP == 1 or (STAMP and lane in (0, 18)):
        e(f"v_writelane_b32 v{vST}, s52, {lane}"); e(f"v_writelane_b32 v{vST2}, s54, {lane}")
def stamp(lane):
    if STAMP == 1 or (STAMP and lane == 18):
        st_issue(True); e("s_waitcnt lgkmcnt(0)"); st_put(lane)
def stamp_idx(add):
    if STAMP == 1:
        st_issue(); e("s_waitcnt lgkmcnt(0)"); e(f"s_add_u32 s56, s{sSTG}, {add}"); e("s_mov_b32 m0, s56"); st_put("m0")
def st_init():
    if STAMP:
        e(f"v_mov_b32 v{vST}, 0"); e(f"v_mov_b32 v{vST2}, 0"); st_put(0)
def st_flush(slot_sgpr):
    if STAMP:
        e(f"s_mul_i32 s56, s2, 12"); e(f"s_add_u32 s56, s56, s{slot_sgpr}"); e(f"s_lshl_b32 s56, s56, 9")
        e(f"v_lshlrev_b32 v{vT0}, 2, v{vLANE}")
        e(f"buffer_store_dword v{vST}, v{vT0}, s[{sWS}:{sWS+3}], s56 offen")
        e(f"buffer_store_dword v{vST2}, v{vT0}, s[{sWS}:{sWS+3}], s56 offen offset:256")

def unpack(raw, dst):
    e(f"v_mfma_f32_32x32x16_bf16 {vr(dst,16)}, {vr(UA,4)}, {vr(raw,4)}, 0")
    e(f"v_mfma_f32_32x32x16_bf16 {vr(dst,16)}, {vr(UA+4,4)}, {vr(raw+4,4)}, {vr(dst,16)}")
def dots(acc, raw, n):
    e(f"v_dot2_f32_bf16 v{acc}, v{raw}, v{raw}, 0")
    for j in range(1, n): e(f"v_dot2_f32_bf16 v{acc}, v{raw+j}, v{raw+j}, v{acc}")
def scale_pack(unp, n, sc, pk):
    for j in range(n): e(f"v_pk_mul_f32 {vr(unp+2*j,2)}, {vr(unp+2*j,2)}, {vr(sc,2)} op_sel_hi:[1,0]")
    for j in range(n): e(f"v_cvt_pk_bf16_f32 v{pk+j}, v{unp+2*j}, v{unp+2*j+1}")
def zero(regs):
    for r in list(regs)[::2]: e(f"v_mov_b64 {vr(r,2)}, 0")

def qk(S, Q, C):
    return [f"v_mfma_f32_32x32x16_bf16 {vr(S,16)}, {vr(KF,4)}, {vr(Q,4)}, " + ("0" if CZERO else vr(C,16)),
            f"v_mfma_f32_32x32x16_bf16 {vr(S,16)}, {vr(KF+4,4)}, {vr(Q+4,4)}, {vr(S,16)}"]
def pv(O, VF, S): return f"v_smfmac_f32_32x32x32_bf16 {vr(O,16)}, {vr(VF,4)}, {vr(S,8)}, v{vIDX}"
def sm(Lr, S): return f"v_smfmac_f32_16x16x64_bf16 {vr(Lr,4)}, {vr(ONES,4)}, {vr(S,8)}, v{vIDX}"
def ex(S, a, b):
    for j in range(a, b): e(f"v_exp_f32 v{S+j}, v{S+j}")
def rdK(t):
    e(f"ds_read_b128 {vr(KF,4)}, v{vKR} offset:{t*2048}")
    e(f"ds_read_b128 {vr(KF+4,4)}, v{vKR} offset:{t*2048+1024}")
def rdV(VF, t, half):
    e(f"ds_read_b64_tr_b16 {vr(VF,2)}, v{vVR} offset:{t*2048+half*1024}")
    e(f"ds_read_b64_tr_b16 {vr(VF+2,2)}, v{vVR} offset:{t*2048+half*1024+256}")
def rdX():
    if XFLAG: e(f"ds_read_b32 v{vT3}, v{vXF}")
    e(f"ds_read_b32 v{LA}, v{vRD} offset:4096")
    for j in range(4): e(f"ds_read_b128 {vr(OA+4*j,4)}, v{vRD} offset:{1024*j}")

def slotA(kt):
    c(f"--- slot A kt={kt}")
    if PRIO != "none" and (kt == 0 or PRIO[kt] != PRIO[kt-1]): e(f"s_setprio {PRIO[kt]}")
    q = qk(SB, QB, CB)
    ex(SA, 0, 2); e(pv(OB, VF1, SB+8)); ex(SA, 2, 5); e(sm(LB, SB+8))
    rdV(VF1, kt, 1)
    ex(SA, 5, 7)
    e(q[0]); ex(SA, 7, 10); e(q[1])
    if kt == 3: e(f"v_add_u32 v{vKR}, s{sSLOT}, v{vKRl}")
    rdK((kt + 1) & 3)
    ex(SA, 10, 13)
    e("s_waitcnt lgkmcnt(4)")
    e(pv(OA, VF0, SA)); ex(SA, 13, 16); e(sm(LA, SA))
def slotB(kt, last=False):
    c(f"--- slot B kt={kt}" + (" (last)" if last else ""))
    q = qk(SA, QA, CA)
    ex(SB, 0, 2)
    e("s_waitcnt lgkmcnt(2)")
    if kt == 3: st_issue()
    if STAMP == 3: st_issue(True)
    e(pv(OA, VF1, SA+8)); ex(SB, 2, 5); e(sm(LA, SA+8)); ex(SB, 5, 7)
    if not last or STAMP in (1, 3): e("s_waitcnt lgkmcnt(0)")
    if STAMP == 3:
        e(f"s_lshl2_add_u32 m0, s{sSTG}, {32+kt}")
        e(f"v_writelane_b32 v{vST}, s52, m0"); e(f"v_writelane_b32 v{vST2}, s54, m0")
    if kt == 3 and STAMP == 1:
        e(f"s_add_u32 s56, s{sSTG}, 8"); e(f"s_mov_b32 m0, s56"); st_put("m0")
    if last:
        ex(SB, 7, 10)
        e(pv(OB, VF0, SB))
        ex(SB, 10, 12)
        c("tile A is complete: hand its partial sums to the partner wave")
        for j in range(4): e(f"ds_write_b128 v{vRED}, {vr(OA+4*j,4)} offset:{1024*j}")
        e(f"ds_write_b32 v{vRED}, v{LA} offset:4096")
        if XFLAG:
            e(f"ds_write_b32 v{vQW}, v{vIDX}")
            rdX()
        ex(SB, 12, 13)
        e(sm(LB, SB))
        ex(SB, 13, 16)
        return
    e(q[0]); ex(SB, 7, 10); e(q[1])
    if kt == 3: e(f"v_add_u32 v{vVR}, s{sSLOT}, v{vVRl}")
    ex(SB, 10, 13)
    e(pv(OB, VF0, SB))
    rdV(VF0, (kt + 1) & 3, 0)
    ex(SB, 13, 16); e(sm(LB, SB))

def ua_consts():
    c("unpack selection matrices: lane (m=l&31,hA=l>>5): A_i has 1.0 at e=(m&3)+4*((m>>3)&1) iff (m>>4)==i and ((m>>2)&1)==hA")
    e(f"v_bfe_u32 v{vT0}, v{vLANE}, 2, 1")
    e(f"v_lshrrev_b32 v{vT1}, 5, v{vLANE}")
    e(f"v_cmp_eq_u32 vcc, v{vT0}, v{vT1}")
    e(f"v_and_b32 v{vT0}, 1, v{vLANE}")
    e(f"v_lshlrev_b32 v{vT0}, 4, v{vT0}")
    e(f"v_mov_b32 v{vT1}, 0x3f80")
    e(f"v_lshlrev_b32 v{vT1}, v{vT0}, v{vT1}")
    e(f"v_cndmask_b32 v{vT1}, 0, v{vT1}, vcc")
    e(f"v_bfe_u32 v{vT0}, v{vLANE}, 1, 1")
    e(f"v_bfe_u32 v{vT2}, v{vLANE}, 3, 2")
    e(f"v_lshl_add_u32 v{vT0}, v{vT2}, 1, v{vT0}")
    for r in range(8):
        e(f"v_cmp_eq_u32 vcc, {r}, v{vT0}")
        e("s_nop 1")
        e(f"v_cndmask_b32 v{UA+r}, 0, v{vT1}, vcc")
def loadK(dst, soff, fl=""):
    for j in range(4): e(f"buffer_load_dwordx4 {vr(dst+4*j,4)}, v{vG64}, s[{sK}:{sK+3}], s{soff} offen offset:{16*j} {fl}")
def loadV(soff):
    for j in range(4): e(f"buffer_load_dwordx4 v{vG16}, s[{sV}:{sV+3}], s{soff} offen offset:{1024*j} lds")

e(f"{NAME}:")
for s, off in ((sQ, 0), (sK, 8), (sV, 16), (sTP, 24), (sO, 32), (sWS, 48)):
    e(f"s_load_dwordx2 s[{s}:{s+1}], s[0:1], {off}")
st_issue(True)
e("s_cmp_ge_u32 s2, 256")
e("s_cbranch_scc1 L_end")
c("head = (wg&7)*4 + ((wg>>3)&3), part = wg>>5")
e(f"v_lshrrev_b32 v{vT0}, 6, v0")
e(f"v_and_b32 v{vLANE}, 63, v0")
e(f"v_readfirstlane_b32 s{sWAVE}, v{vT0}")
e("s_and_b32 s3, s2, 7")
e("s_lshl_b32 s3, s3, 2")
e(f"s_bfe_u32 s{sTMP}, s2, 0x20003")
e(f"s_add_u32 s3, s3, s{sTMP}")
e(f"s_lshl_b32 s{sHEAD}, s3, 17")
e(f"s_lshr_b32 s{sPART}, s2, 5")
e(f"v_lshlrev_b32 v{vG16}, 4, v{vLANE}")
e(f"s_mov_b32 s{sQ+2}, 0x400000")
e(f"s_mov_b32 s{sQ+3}, 0x00020000")
for s in (sK, sV, sO): e(f"s_mov_b64 s[{s+2}:{s+3}], s[{sQ+2}:{sQ+3}]")
e(f"s_mov_b32 s{sWS+2}, 0x804000"); e(f"s_mov_b32 s{sWS+3}, 0x00020000")
e(f"s_cmp_ge_u32 s{sWAVE}, 4")
e("s_cbranch_scc1 L_consumer")
c("producer: first loads K(0) V(0) K(1)")
QFIRST = opt("qfirst", 0)
if not QFIRST: e(f"s_setprio {PPRIO}")
e(f"s_lshl_b32 s{sW}, s{sWAVE}, 12")
e(f"s_add_u32 s{sHEAD}, s{sHEAD}, s{sW}")
e(f"s_and_b32 s{sC0}, s3, 7"); e(f"s_lshl_b32 s{sC0}, s{sC0}, 14")
e(f"s_add_u32 s{sGOFF}, s{sHEAD}, s{sC0}")
e(f"s_add_u32 s{sM0V}, s{sW}, 16384")
e(f"v_lshlrev_b32 v{vG64}, 6, v{vLANE}")
e(f"s_mov_b32 m0, s{sM0V}")
e(f"s_add_u32 s{sTMP2}, s{sC0}, 16384")
e(f"s_and_b32 s{sTMP2}, s{sTMP2}, 0x1ffff")
e(f"s_add_u32 s{sTMP2}, s{sTMP2}, s{sHEAD}")
e("s_waitcnt lgkmcnt(0)")
if QFIRST: e("s_nop 7")
loadK(RAW, sGOFF)
e(f"s_mov_b32 s{sCUR}, s{sGOFF}")
if B1 in (0, 1): loadV(sGOFF)
if B1 in (0, 2): loadK(RAW2, sTMP2)
if QFIRST: e(f"s_setprio {PPRIO}")
e("s_branch L_producer")

c("===== consumer waves 4..11 =====")
e("L_consumer:")
if QFIRST: e("s_setprio 2")
e(f"s_sub_u32 s{sWAVE}, s{sWAVE}, 4")
e(f"s_lshl_b32 s{sW}, s{sWAVE}, 11")
e(f"s_lshl_b32 s{sTMP}, s{sPART}, 14")
e(f"s_add_u32 s{sQOFF}, s{sHEAD}, s{sTMP}")
e(f"s_add_u32 s{sQOFF}, s{sQOFF}, s{sW}")
e(f"s_lshr_b32 s{sTMP2}, s3, 1")
e(f"s_lshl_b32 s{sTMP2}, s{sTMP2}, 2")
e("s_waitcnt lgkmcnt(0)")
e(f"buffer_load_dwordx4 {vr(SA,4)}, v{vG16}, s[{sQ}:{sQ+3}], s{sQOFF} offen {QFLAGS}")
e(f"buffer_load_dwordx4 {vr(SA+4,4)}, v{vG16}, s[{sQ}:{sQ+3}], s{sQOFF} offen offset:1024 {QFLAGS}")
e(f"s_load_dword s{sT}, s[{sTP}:{sTP+1}], s{sTMP2}")
st_init()
ua_consts()
c("K' read: group*8192 + lane*16")
e(f"s_and_b32 s{sTMP}, s{sWAVE}, 4")
e(f"s_lshl_b32 s{sTMP}, s{sTMP}, 11")
e(f"v_add_u32 v{vKRl}, s{sTMP}, v{vG16}")
c("V read: (8*hA + (i>>2))*64 + dhalf*32 + (i&3)*8 + 16384 + group*8192")
e(f"v_lshrrev_b32 v{vT0}, 5, v{vLANE}")
e(f"v_lshlrev_b32 v{vT0}, 9, v{vT0}")
e(f"v_bfe_u32 v{vT1}, v{vLANE}, 2, 2")
e(f"v_lshl_add_u32 v{vT0}, v{vT1}, 6, v{vT0}")
e(f"v_bfe_u32 v{vT1}, v{vLANE}, 4, 1")
e(f"v_lshl_add_u32 v{vT0}, v{vT1}, 5, v{vT0}")
e(f"v_and_b32 v{vT1}, 3, v{vLANE}")
e(f"v_lshl_add_u32 v{vT0}, v{vT1}, 3, v{vT0}")
e(f"s_add_u32 s{sTMP}, s{sTMP}, 16384")
e(f"v_add_u32 v{vVRl}, s{sTMP}, v{vT0}")
e(f"v_mov_b32 v{vKR}, v{vKRl}")
e(f"v_mov_b32 v{vVR}, v{vVRl}")
e(f"v_mov_b32 v{vIDX}, 0xdddddddd")
c("Q' write: LDS_Q + w*QSTR + (l&3)*544 + (l>>2)*16 ; read: LDS_Q + tile*QSTR + (l>>5)*544 + (l&31)*16")
e(f"s_mul_i32 s{sTMP}, s{sWAVE}, {QSTR}")
e(f"s_add_u32 s{sTMP}, s{sTMP}, {LDS_Q}")
e(f"v_mul_u32_u24 v{vT0}, 544, v{vT1}")
e(f"v_lshrrev_b32 v{vT1}, 2, v{vLANE}")
e(f"v_lshl_add_u32 v{vT0}, v{vT1}, 4, v{vT0}")
e(f"v_add_u32 v{vQW}, s{sTMP}, v{vT0}")
e(f"v_lshrrev_b32 v{vT1}, 5, v{vLANE}")
e(f"v_lshl_add_u32 v{vT0}, v{vT1}, 5, v{vG16}")
e(f"v_add_u32 v{vQR}, s{sTMP}, v{vT0}")
e(f"s_xor_b32 s{sTMP2}, s{sWAVE}, 4")
e(f"s_mul_i32 s{sTMP2}, s{sTMP2}, {QSTR}")
e(f"s_add_u32 s{sTMP2}, s{sTMP2}, {LDS_Q}")
e(f"v_add_u32 v{vT3}, s{sTMP2}, v{vT0}")
c("row-sum selector: only rows 0 (q 0..15) and 4 (q 16..31) carry ones")
e(f"v_and_b32 v{vT0}, 15, v{vLANE}")
e(f"v_mov_b32 v{vT1}, 0x3f803f80")
e(f"v_cmp_eq_u32 vcc, 0, v{vT0}")
e("s_nop 1")
e(f"v_cndmask_b32 v{ONES}, 0, v{vT1}, vcc")
e(f"v_cmp_eq_u32 vcc, 4, v{vT0}")
e(f"v_mov_b32 v{ONES+1}, v{ONES}")
e("s_nop 0")
e(f"v_cndmask_b32 v{ONES+2}, 0, v{vT1}, vcc")
e(f"v_mov_b32 v{ONES+3}, v{ONES+2}")
c("epilogue addresses")
e(f"s_lshl_b32 s{sTMP}, s{sWAVE}, 13")
e(f"v_add_u32 v{vRD}, s{sTMP}, v{vG16}")
e(f"v_xor_b32 v{vRED}, 0x8000, v{vRD}")
e(f"v_and_b32 v{vT0}, 31, v{vLANE}")
e(f"v_lshlrev_b32 v{vT0}, 6, v{vT0}")
e(f"v_lshrrev_b32 v{vT1}, 5, v{vLANE}")
e(f"v_lshl_add_u32 v{vOUT}, v{vT1}, 4, v{vT0}")
zero(list(range(OA, OA+16)) + list(range(OB, OB+16)) + list(range(LA, LA+4)) + list(range(LB, LB+4)) + list(range(VF1, VF1+4)))
if XFLAG:
    e(f"s_lshl_b32 s{sTMP}, s{sWAVE}, 2")
    e(f"s_add_u32 s{sTMP}, s{sTMP}, {LDS_XF}")
    e(f"v_mov_b32 v{vXF}, s{sTMP}")
e("s_waitcnt lgkmcnt(0)")
if XFLAG: e(f"ds_write_b32 v{vXF}, v{OA}")
e(f"s_lshl_b32 s{sTMP}, s{sT}, 16")
e(f"s_and_b32 s{sTMP2}, s{sT}, 0xffff0000")
e("s_bitcmp1_b32 s3, 0")
e(f"s_cselect_b32 s{sT}, s{sTMP2}, s{sTMP}")
e(f"v_mov_b32 v{vTL}, 0x3fb8aa3b")
e(f"v_mul_f32 v{vTL}, s{sT}, v{vTL}")
e(f"v_or_b32 v{CA}, 0x80000000, v{vTL}")
e(f"v_mov_b32 v{CA+1}, v{CA}")
for j in range(2, 32, 2): e(f"v_mov_b64 {vr(CA+j,2)}, {vr(CA,2)}")
zero(range(SB+8, SB+16))
e(f"s_mov_b32 s{sSTG}, 0")
e(f"s_mov_b32 s{sSLOT}, 32768")
e(f"s_and_b32 s{sT}, s{sT}, 0x7fffffff")
stamp(1)
c("Q tile: rows 16j + (l>>2), 8 elements per lane and j")
QU = QA
e("s_waitcnt vmcnt(0)")
stamp(2)
for j in range(4):
    e(f"v_dot2_f32_bf16 v{vT0}, v{SA+j}, v{SA+j}, " + ("0" if j == 0 else f"v{vT0}"))
    e(f"v_dot2_f32_bf16 v{vT1}, v{SA+4+j}, v{SA+4+j}, " + ("0" if j == 0 else f"v{vT1}"))
unpack(SA, QU)
for qp in ("[1,0,3,2]", "[2,3,0,1]"):
    e("s_nop 0")
    e(f"v_add_f32_dpp v{vT0}, v{vT0}, v{vT0} quad_perm:{qp} row_mask:0xf bank_mask:0xf")
    e(f"v_add_f32_dpp v{vT1}, v{vT1}, v{vT1} quad_perm:{qp} row_mask:0xf bank_mask:0xf")
e(f"v_sqrt_f32 v{vT0}, v{vT0}")
e(f"v_sqrt_f32 v{vT1}, v{vT1}")
e(f"v_add_f32 v{vT0}, 0x358637bd, v{vT0}")
e(f"v_add_f32 v{vT1}, 0x358637bd, v{vT1}")
e(f"v_rcp_f32 v{vT0}, v{vT0}")
e(f"v_rcp_f32 v{vT1}, v{vT1}")
e(f"v_mul_f32 v{vT2}, v{vT0}, v{vTL}")
e(f"v_mul_f32 v{vT4}, v{vT1}, v{vTL}")
scale_pack(QU, 4, vT2, SA+8)
e(f"ds_write_b128 v{vQW}, {vr(SA+8,4)}")
scale_pack(QU+8, 4, vT4, SA+12)
e(f"ds_write_b128 v{vQW}, {vr(SA+12,4)} offset:256")
stamp(3)
c("fast path check: |t| <= 16")
e(f"s_cmp_le_u32 s{sT}, 0x41800000")
e("s_waitcnt lgkmcnt(0)")
e("s_barrier")
e(f"ds_read_b128 {vr(QA,4)}, v{vT3}")
e(f"ds_read_b128 {vr(QA+4,4)}, v{vT3} offset:1088")
e("s_cbranch_scc0 L_maxpass")
e("L_start:")
rdK(0)
e(f"ds_read_b128 {vr(QB,4)}, v{vQR}")
e(f"ds_read_b128 {vr(QB+4,4)}, v{vQR} offset:1088")
rdV(VF0, 0, 0)
if XFLAG: e(f"v_xor_b32 v{vQW}, 16, v{vXF}")
stamp(5)
e("s_waitcnt lgkmcnt(4)")
for s in qk(SA, QA, CA): e(s)
e("s_waitcnt lgkmcnt(2)")
e("s_nop 7")
e("s_nop 2")
stamp(6)
e(".p2align 6")
e("L_stage:")
for kt in range(4):
    slotA(kt)
    if kt == 3:
        e("s_cbranch_scc1 L_last")
    slotB(kt)
    if kt == BARAT:
        e(f"s_cmp_eq_u32 s{sSTG}, 7")
        if XFLAG: e("s_cbranch_scc1 L_nobar")
        e("s_barrier")
        e("L_nobar:")
e(f"s_add_u32 s{sSTG}, s{sSTG}, 1")
e(f"s_add_u32 s{sSLOT}, s{sSLOT}, 32768")
e(f"s_and_b32 s{sSLOT}, s{sSLOT}, 0x1ffff")
e("s_branch L_stage")
e("L_last:")
slotB(3, last=True)
if XFLAG:
    e("s_waitcnt lgkmcnt(5)")
    e(f"v_readfirstlane_b32 s{sTMP}, v{vT3}")
    e(pv(OB, VF1, SB+8))
    e(sm(LB, SB+8))
    stamp(16)
    e("L_xwait:")
    e(f"s_cmp_lg_u32 s{sTMP}, 0")
    e("s_cbranch_scc1 L_xok")
    e("s_waitcnt lgkmcnt(0)")
    rdX()
    e("s_waitcnt lgkmcnt(5)")
    e(f"v_readfirstlane_b32 s{sTMP}, v{vT3}")
    e("s_branch L_xwait")
    e("L_xok:")
    e("s_nop 6")
else:
    e("s_nop 0")
    e("s_waitcnt lgkmcnt(0)")
    e(pv(OB, VF1, SB+8))
    e(sm(LB, SB+8))
    stamp(16)
    e("s_barrier")
    rdX()
    e("s_nop 3")
e("s_waitcnt lgkmcnt(4)")
e(f"v_add_f32 v{LA}, v{LA}, v{LB}")
e(f"v_rcp_f32 v{vT2}, v{LA}")
e("s_nop 0")
e(f"v_mov_b32 v{vT1}, v{vT2}")
PKo = SA
for j in range(4):
    e(f"s_waitcnt lgkmcnt({3-j})")
    for i in range(2):
        r = 4*j + 2*i
        e(f"v_pk_add_f32 {vr(OA+r,2)}, {vr(OA+r,2)}, {vr(OB+r,2)}")
    if j == 0: e(f"v_permlane32_swap_b32 v{vT2}, v{vT1}")
if FULL:
    c("lane -> (row l&15, 16-byte chunk 2*((l>>4)&1) + (l>>5))")
    e(f"v_and_b32 v{vT0}, 15, v{vLANE}")
    e(f"v_lshlrev_b32 v{vT0}, 6, v{vT0}")
    e(f"v_bfe_u32 v{vT1}, v{vLANE}, 4, 1")
    e(f"v_lshl_add_u32 v{vT0}, v{vT1}, 5, v{vT0}")
    e(f"v_lshrrev_b32 v{vT1}, 5, v{vLANE}")
    e(f"v_lshl_add_u32 v{vOUT}, v{vT1}, 4, v{vT0}")
for i in range(8):
    e(f"v_pk_mul_f32 {vr(OA+2*i,2)}, {vr(OA+2*i,2)}, {vr(vT2,2)} op_sel_hi:[1,0]")
for i in range(8):
    e(f"v_cvt_pk_bf16_f32 v{PKo+i}, v{OA+2*i}, v{OA+2*i+1}")
    if i == 5:
        e(f"v_permlane32_swap_b32 v{PKo+0}, v{PKo+2}")
        e(f"v_permlane32_swap_b32 v{PKo+1}, v{PKo+3}")
if FULL:
    e("s_nop 1")
    e(f"v_permlane32_swap_b32 v{PKo+4}, v{PKo+6}")
    e(f"v_permlane32_swap_b32 v{PKo+5}, v{PKo+7}")
    e("s_nop 1")
    for j in range(4): e(f"v_permlane16_swap_b32 v{PKo+j}, v{PKo+4+j}")
    e("s_nop 1")
    e(f"buffer_store_dwordx4 {vr(PKo,4)}, v{vOUT}, s[{sO}:{sO+3}], s{sQOFF} offen {STFLAGS}")
    e(f"buffer_store_dwordx4 {vr(PKo+4,4)}, v{vOUT}, s[{sO}:{sO+3}], s{sQOFF} offen offset:1024 {STFLAGS}")
else:
    e(f"buffer_store_dwordx4 {vr(PKo,4)}, v{vOUT}, s[{sO}:{sO+3}], s{sQOFF} offen {STFLAGS}")
    e("s_nop 0")
    e(f"v_permlane32_swap_b32 v{PKo+4}, v{PKo+6}")
    e(f"v_permlane32_swap_b32 v{PKo+5}, v{PKo+7}")
    e("s_nop 1")
    e(f"buffer_store_dwordx4 {vr(PKo+4,4)}, v{vOUT}, s[{sO}:{sO+3}], s{sQOFF} offen offset:32 {STFLAGS}")
if STAMP:
    stamp(17)
    e("s_waitcnt vmcnt(0)")
    stamp(18)
    st_flush(sWAVE)
e("L_end:")
e("s_endpgm")

c("===== producer waves 0..3: K tiles 2w,2w+1 and V tiles 2w,2w+1 of every chunk =====")
def pnorm(raw):
    acc = [vT0, vT1, vT4, vT4+1]
    for j in range(16):
        a_ = acc[j & 3]
        e(f"v_dot2_f32_bf16 v{a_}, v{raw+j}, v{raw+j}, " + ("0" if j < 4 else f"v{a_}"))
    unpack(raw, UNP); unpack(raw+8, UNP+16)
    e(f"v_add_f32 v{vT0}, v{vT0}, v{vT1}")
    e(f"v_add_f32 v{vT4}, v{vT4}, v{vT4+1}")
    e(f"v_add_f32 v{vT0}, v{vT0}, v{vT4}")
    e(f"v_sqrt_f32 v{vT0}, v{vT0}"); e("s_nop 0")
    e(f"v_add_f32 v{vT0}, 0x358637bd, v{vT0}")
    e(f"v_rcp_f32 v{vT2}, v{vT0}")
    e("s_nop 5")
    scale_pack(UNP, 16, vT2, PK)
def chunk_off():
    e(f"s_sub_u32 s{sTMP}, s{sIDX}, 6")
    e(f"s_cmp_ge_u32 s{sIDX}, 8")
    e(f"s_cselect_b32 s{sIDX}, s{sTMP}, s{sIDX}")
    e(f"s_lshl_b32 s{sCH}, s{sIDX}, 14")
    e(f"s_add_u32 s{sTMP}, s{sCH}, s{sC0}")
    e(f"s_and_b32 s{sTMP}, s{sTMP}, 0x1ffff")
    e(f"s_add_u32 s{sGOFF}, s{sHEAD}, s{sTMP}")
def wrK(addr, off=0):
    for j in range(4): e(f"ds_write_b128 v{addr}, {vr(PK+4*j,4)} offset:{off+512*j}")
def setm0(base_sgpr, add):
    if isinstance(add, int): e(f"s_add_u32 m0, s{base_sgpr}, {add}")
    else: e(f"s_add_u32 m0, s{base_sgpr}, {add}")
def poll():
    e(f"buffer_load_dword v{vFL}, v{vFA}, s[{sWS}:{sWS+3}], s{sFOFF} offen sc1")
    e("s_waitcnt vmcnt(0)")
    e(f"v_cmp_eq_u32 vcc, v{vFL}, v{vTAG}")
    e("s_nop 0")
    e(f"s_lshr_b32 s{sFLG}, vcc_lo, 2")
    e(f"s_lshr_b32 s{sTMP}, vcc_lo, 3")
    e(f"s_and_b32 s{sFLG}, s{sFLG}, s{sTMP}")
def own_issue():
    e(f"buffer_load_dword v{vFL}, v{vFA}, s[{sWS}:{sWS+3}], s{sFOFF} offen sc1")
    loadK(RAW, sGOFF, PUBFL)
e("L_producer:")
st_init()
c("hand-off line of (head, wave): dwords 0,1 = generation G, dwords 2+2p,3+2p = flag of part p")
e(f"s_lshl_b32 s{sFOFF}, s3, 2")
e(f"s_add_u32 s{sFOFF}, s{sFOFF}, s{sWAVE}")
e(f"s_lshl_b32 s{sFOFF}, s{sFOFF}, 7")
e(f"s_add_u32 s{sFOFF}, s{sFOFF}, {WSF}")
e(f"v_min_u32 v{vFA}, 17, v{vLANE}")
e(f"v_lshlrev_b32 v{vFA}, 2, v{vFA}")
e(f"s_add_u32 s{sWOFF}, s{sHEAD}, {WSK}")
ua_consts()
c("K' write address: tile (l>>5)*2048 + key*16 (+ chunk c*512)")
e(f"v_and_b32 v{vT0}, 31, v{vLANE}")
e(f"v_lshlrev_b32 v{vT0}, 4, v{vT0}")
e(f"v_lshrrev_b32 v{vT1}, 5, v{vLANE}")
e(f"v_lshl_add_u32 v{vPUB}, v{vT1}, 11, v{vT0}")
e(f"v_add_u32 v{vKWl}, s{sW}, v{vPUB}")
e(f"s_mov_b32 s{sFLG}, 0")
c("third stage: chunk index 2 + (part mod 6), then cyclically through 2..7")
e(f"s_add_u32 s{sIDX}, s{sPART}, 2")
chunk_off()
c("--- stage 0 and stage 1 data")
e(f"s_waitcnt vmcnt({ {0: 8, 1: 4, 2: 4, 3: 0}[B1] })")
stamp(20)
if B1 in (2, 3): loadV(sCUR)
if B1 in (1, 3): loadK(RAW2, sTMP2)
pnorm(RAW); wrK(vKWl)
setm0(sM0V, 32768)
e("s_nop 0")
loadV(sTMP2)
n = 4
if OWNISS == 0: own_issue(); n += 5
if K1AT == 0:
    e(f"s_waitcnt vmcnt({n + (4 if B1 == 2 else 0)}) lgkmcnt(0)")
    stamp(21)
    pnorm(RAW2); wrK(vKWl, 32768)
    e(f"s_waitcnt vmcnt({n}) lgkmcnt(0)")
    stamp(8)
    e("s_barrier")
else:
    e(f"s_waitcnt vmcnt({n + (0 if B1 == 2 else 4)}) lgkmcnt(0)")
    stamp(8)
    e("s_barrier")
    e(f"s_waitcnt vmcnt({n})")
    stamp(21)
    pnorm(RAW2); wrK(vKWl, 32768)
    e("s_waitcnt lgkmcnt(0)")
if OWNISS == 1: own_issue()
def own_block():
    c("--- stage 2 data: own chunk, normalised here and published for the other workgroups of this head")
    setm0(sM0V, 65536)
    e("s_nop 0")
    loadV(sGOFF)
    e(f"s_waitcnt vmcnt(4)")
    stamp(22)
    pnorm(RAW)
    e(f"s_add_u32 s{sTMP2}, s{sWOFF}, s{sCH}")
    e(f"s_cmp_ge_u32 s{sPART}, 6")
    e("s_cbranch_scc1 L_nopub")
    for j in range(4):
        if KDMA: e(f"buffer_store_dwordx4 {vr(PK+4*j,4)}, v{vPUB}, s[{sWS}:{sWS+3}], s{sTMP2} offen offset:{512*j} sc1")
        else: e(f"buffer_store_dwordx4 {vr(PK+4*j,4)}, v{vG16}, s[{sWS}:{sWS+3}], s{sTMP2} offen offset:{1024*j} sc1")
    e("L_nopub:")
    e(f"v_add_u32 v{vKW}, 65536, v{vKWl}")
    wrK(vKW)
if OWNAT == 1:
    own_block()
    stamp(9)
    e("s_barrier")
else:
    e("s_waitcnt vmcnt(5)")
    stamp(9)
    e("s_barrier")
    own_block()
e(f"s_add_u32 s{sIDX}, s{sIDX}, 1")
chunk_off()
setm0(sM0V, 98304)
e(f"s_mov_b32 s{sSLOT}, 98304")
loadV(sGOFF)
c("tag of this launch: T = G + golden ratio (64 bit)")
e(f"v_readlane_b32 s{sTAG}, v{vFL}, 0")
e(f"v_readlane_b32 s{sTAG+1}, v{vFL}, 1")
e(f"v_and_b32 v{vT0}, 1, v{vLANE}")
e(f"s_add_u32 s{sTAG}, s{sTAG}, 0x7f4a7c15")
e(f"s_addc_u32 s{sTAG+1}, s{sTAG+1}, 0x9e3779b9")
e(f"v_cmp_eq_u32 vcc, 1, v{vT0}")
e(f"v_mov_b32 v{vTG2}, s{sTAG}")
e(f"v_mov_b32 v{vTG2+1}, s{sTAG+1}")
e(f"v_cndmask_b32 v{vTAG}, v{vTG2}, v{vTG2+1}, vcc")
e(f"s_lshl_b32 s{sTMP}, s{sPART}, 3")
e(f"s_add_u32 s{sTMP}, s{sTMP}, s{sFOFF}")
c("stores acknowledged -> raise this wave's flag")
e("s_waitcnt vmcnt(4) lgkmcnt(0)")
stamp(29)
e("s_mov_b64 exec, 1")
e(f"buffer_store_dwordx2 {vr(vTG2,2)}, v{vFA}, s[{sWS}:{sWS+3}], s{sTMP} offen offset:8 sc1")
e("s_mov_b64 exec, -1")
e(f"s_mov_b32 s{sSTG}, 3")
stamp(10)
e("s_barrier")
e("L_ploop:")
c("is the normalised chunk of this stage published (by part idx-2)?  bounded polling, else normalise locally")
e(f"s_mov_b32 s{sCNT}, {NPOLL}")
e(f"v_add_u32 v{vKW}, s{sSLOT}, v{vKWl}")
e("L_poll:")
e(f"s_lshl_b32 s{sTMP}, s{sIDX}, 1")
e(f"s_sub_u32 s{sTMP}, s{sTMP}, 4")
e(f"s_bitcmp1_b32 s{sFLG}, s{sTMP}")
e("s_cbranch_scc1 L_ready")
e(f"s_cmp_eq_u32 s{sCNT}, 0")
e("s_cbranch_scc1 L_local")
e(f"s_sub_u32 s{sCNT}, s{sCNT}, 1")
poll()
e("s_branch L_poll")
e("L_local:")
loadK(RAW, sGOFF)
e("s_waitcnt vmcnt(0)")
pnorm(RAW)
if KDMA: wrK(vKW)
e("s_branch L_have")
e("L_ready:")
e(f"s_add_u32 s{sTMP}, s{sWOFF}, s{sCH}")
if KDMA:
    setm0(sW, f"s{sSLOT}")
    e("s_nop 0")
    for j in range(4): e(f"buffer_load_dwordx4 v{vG16}, s[{sWS}:{sWS+3}], s{sTMP} offen offset:{1024*j} sc1 lds")
else:
    for j in range(4): e(f"buffer_load_dwordx4 {vr(PK+4*j,4)}, v{vG16}, s[{sWS}:{sWS+3}], s{sTMP} offen offset:{1024*j} sc1")
    e("s_waitcnt vmcnt(0)")
e("L_have:")
stamp_idx(20)
if STAMP == 1:
    e(f"s_add_u32 s56, s{sSTG}, 40"); e("s_mov_b32 m0, s56"); e(f"v_writelane_b32 v{vST}, s{sCNT}, m0")
if not KDMA: wrK(vKW)
e(f"s_cmp_eq_u32 s{sSTG}, 7")
e("s_cbranch_scc1 L_plast")
e(f"s_add_u32 s{sSLOT}, s{sSLOT}, 32768")
e(f"s_and_b32 s{sSLOT}, s{sSLOT}, 0x1ffff")
setm0(sM0V, f"s{sSLOT}")
e(f"s_add_u32 s{sIDX}, s{sIDX}, 1")
chunk_off()
loadV(sGOFF)
e(f"s_add_u32 s{sSTG}, s{sSTG}, 1")
e("s_waitcnt vmcnt(4) lgkmcnt(0)")
stamp_idx(7)
e("s_barrier")
e("s_branch L_ploop")
e("L_plast:")
e("s_waitcnt vmcnt(0) lgkmcnt(0)")
e("s_barrier")
c("part 0: once every part has raised its flag (so has read G), advance the generation for the next launch")
e(f"s_cmp_lg_u32 s{sPART}, 0")
e("s_cbranch_scc1 L_pend")
e("L_fin:")
e(f"s_and_b32 s{sTMP}, s{sFLG}, 0x5555")
e(f"s_cmp_eq_u32 s{sTMP}, 0x5555")
e("s_cbranch_scc1 L_bump")
poll()
e("s_branch L_fin")
e("L_bump:")
e("s_mov_b64 exec, 1")
e(f"buffer_store_dwordx2 {vr(vTG2,2)}, v{vFA}, s[{sWS}:{sWS+3}], s{sFOFF} offen sc1")
e("s_mov_b64 exec, -1")
e("L_pend:")
if STAMP:
    stamp(18)
    e(f"s_add_u32 s{sTMP}, s{sWAVE}, 8")
    st_flush(sTMP)
e("s_endpgm")

c("|t| large (or NaN): find the true row max of the logits first, then run the main loop with C = -max")
e("L_maxpass:")
e(f"ds_read_b128 {vr(QB,4)}, v{vQR}")
e(f"ds_read_b128 {vr(QB+4,4)}, v{vQR} offset:1088")
c("lane (key=l&31,h=l>>5): frag i = bytes key*64 + i*32 + h*16")
e(f"s_mov_b32 s{sTMP}, s{sHEAD}")
e(f"s_mov_b32 s{sTMP2}, 0")
e(f"v_mov_b32 v{vT3}, 0xff800000")
e(f"v_mov_b32 v{vT4}, 0xff800000")
e("s_waitcnt lgkmcnt(0)")
e("L_maxloop:")
e(f"buffer_load_dwordx4 {vr(SB,4)}, v{vOUT}, s[{sK}:{sK+3}], s{sTMP} offen")
e(f"buffer_load_dwordx4 {vr(SB+4,4)}, v{vOUT}, s[{sK}:{sK+3}], s{sTMP} offen offset:32")
e("s_waitcnt vmcnt(0)")
unpack(SB, OA)
dots(vT0, SB, 8)
e("s_nop 2")
e(f"v_mov_b32 v{vT1}, v{vT0}"); e("s_nop 1")
e(f"v_permlane32_swap_b32 v{vT0}, v{vT1}"); e("s_nop 1")
e(f"v_add_f32 v{vT0}, v{vT0}, v{vT1}")
e(f"v_sqrt_f32 v{vT0}, v{vT0}"); e("s_nop 0")
e(f"v_add_f32 v{vT0}, 0x358637bd, v{vT0}")
e(f"v_rcp_f32 v{vT2}, v{vT0}"); e("s_nop 0")
scale_pack(OA, 8, vT2, OB)
e("s_nop 1")
for S, Q in ((CA, QA), (CB, QB)):
    e(f"v_mfma_f32_32x32x16_bf16 {vr(S,16)}, {vr(OB,4)}, {vr(Q,4)}, 0")
    e(f"v_mfma_f32_32x32x16_bf16 {vr(S,16)}, {vr(OB+4,4)}, {vr(Q+4,4)}, {vr(S,16)}")
e("s_nop 15")
for S, M in ((CA, vT3), (CB, vT4)):
    for j in range(8): e(f"v_max3_f32 v{M}, v{S+2*j}, v{S+2*j+1}, v{M}")
e(f"s_add_u32 s{sTMP}, s{sTMP}, 2048")
e(f"s_add_u32 s{sTMP2}, s{sTMP2}, 1")
e(f"s_cmp_lt_u32 s{sTMP2}, 64")
e("s_cbranch_scc1 L_maxloop")
for C, M in ((CA, vT3), (CB, vT4)):
    e(f"v_mov_b32 v{vT0}, v{M}")
    e("s_nop 1")
    e(f"v_permlane32_swap_b32 v{vT0}, v{M}")
    e("s_nop 1")
    e(f"v_max_f32 v{M}, v{M}, v{vT0}")
    e(f"v_xor_b32 v{C}, 0x80000000, v{M}")
    for j in range(1, 16): e(f"v_mov_b32 v{C+j}, v{C}")
zero(list(range(OA, OA+16)) + list(range(OB, OB+16)))
e("s_branch L_start")

nv = max(136, (NV + 7) // 8 * 8)
src = HEADER + f"; @launch grid=(256,1,1) block=(768,1,1) lds={LDS_TOTAL}\n" + f""".amdgcn_target "amdgcn-amd-amdhsa--gfx950"
.text
.globl {NAME}
.p2align 8
.type {NAME},@function
""" + "\n".join(L) + f"""
.section .rodata,"a"
.p2align 6
.amdhsa_kernel {NAME}
  .amdhsa_next_free_vgpr {nv}
  .amdhsa_next_free_sgpr 64
  .amdhsa_accum_offset {nv}
  .amdhsa_group_segment_fixed_size 0
  .amdhsa_kernarg_size 56
  .amdhsa_user_sgpr_count 2
  .amdhsa_user_sgpr_kernarg_segment_ptr 1
  .amdhsa_system_sgpr_workgroup_id_x 1
.end_amdhsa_kernel
"""
open(sys.argv[1], "w").write(src)
print("vgprs", NV, "->", nv)
```

```python
import sys
OPT = dict(a.split("=") for a in sys.argv[2:] if "=" in a)
def opt(name, default): return type(default)(OPT.get(name, default))
def flags(name, default): return OPT.get(name, default).replace("+", " ").replace("none", "")
STAMP = opt("stamp", 0)
PRIO = OPT.get("prio", "2103")
B1 = opt("b1", 2)
K1AT = opt("k1at", 0)
PPRIO = opt("pprio", 3)
NPOLL = opt("npoll", 8)
CZERO = opt("czero", 0)
STFLAGS = flags("stflags", "nt"); QFLAGS = flags("qflags", "nt"); PUBFL = flags("pubfl", "none")
KDMA = opt("kdma", 1)
OWNISS = opt("owniss", 1)
OWNAT = opt("ownat", 0)
FULL = opt("full", 1)
XFLAG = opt("xflag", 0)
OWNV = opt("ownv", 1)
V3AT = opt("v3at", 0)
NOPUB = opt("nopub", 0); COMMON = opt("common", 0); PUBST = flags("pubst", "sc1")
BV = opt("bv", 0)
BARAT = opt("barat", 2)
BAR7 = opt("bar7", 1)
LASTP = opt("lastp", 0)

HEADER = open("standalone__qk_norm__prompt.s.ref").read().split("; Override launch")[0]
NAME = "standalone__qk_norm__prompt_kernel"
L = []
def e(s=""): L.append("    " + s.rstrip() if s and not s.endswith(":") else s)
def c(s): L.append("    ; " + s)

class VA:
    def __init__(s, n=1): s.n = n
    def get(s, k=1, al=1):
        s.n = (s.n + al - 1) // al * al
        b = s.n; s.n += k; return b
def vr(b, n): return f"v[{b}:{b+n-1}]"
va = VA()
vLANE = va.get(); vG16 = va.get(); vT0 = va.get(); vT1 = va.get(); vT3 = va.get(); vT2 = va.get(2, 2); vT4 = va.get(2, 2)
vST = va.get(); vST2 = va.get()
UA = va.get(8, 4)
base = va.n
vKR = va.get(); vVR = va.get(); vKRl = va.get(); vVRl = va.get(); vIDX = va.get(); vTL = va.get(); vRED = va.get(); vOUT = va.get()
vQR = va.get(); vQW = va.get(); vXF = va.get(); vRD = va.get()
KF = UA
ONES = va.get(4, 4)
QA = va.get(8, 4); QB = va.get(8, 4)
VF0 = va.get(4, 4); VF1 = va.get(4, 4)
LA = va.get(4, 4); LB = va.get(4, 4)
SA = va.get(16, 4); SB = va.get(16, 4)
OA = va.get(16, 4); OB = va.get(16, 4)
CA = va.get(16, 4); CB = va.get(16, 4)
NV = va.n
vp = VA(base)
vG64 = vp.get(); vKWl = vp.get(); vKW = vp.get(); vFA = vp.get(); vFL = vp.get(); vTAG = vp.get(); vTG2 = vp.get(2, 2); vPUB = vp.get()
RAW = vp.get(16, 4); RAW2 = vp.get(16, 4); UNP = vp.get(32, 4); PK = vp.get(16, 4)
assert vp.n <= NV and NV <= 168

sQ, sK, sV, sO, sWS = 16, 20, 24, 28, 12
sHEAD = 32; sPART = 33; sWAVE = 34; sSTG = 35; sT = 36; sGOFF = 37; sSLOT = 38; sCNT = 39
sTMP = 40; sTMP2 = 41; sW = 42; sCH = 43; sM0V = 44; sQOFF = 45; sFLG = 46; sWOFF = 47
sFOFF = 4; sIDX = 5; sC0 = 6; sCUR = 7; sTAG = 8; sTP = 10
LDS_Q = 131072; QSTR = 2176; LDS_XF = LDS_Q + 8 * QSTR; LDS_TOTAL = LDS_XF + 64
WSK = 0x400000; WSF = 0x800000

def st_issue(force=False):
    if STAMP == 1 or (STAMP and force):
        e("s_memtime s[52:53]"); e("s_memrealtime s[54:55]")
def st_put(lane):
    if STAMP == 1 or (STAMP and lane in (0, 18)):
        e(f"v_writelane_b32 v{vST}, s52, {lane}"); e(f"v_writelane_b32 v{vST2}, s54, {lane}")
def stamp(lane):
    if STAMP == 1 or (STAMP and lane == 18):
        st_issue(True); e("s_waitcnt lgkmcnt(0)"); st_put(lane)
def stamp_idx(add):
    if STAMP == 1:
        st_issue(); e("s_waitcnt lgkmcnt(0)"); e(f"s_add_u32 s56, s{sSTG}, {add}"); e("s_mov_b32 m0, s56"); st_put("m0")
def st_init():
    if STAMP:
        e(f"v_mov_b32 v{vST}, 0"); e(f"v_mov_b32 v{vST2}, 0"); st_put(0)
def st_flush(slot_sgpr):
    if STAMP:
        e(f"s_mul_i32 s56, s2, 12"); e(f"s_add_u32 s56, s56, s{slot_sgpr}"); e(f"s_lshl_b32 s56, s56, 9")
        e(f"v_lshlrev_b32 v{vT0}, 2, v{vLANE}")
        e(f"buffer_store_dword v{vST}, v{vT0}, s[{sWS}:{sWS+3}], s56 offen")
        e(f"buffer_store_dword v{vST2}, v{vT0}, s[{sWS}:{sWS+3}], s56 offen offset:256")

def unpack(raw, dst):
    e(f"v_mfma_f32_32x32x16_bf16 {vr(dst,16)}, {vr(UA,4)}, {vr(raw,4)}, 0")
    e(f"v_mfma_f32_32x32x16_bf16 {vr(dst,16)}, {vr(UA+4,4)}, {vr(raw+4,4)}, {vr(dst,16)}")
def dots(acc, raw, n):
    e(f"v_dot2_f32_bf16 v{acc}, v{raw}, v{raw}, 0")
    for j in range(1, n): e(f"v_dot2_f32_bf16 v{acc}, v{raw+j}, v{raw+j}, v{acc}")
def scale_pack(unp, n, sc, pk):
    for j in range(n): e(f"v_pk_mul_f32 {vr(unp+2*j,2)}, {vr(unp+2*j,2)}, {vr(sc,2)} op_sel_hi:[1,0]")
    for j in range(n): e(f"v_cvt_pk_bf16_f32 v{pk+j}, v{unp+2*j}, v{unp+2*j+1}")
def zero(regs):
    for r in list(regs)[::2]: e(f"v_mov_b64 {vr(r,2)}, 0")

def qk(S, Q, C):
    return [f"v_mfma_f32_32x32x16_bf16 {vr(S,16)}, {vr(KF,4)}, {vr(Q,4)}, " + ("0" if CZERO else vr(C,16)),
            f"v_mfma_f32_32x32x16_bf16 {vr(S,16)}, {vr(KF+4,4)}, {vr(Q+4,4)}, {vr(S,16)}"]
def pv(O, VF, S): return f"v_smfmac_f32_32x32x32_bf16 {vr(O,16)}, {vr(VF,4)}, {vr(S,8)}, v{vIDX}"
def sm(Lr, S): return f"v_smfmac_f32_16x16x64_bf16 {vr(Lr,4)}, {vr(ONES,4)}, {vr(S,8)}, v{vIDX}"
def ex(S, a, b):
    for j in range(a, b): e(f"v_exp_f32 v{S+j}, v{S+j}")
def rdK(t):
    e(f"ds_read_b128 {vr(KF,4)}, v{vKR} offset:{t*2048}")
    e(f"ds_read_b128 {vr(KF+4,4)}, v{vKR} offset:{t*2048+1024}")
def rdV(VF, t, half):
    e(f"ds_read_b64_tr_b16 {vr(VF,2)}, v{vVR} offset:{t*2048+half*1024}")
    e(f"ds_read_b64_tr_b16 {vr(VF+2,2)}, v{vVR} offset:{t*2048+half*1024+256}")
def rdX(withflag=True):
    if XFLAG and withflag: e(f"ds_read_b32 v{vT3}, v{vXF}")
    e(f"ds_read_b32 v{LA}, v{vKRl} offset:4096")
    for j in range(4): e(f"ds_read_b128 {vr(OA+4*j,4)}, v{vRD} offset:{1024*j}")

def setp(i, force=False):
    if PRIO == "none": return
    if i == 2*(BARAT+1) and not force and not BAR7: return
    p = PRIO if len(PRIO) == 8 else "".join(x + x for x in PRIO)
    if i == 0 or p[i] != p[i-1]: e(f"s_setprio {p[i]}")
def slotA(kt):
    c(f"--- slot A kt={kt}")
    setp(2*kt)
    q = qk(SB, QB, CB)
    ex(SA, 0, 2); e(pv(OB, VF1, SB+8)); ex(SA, 2, 5); e(sm(LB, SB+8))
    rdV(VF1, kt, 1)
    ex(SA, 5, 7)
    e(q[0]); ex(SA, 7, 10); e(q[1])
    if kt == 3: e(f"v_add_u32 v{vKR}, s{sSLOT}, v{vKRl}")
    rdK((kt + 1) & 3)
    ex(SA, 10, 13)
    e("s_waitcnt lgkmcnt(4)")
    e(pv(OA, VF0, SA)); ex(SA, 13, 16); e(sm(LA, SA))
def slotB(kt, last=False):
    c(f"--- slot B kt={kt}" + (" (last)" if last else ""))
    setp(2*kt+1)
    q = qk(SA, QA, CA)
    ex(SB, 0, 2)
    e("s_waitcnt lgkmcnt(2)")
    if kt == 3: st_issue()
    if STAMP == 3: st_issue(True)
    e(pv(OA, VF1, SA+8)); ex(SB, 2, 5); e(sm(LA, SA+8)); ex(SB, 5, 7)
    if not last or STAMP in (1, 3): e("s_waitcnt lgkmcnt(0)")
    if STAMP == 3:
        e(f"s_lshl2_add_u32 m0, s{sSTG}, {32+kt}")
        e(f"v_writelane_b32 v{vST}, s52, m0"); e(f"v_writelane_b32 v{vST2}, s54, m0")
    if kt == 3 and STAMP == 1:
        e(f"s_add_u32 s56, s{sSTG}, 8"); e(f"s_mov_b32 m0, s56"); st_put("m0")
    if last:
        ex(SB, 7, 10)
        e(pv(OB, VF0, SB))
        ex(SB, 10, 12)
        c("tile A is complete: hand its partial sums to the partner wave")
        for j in range(4): e(f"ds_write_b128 v{vRED}, {vr(OA+4*j,4)} offset:{1024*j}")
        e(f"ds_write_b32 v{vVRl}, v{LA} offset:4096")
        if XFLAG:
            e(f"ds_write_b32 v{vQW}, v{vIDX}")
            rdX()
        ex(SB, 12, 13)
        e(sm(LB, SB))
        ex(SB, 13, 16)
        return
    e(q[0]); ex(SB, 7, 10); e(q[1])
    if kt == 3: e(f"v_add_u32 v{vVR}, s{sSLOT}, v{vVRl}")
    ex(SB, 10, 13)
    e(pv(OB, VF0, SB))
    rdV(VF0, (kt + 1) & 3, 0)
    ex(SB, 13, 16); e(sm(LB, SB))

def ua_consts():
    c("unpack selection matrices: lane (m=l&31,hA=l>>5): A_i has 1.0 at e=(m&3)+4*((m>>3)&1) iff (m>>4)==i and ((m>>2)&1)==hA")
    e(f"v_bfe_u32 v{vT0}, v{vLANE}, 2, 1")
    e(f"v_lshrrev_b32 v{vT1}, 5, v{vLANE}")
    e(f"v_cmp_eq_u32 vcc, v{vT0}, v{vT1}")
    e(f"v_and_b32 v{vT0}, 1, v{vLANE}")
    e(f"v_lshlrev_b32 v{vT0}, 4, v{vT0}")
    e(f"v_mov_b32 v{vT1}, 0x3f80")
    e(f"v_lshlrev_b32 v{vT1}, v{vT0}, v{vT1}")
    e(f"v_cndmask_b32 v{vT1}, 0, v{vT1}, vcc")
    e(f"v_bfe_u32 v{vT0}, v{vLANE}, 1, 1")
    e(f"v_bfe_u32 v{vT2}, v{vLANE}, 3, 2")
    e(f"v_lshl_add_u32 v{vT0}, v{vT2}, 1, v{vT0}")
    for r in range(8):
        e(f"v_cmp_eq_u32 vcc, {r}, v{vT0}")
        e("s_nop 1")
        e(f"v_cndmask_b32 v{UA+r}, 0, v{vT1}, vcc")
def loadK(dst, soff, fl=""):
    for j in range(4): e(f"buffer_load_dwordx4 {vr(dst+4*j,4)}, v{vG64}, s[{sK}:{sK+3}], s{soff} offen offset:{16*j} {fl}")
def loadV(soff):
    for j in range(4): e(f"buffer_load_dwordx4 v{vG16}, s[{sV}:{sV+3}], s{soff} offen offset:{1024*j} lds")

e(f"{NAME}:")
for s, off in ((sQ, 0), (sK, 8), (sV, 16), (sTP, 24), (sO, 32), (sWS, 48)):
    e(f"s_load_dwordx2 s[{s}:{s+1}], s[0:1], {off}")
st_issue(True)
e("s_cmp_ge_u32 s2, 256")
e("s_cbranch_scc1 L_end")
c("head = (wg&7)*4 + ((wg>>3)&3), part = wg>>5")
e(f"v_lshrrev_b32 v{vT0}, 6, v0")
e(f"v_and_b32 v{vLANE}, 63, v0")
e(f"v_readfirstlane_b32 s{sWAVE}, v{vT0}")
e("s_and_b32 s3, s2, 7")
e("s_lshl_b32 s3, s3, 2")
e(f"s_bfe_u32 s{sTMP}, s2, 0x20003")
e(f"s_add_u32 s3, s3, s{sTMP}")
e(f"s_lshl_b32 s{sHEAD}, s3, 17")
e(f"s_lshr_b32 s{sPART}, s2, 5")
e(f"v_lshlrev_b32 v{vG16}, 4, v{vLANE}")
e(f"s_mov_b32 s{sQ+2}, 0x400000")
e(f"s_mov_b32 s{sQ+3}, 0x00020000")
for s in (sK, sV, sO): e(f"s_mov_b64 s[{s+2}:{s+3}], s[{sQ+2}:{sQ+3}]")
e(f"s_mov_b32 s{sWS+2}, 0x804000"); e(f"s_mov_b32 s{sWS+3}, 0x00020000")
e(f"s_cmp_ge_u32 s{sWAVE}, 4")
e("s_cbranch_scc1 L_consumer")
c("producer: first loads K(0) V(0) K(1)")
QFIRST = opt("qfirst", 0)
if not QFIRST: e(f"s_setprio {PPRIO}")
e(f"s_lshl_b32 s{sW}, s{sWAVE}, 12")
e(f"s_add_u32 s{sHEAD}, s{sHEAD}, s{sW}")
e(f"s_and_b32 s{sC0}, s3, 7"); e(f"s_lshl_b32 s{sC0}, s{sC0}, 14")
e(f"s_add_u32 s{sGOFF}, s{sHEAD}, s{sC0}")
e(f"s_add_u32 s{sM0V}, s{sW}, 16384")
e(f"v_lshlrev_b32 v{vG64}, 6, v{vLANE}")
e(f"s_mov_b32 m0, s{sM0V}")
e(f"s_add_u32 s{sTMP2}, s{sC0}, 16384")
e(f"s_and_b32 s{sTMP2}, s{sTMP2}, 0x1ffff")
e(f"s_add_u32 s{sTMP2}, s{sTMP2}, s{sHEAD}")
e("s_waitcnt lgkmcnt(0)")
if QFIRST: e("s_nop 7")
loadK(RAW, sGOFF)
e(f"s_mov_b32 s{sCUR}, s{sGOFF}")
if B1 in (0, 1): loadV(sGOFF)
if B1 in (0, 2, 4, 5, 6): loadK(RAW2, sTMP2)
if B1 == 4: loadV(sGOFF)
if QFIRST: e(f"s_setprio {PPRIO}")
e("s_branch L_producer")

c("===== consumer waves 4..11 =====")
e("L_consumer:")
if QFIRST: e("s_setprio 2")
e(f"s_sub_u32 s{sWAVE}, s{sWAVE}, 4")
e(f"s_lshl_b32 s{sW}, s{sWAVE}, 11")
e(f"s_lshl_b32 s{sTMP}, s{sPART}, 14")
e(f"s_add_u32 s{sQOFF}, s{sHEAD}, s{sTMP}")
e(f"s_add_u32 s{sQOFF}, s{sQOFF}, s{sW}")
e(f"s_lshr_b32 s{sTMP2}, s3, 1")
e(f"s_lshl_b32 s{sTMP2}, s{sTMP2}, 2")
e("s_waitcnt lgkmcnt(0)")
e(f"buffer_load_dwordx4 {vr(SA,4)}, v{vG16}, s[{sQ}:{sQ+3}], s{sQOFF} offen {QFLAGS}")
e(f"buffer_load_dwordx4 {vr(SA+4,4)}, v{vG16}, s[{sQ}:{sQ+3}], s{sQOFF} offen offset:1024 {QFLAGS}")
e(f"s_load_dword s{sT}, s[{sTP}:{sTP+1}], s{sTMP2}")
if B1 == 5:
    c("V tile w of the first chunk, queued behind Q")
    e(f"s_add_u32 m0, s{sW}, 16384")
    e(f"s_and_b32 s{sTMP}, s3, 7"); e(f"s_lshl_b32 s{sTMP}, s{sTMP}, 14")
    e(f"s_add_u32 s{sTMP}, s{sTMP}, s{sHEAD}"); e(f"s_add_u32 s{sTMP}, s{sTMP}, s{sW}")
    e(f"buffer_load_dwordx4 v{vG16}, s[{sV}:{sV+3}], s{sTMP} offen lds")
    e(f"buffer_load_dwordx4 v{vG16}, s[{sV}:{sV+3}], s{sTMP} offen offset:1024 lds")
st_init()
ua_consts()
c("K' read: group*8192 + lane*16")
e(f"s_and_b32 s{sTMP}, s{sWAVE}, 4")
e(f"s_lshl_b32 s{sTMP}, s{sTMP}, 11")
e(f"v_add_u32 v{vKRl}, s{sTMP}, v{vG16}")
c("V read: (8*hA + (i>>2))*64 + dhalf*32 + (i&3)*8 + 16384 + group*8192")
e(f"v_lshrrev_b32 v{vT0}, 5, v{vLANE}")
e(f"v_lshlrev_b32 v{vT0}, 9, v{vT0}")
e(f"v_bfe_u32 v{vT1}, v{vLANE}, 2, 2")
e(f"v_lshl_add_u32 v{vT0}, v{vT1}, 6, v{vT0}")
e(f"v_bfe_u32 v{vT1}, v{vLANE}, 4, 1")
e(f"v_lshl_add_u32 v{vT0}, v{vT1}, 5, v{vT0}")
e(f"v_and_b32 v{vT1}, 3, v{vLANE}")
e(f"v_lshl_add_u32 v{vT0}, v{vT1}, 3, v{vT0}")
e(f"s_add_u32 s{sTMP}, s{sTMP}, 16384")
e(f"v_add_u32 v{vVRl}, s{sTMP}, v{vT0}")
e(f"v_mov_b32 v{vKR}, v{vKRl}")
e(f"v_mov_b32 v{vVR}, v{vVRl}")
e(f"v_mov_b32 v{vIDX}, 0xdddddddd")
c("Q' write: LDS_Q + w*QSTR + (l&3)*544 + (l>>2)*16 ; read: LDS_Q + tile*QSTR + (l>>5)*544 + (l&31)*16")
e(f"s_mul_i32 s{sTMP}, s{sWAVE}, {QSTR}")
e(f"s_add_u32 s{sTMP}, s{sTMP}, {LDS_Q}")
e(f"v_mul_u32_u24 v{vT0}, 544, v{vT1}")
e(f"v_lshrrev_b32 v{vT1}, 2, v{vLANE}")
e(f"v_lshl_add_u32 v{vT0}, v{vT1}, 4, v{vT0}")
e(f"v_add_u32 v{vQW}, s{sTMP}, v{vT0}")
e(f"v_lshrrev_b32 v{vT1}, 5, v{vLANE}")
e(f"v_lshl_add_u32 v{vT0}, v{vT1}, 5, v{vG16}")
e(f"v_add_u32 v{vQR}, s{sTMP}, v{vT0}")
e(f"s_xor_b32 s{sTMP2}, s{sWAVE}, 4")
e(f"s_mul_i32 s{sTMP2}, s{sTMP2}, {QSTR}")
e(f"s_add_u32 s{sTMP2}, s{sTMP2}, {LDS_Q}")
e(f"v_add_u32 v{vT3}, s{sTMP2}, v{vT0}")
c("row-sum selector: only rows 0 (q 0..15) and 4 (q 16..31) carry ones")
e(f"v_and_b32 v{vT0}, 15, v{vLANE}")
e(f"v_mov_b32 v{vT1}, 0x3f803f80")
e(f"v_cmp_eq_u32 vcc, 0, v{vT0}")
e("s_nop 1")
e(f"v_cndmask_b32 v{ONES}, 0, v{vT1}, vcc")
e(f"v_cmp_eq_u32 vcc, 4, v{vT0}")
e(f"v_mov_b32 v{ONES+1}, v{ONES}")
e("s_nop 0")
e(f"v_cndmask_b32 v{ONES+2}, 0, v{vT1}, vcc")
e(f"v_mov_b32 v{ONES+3}, v{ONES+2}")
c("epilogue addresses")
e(f"s_lshl_b32 s{sTMP}, s{sWAVE}, 13")
e(f"v_add_u32 v{vRD}, s{sTMP}, v{vG16}")
e(f"v_xor_b32 v{vRED}, 0x8000, v{vRD}")
e(f"v_and_b32 v{vT0}, 31, v{vLANE}")
e(f"v_lshlrev_b32 v{vT0}, 6, v{vT0}")
e(f"v_lshrrev_b32 v{vT1}, 5, v{vLANE}")
e(f"v_lshl_add_u32 v{vOUT}, v{vT1}, 4, v{vT0}")
if FULL:
    c("output store: lane -> (row l&15, 16-byte chunk 2*((l>>4)&1) + (l>>5))")
    e(f"v_and_b32 v{vT0}, 15, v{vLANE}")
    e(f"v_lshlrev_b32 v{vT0}, 6, v{vT0}")
    e(f"v_lshl_add_u32 v{vT0}, v{vT1}, 4, v{vT0}")
    e(f"v_bfe_u32 v{vT1}, v{vLANE}, 4, 1")
    e(f"v_lshl_add_u32 v{vXF}, v{vT1}, 5, v{vT0}")
zero(list(range(OA, OA+16)) + list(range(OB, OB+16)) + list(range(LA, LA+4)) + list(range(LB, LB+4)) + list(range(VF1, VF1+4)))
if XFLAG:
    e(f"s_lshl_b32 s{sTMP}, s{sWAVE}, 2")
    e(f"s_add_u32 s{sTMP}, s{sTMP}, {LDS_XF}")
    e(f"v_mov_b32 v{vXF}, s{sTMP}")
e("s_waitcnt lgkmcnt(0)")
if XFLAG: e(f"ds_write_b32 v{vXF}, v{OA}")
e(f"s_lshl_b32 s{sTMP}, s{sT}, 16")
e(f"s_and_b32 s{sTMP2}, s{sT}, 0xffff0000")
e("s_bitcmp1_b32 s3, 0")
e(f"s_cselect_b32 s{sT}, s{sTMP2}, s{sTMP}")
e(f"v_mov_b32 v{vTL}, 0x3fb8aa3b")
e(f"v_mul_f32 v{vTL}, s{sT}, v{vTL}")
e(f"v_or_b32 v{CA}, 0x80000000, v{vTL}")
e(f"v_mov_b32 v{CA+1}, v{CA}")
for j in range(2, 32, 2): e(f"v_mov_b64 {vr(CA+j,2)}, {vr(CA,2)}")
zero(range(SB+8, SB+16))
e(f"s_mov_b32 s{sSTG}, 0")
e(f"s_mov_b32 s{sSLOT}, 32768")
e(f"s_and_b32 s{sT}, s{sT}, 0x7fffffff")
stamp(1)
c("Q tile: rows 16j + (l>>2), 8 elements per lane and j")
QU = QA
e(f"s_waitcnt vmcnt({2 if B1 == 5 else 0})")
stamp(2)
for j in range(4):
    e(f"v_dot2_f32_bf16 v{vT0}, v{SA+j}, v{SA+j}, " + ("0" if j == 0 else f"v{vT0}"))
    e(f"v_dot2_f32_bf16 v{vT1}, v{SA+4+j}, v{SA+4+j}, " + ("0" if j == 0 else f"v{vT1}"))
unpack(SA, QU)
for qp in ("[1,0,3,2]", "[2,3,0,1]"):
    e("s_nop 0")
    e(f"v_add_f32_dpp v{vT0}, v{vT0}, v{vT0} quad_perm:{qp} row_mask:0xf bank_mask:0xf")
    e(f"v_add_f32_dpp v{vT1}, v{vT1}, v{vT1} quad_perm:{qp} row_mask:0xf bank_mask:0xf")
e(f"v_sqrt_f32 v{vT0}, v{vT0}")
e(f"v_sqrt_f32 v{vT1}, v{vT1}")
e(f"v_add_f32 v{vT0}, 0x358637bd, v{vT0}")
e(f"v_add_f32 v{vT1}, 0x358637bd, v{vT1}")
e(f"v_rcp_f32 v{vT0}, v{vT0}")
e(f"v_rcp_f32 v{vT1}, v{vT1}")
e(f"v_mul_f32 v{vT2}, v{vT0}, v{vTL}")
e(f"v_mul_f32 v{vT4}, v{vT1}, v{vTL}")
scale_pack(QU, 4, vT2, SA+8)
e(f"ds_write_b128 v{vQW}, {vr(SA+8,4)}")
scale_pack(QU+8, 4, vT4, SA+12)
e(f"ds_write_b128 v{vQW}, {vr(SA+12,4)} offset:256")
stamp(3)
c("fast path check: |t| <= 16")
e(f"s_cmp_le_u32 s{sT}, 0x41800000")
e("s_waitcnt vmcnt(0) lgkmcnt(0)")
e("s_barrier")
e(f"ds_read_b128 {vr(QA,4)}, v{vT3}")
e(f"ds_read_b128 {vr(QA+4,4)}, v{vT3} offset:1088")
e("s_cbranch_scc0 L_maxpass")
e("L_start:")
rdK(0)
e(f"ds_read_b128 {vr(QB,4)}, v{vQR}")
e(f"ds_read_b128 {vr(QB+4,4)}, v{vQR} offset:1088")
if not BV: rdV(VF0, 0, 0)
if XFLAG: e(f"v_xor_b32 v{vQW}, 16, v{vXF}")
stamp(5)
e(f"s_waitcnt lgkmcnt({2 if BV else 4})")
for s in qk(SA, QA, CA): e(s)
if BV:
    e("s_barrier")
    rdV(VF0, 0, 0)
e("s_waitcnt lgkmcnt(2)")
e("s_nop 7")
if not BV: e("s_nop 2")
stamp(6)
e(".p2align 6")
e("L_stage:")
for kt in range(4):
    slotA(kt)
    if kt == 3:
        e("s_cbranch_scc1 L_last")
    slotB(kt)
    if kt == BARAT:
        e(f"s_cmp_eq_u32 s{sSTG}, 7")
        if not BAR7: e("s_cbranch_scc1 L_nobar")
        e("s_barrier")
        if not BAR7: setp(2*(BARAT+1), True)
        e("L_nobar:")
e(f"s_add_u32 s{sSTG}, s{sSTG}, 1")
e(f"s_add_u32 s{sSLOT}, s{sSLOT}, 32768")
e(f"s_and_b32 s{sSLOT}, s{sSLOT}, 0x1ffff")
e("s_branch L_stage")
e("L_last:")
if LASTP >= 0: e(f"s_setprio {LASTP}")
c("row-sum exchange addresses (4-byte lane stride); the ring bases are dead now")
e(f"s_lshl_b32 s{sTMP}, s{sWAVE}, 13")
e(f"v_lshl_add_u32 v{vKRl}, v{vLANE}, 2, s{sTMP}")
e(f"v_xor_b32 v{vVRl}, 0x8000, v{vKRl}")
slotB(3, last=True)
if XFLAG:
    e("s_waitcnt lgkmcnt(5)")
    e(f"v_readfirstlane_b32 s{sTMP}, v{vT3}")
    e(pv(OB, VF1, SB+8))
    e(sm(LB, SB+8))
    stamp(16)
    e(f"s_cmp_lg_u32 s{sTMP}, 0")
    e("s_cbranch_scc1 L_xok")
    e("L_xwait:")
    e(f"ds_read_b32 v{vT3}, v{vXF}")
    e("s_waitcnt lgkmcnt(0)")
    e(f"v_readfirstlane_b32 s{sTMP}, v{vT3}")
    e("s_nop 0")
    e(f"s_cmp_eq_u32 s{sTMP}, 0")
    e("s_cbranch_scc1 L_xwait")
    rdX(False)
    e("L_xok:")
    e("s_nop 6")
else:
    e("s_nop 0")
    e("s_waitcnt lgkmcnt(0)")
    e(pv(OB, VF1, SB+8))
    e(sm(LB, SB+8))
    stamp(16)
    e("s_barrier")
    rdX()
    e("s_nop 3")
e("s_waitcnt lgkmcnt(4)")
e(f"v_add_f32 v{LA}, v{LA}, v{LB}")
e(f"v_rcp_f32 v{vT2}, v{LA}")
e("s_nop 0")
e(f"v_mov_b32 v{vT1}, v{vT2}")
PKo = SA
for j in range(4):
    e(f"s_waitcnt lgkmcnt({3-j})")
    for i in range(2):
        r = 4*j + 2*i
        e(f"v_pk_add_f32 {vr(OA+r,2)}, {vr(OA+r,2)}, {vr(OB+r,2)}")
    if j == 0: e(f"v_permlane32_swap_b32 v{vT2}, v{vT1}")
assert not (FULL and XFLAG)
for i in range(8):
    e(f"v_pk_mul_f32 {vr(OA+2*i,2)}, {vr(OA+2*i,2)}, {vr(vT2,2)} op_sel_hi:[1,0]")
for i in range(8):
    e(f"v_cvt_pk_bf16_f32 v{PKo+i}, v{OA+2*i}, v{OA+2*i+1}")
    if i == 5:
        e(f"v_permlane32_swap_b32 v{PKo+0}, v{PKo+2}")
        e(f"v_permlane32_swap_b32 v{PKo+1}, v{PKo+3}")
if FULL:
    e("s_nop 1")
    e(f"v_permlane32_swap_b32 v{PKo+4}, v{PKo+6}")
    e(f"v_permlane32_swap_b32 v{PKo+5}, v{PKo+7}")
    e("s_nop 1")
    for j in range(4): e(f"v_permlane16_swap_b32 v{PKo+j}, v{PKo+4+j}")
    e("s_nop 1")
    e(f"buffer_store_dwordx4 {vr(PKo,4)}, v{vXF}, s[{sO}:{sO+3}], s{sQOFF} offen {STFLAGS}")
    e(f"buffer_store_dwordx4 {vr(PKo+4,4)}, v{vXF}, s[{sO}:{sO+3}], s{sQOFF} offen offset:1024 {STFLAGS}")
else:
    e(f"buffer_store_dwordx4 {vr(PKo,4)}, v{vOUT}, s[{sO}:{sO+3}], s{sQOFF} offen {STFLAGS}")
    e("s_nop 0")
    e(f"v_permlane32_swap_b32 v{PKo+4}, v{PKo+6}")
    e(f"v_permlane32_swap_b32 v{PKo+5}, v{PKo+7}")
    e("s_nop 1")
    e(f"buffer_store_dwordx4 {vr(PKo+4,4)}, v{vOUT}, s[{sO}:{sO+3}], s{sQOFF} offen offset:32 {STFLAGS}")
if STAMP:
    stamp(17)
    e("s_waitcnt vmcnt(0)")
    stamp(18)
    st_flush(sWAVE)
e("L_end:")
e("s_endpgm")

c("===== producer waves 0..3: K tiles 2w,2w+1 and V tiles 2w,2w+1 of every chunk =====")
def pnorm(raw):
    acc = [vT0, vT1, vT4, vT4+1]
    for j in range(16):
        a_ = acc[j & 3]
        e(f"v_dot2_f32_bf16 v{a_}, v{raw+j}, v{raw+j}, " + ("0" if j < 4 else f"v{a_}"))
    unpack(raw, UNP); unpack(raw+8, UNP+16)
    e(f"v_add_f32 v{vT0}, v{vT0}, v{vT1}")
    e(f"v_add_f32 v{vT4}, v{vT4}, v{vT4+1}")
    e(f"v_add_f32 v{vT0}, v{vT0}, v{vT4}")
    e(f"v_sqrt_f32 v{vT0}, v{vT0}"); e("s_nop 0")
    e(f"v_add_f32 v{vT0}, 0x358637bd, v{vT0}")
    e(f"v_rcp_f32 v{vT2}, v{vT0}")
    e("s_nop 5")
    scale_pack(UNP, 16, vT2, PK)
def chunk_off():
    e(f"s_sub_u32 s{sTMP}, s{sIDX}, 6")
    e(f"s_cmp_ge_u32 s{sIDX}, 8")
    e(f"s_cselect_b32 s{sIDX}, s{sTMP}, s{sIDX}")
    e(f"s_lshl_b32 s{sCH}, s{sIDX}, 14")
    e(f"s_add_u32 s{sTMP}, s{sCH}, s{sC0}")
    e(f"s_and_b32 s{sTMP}, s{sTMP}, 0x1ffff")
    e(f"s_add_u32 s{sGOFF}, s{sHEAD}, s{sTMP}")
def wrK(addr, off=0):
    for j in range(4): e(f"ds_write_b128 v{addr}, {vr(PK+4*j,4)} offset:{off+512*j}")
def setm0(base_sgpr, add):
    if isinstance(add, int): e(f"s_add_u32 m0, s{base_sgpr}, {add}")
    else: e(f"s_add_u32 m0, s{base_sgpr}, {add}")
def poll():
    e(f"buffer_load_dword v{vFL}, v{vFA}, s[{sWS}:{sWS+3}], s{sFOFF} offen sc1")
    e("s_waitcnt vmcnt(0)")
    e(f"v_cmp_eq_u32 vcc, v{vFL}, v{vTAG}")
    e("s_nop 0")
    e(f"s_lshr_b32 s{sFLG}, vcc_lo, 2")
    e(f"s_lshr_b32 s{sTMP}, vcc_lo, 3")
    e(f"s_and_b32 s{sFLG}, s{sFLG}, s{sTMP}")
def own_issue():
    e(f"buffer_load_dword v{vFL}, v{vFA}, s[{sWS}:{sWS+3}], s{sFOFF} offen sc1")
    loadK(RAW, sGOFF, PUBFL)
e("L_producer:")
st_init()
c("hand-off line of (head, wave): dwords 0,1 = generation G, dwords 2+2p,3+2p = flag of part p")
e(f"s_lshl_b32 s{sFOFF}, s3, 2")
e(f"s_add_u32 s{sFOFF}, s{sFOFF}, s{sWAVE}")
e(f"s_lshl_b32 s{sFOFF}, s{sFOFF}, 7")
e(f"s_add_u32 s{sFOFF}, s{sFOFF}, {WSF}")
e(f"v_min_u32 v{vFA}, 17, v{vLANE}")
e(f"v_lshlrev_b32 v{vFA}, 2, v{vFA}")
e(f"s_add_u32 s{sWOFF}, s{sHEAD}, {WSK}")
ua_consts()
c("K' write address: tile (l>>5)*2048 + key*16 (+ chunk c*512)")
e(f"v_and_b32 v{vT0}, 31, v{vLANE}")
e(f"v_lshlrev_b32 v{vT0}, 4, v{vT0}")
e(f"v_lshrrev_b32 v{vT1}, 5, v{vLANE}")
e(f"v_lshl_add_u32 v{vPUB}, v{vT1}, 11, v{vT0}")
e(f"v_add_u32 v{vKWl}, s{sW}, v{vPUB}")
e(f"s_mov_b32 s{sFLG}, 0")
c("third stage: chunk index 2 + (part mod 6), then cyclically through 2..7")
e(f"s_add_u32 s{sIDX}, s{sPART}, 2") if not COMMON else e(f"s_mov_b32 s{sIDX}, 2")
chunk_off()
c("--- stage 0 and stage 1 data")
if B1 == 6: loadV(sCUR)
e(f"s_waitcnt vmcnt({ {0: 8, 1: 4, 2: 4, 3: 0, 4: 8, 5: 4, 6: 8}[B1] })")
stamp(20)
if B1 in (2, 3): loadV(sCUR)
if B1 in (1, 3): loadK(RAW2, sTMP2)
pnorm(RAW); wrK(vKWl)
setm0(sM0V, 32768)
e("s_nop 0")
loadV(sTMP2)
n = 4
if OWNISS == 0: own_issue(); n += 5
if K1AT == 0:
    e(f"s_waitcnt vmcnt({n + (4 if B1 in (2, 4, 6) else 0)}) lgkmcnt(0)")
    stamp(21)
    pnorm(RAW2); wrK(vKWl, 32768)
    if BV:
        e("s_waitcnt lgkmcnt(0)"); e("s_barrier")
    e(f"s_waitcnt vmcnt({n}) lgkmcnt(0)")
    stamp(8)
    e("s_barrier")
else:
    e(f"s_waitcnt vmcnt({n + (0 if B1 == 2 else 4)}) lgkmcnt(0)")
    stamp(8)
    e("s_barrier")
    e(f"s_waitcnt vmcnt({n})")
    stamp(21)
    pnorm(RAW2); wrK(vKWl, 32768)
    e("s_waitcnt lgkmcnt(0)")
if OWNISS == 1: own_issue()
if OWNV == 0:
    setm0(sM0V, 65536)
    e("s_nop 0")
    loadV(sGOFF)
def own_block():
    c("--- stage 2 data: own chunk, normalised here and published for the other workgroups of this head")
    if OWNV == 1:
        setm0(sM0V, 65536)
        e("s_nop 0")
        loadV(sGOFF)
    e(f"s_waitcnt vmcnt(4)")
    stamp(22)
    pnorm(RAW)
    e(f"s_add_u32 s{sTMP2}, s{sWOFF}, s{sCH}")
    e(f"s_cmp_ge_u32 s{sPART}, {0 if NOPUB else 6}")
    e("s_cbranch_scc1 L_nopub")
    for j in range(4):
        if KDMA: e(f"buffer_store_dwordx4 {vr(PK+4*j,4)}, v{vPUB}, s[{sWS}:{sWS+3}], s{sTMP2} offen offset:{512*j} {PUBST}")
        else: e(f"buffer_store_dwordx4 {vr(PK+4*j,4)}, v{vG16}, s[{sWS}:{sWS+3}], s{sTMP2} offen offset:{1024*j} sc1")
    e("L_nopub:")
    e(f"v_add_u32 v{vKW}, 65536, v{vKWl}")
    wrK(vKW)
if OWNAT == 1:
    own_block()
    stamp(9)
    e("s_barrier")
else:
    e(f"s_waitcnt vmcnt({5 if OWNV == 1 else 9})")
    stamp(9)
    e("s_barrier")
    own_block()
e(f"s_add_u32 s{sIDX}, s{sIDX}, 1")
chunk_off()
setm0(sM0V, 98304)
e(f"s_mov_b32 s{sSLOT}, 98304")
if V3AT == 0: loadV(sGOFF)
c("tag of this launch: T = G + golden ratio (64 bit)")
e(f"v_readlane_b32 s{sTAG}, v{vFL}, 0")
e(f"v_readlane_b32 s{sTAG+1}, v{vFL}, 1")
e(f"v_and_b32 v{vT0}, 1, v{vLANE}")
e(f"s_add_u32 s{sTAG}, s{sTAG}, 0x7f4a7c15")
e(f"s_addc_u32 s{sTAG+1}, s{sTAG+1}, 0x9e3779b9")
e(f"v_cmp_eq_u32 vcc, 1, v{vT0}")
e(f"v_mov_b32 v{vTG2}, s{sTAG}")
e(f"v_mov_b32 v{vTG2+1}, s{sTAG+1}")
e(f"v_cndmask_b32 v{vTAG}, v{vTG2}, v{vTG2+1}, vcc")
e(f"s_lshl_b32 s{sTMP}, s{sPART}, 3")
e(f"s_add_u32 s{sTMP}, s{sTMP}, s{sFOFF}")
c("stores acknowledged -> raise this wave's flag")
e(f"s_waitcnt vmcnt({4 if V3AT == 0 else 0}) lgkmcnt(0)")
stamp(29)
e("s_mov_b64 exec, 1")
e(f"buffer_store_dwordx2 {vr(vTG2,2)}, v{vFA}, s[{sWS}:{sWS+3}], s{sTMP} offen offset:8 sc1")
e("s_mov_b64 exec, -1")
e(f"s_mov_b32 s{sSTG}, 3")
stamp(10)
e("s_barrier")
if V3AT == 1: loadV(sGOFF)
e("L_ploop:")
c("is the normalised chunk of this stage published (by part idx-2)?  bounded polling, else normalise locally")
e(f"s_mov_b32 s{sCNT}, {NPOLL}")
e(f"v_add_u32 v{vKW}, s{sSLOT}, v{vKWl}")
e("L_poll:")
e(f"s_lshl_b32 s{sTMP}, s{sIDX}, 1")
e(f"s_sub_u32 s{sTMP}, s{sTMP}, 4")
e(f"s_bitcmp1_b32 s{sFLG}, s{sTMP}")
e("s_cbranch_scc1 L_ready")
e(f"s_cmp_eq_u32 s{sCNT}, 0")
e("s_cbranch_scc1 L_local")
e(f"s_sub_u32 s{sCNT}, s{sCNT}, 1")
poll()
e("s_branch L_poll")
e("L_local:")
loadK(RAW, sGOFF)
e("s_waitcnt vmcnt(0)")
pnorm(RAW)
if KDMA: wrK(vKW)
e("s_branch L_have")
e("L_ready:")
e(f"s_add_u32 s{sTMP}, s{sWOFF}, s{sCH}")
if KDMA:
    setm0(sW, f"s{sSLOT}")
    e("s_nop 0")
    for j in range(4): e(f"buffer_load_dwordx4 v{vG16}, s[{sWS}:{sWS+3}], s{sTMP} offen offset:{1024*j} sc1 lds")
else:
    for j in range(4): e(f"buffer_load_dwordx4 {vr(PK+4*j,4)}, v{vG16}, s[{sWS}:{sWS+3}], s{sTMP} offen offset:{1024*j} sc1")
    e("s_waitcnt vmcnt(0)")
e("L_have:")
stamp_idx(20)
if STAMP == 1:
    e(f"s_add_u32 s56, s{sSTG}, 40"); e("s_mov_b32 m0, s56"); e(f"v_writelane_b32 v{vST}, s{sCNT}, m0")
if not KDMA: wrK(vKW)
e(f"s_cmp_eq_u32 s{sSTG}, 7")
e("s_cbranch_scc1 L_plast")
e(f"s_add_u32 s{sSLOT}, s{sSLOT}, 32768")
e(f"s_and_b32 s{sSLOT}, s{sSLOT}, 0x1ffff")
setm0(sM0V, f"s{sSLOT}")
e(f"s_add_u32 s{sIDX}, s{sIDX}, 1")
chunk_off()
loadV(sGOFF)
e(f"s_add_u32 s{sSTG}, s{sSTG}, 1")
e("s_waitcnt vmcnt(4) lgkmcnt(0)")
stamp_idx(7)
e("s_barrier")
e("s_branch L_ploop")
e("L_plast:")
e("s_waitcnt vmcnt(0) lgkmcnt(0)")
e("s_barrier")
c("part 0: once every part has raised its flag (so has read G), advance the generation for the next launch")
e(f"s_cmp_lg_u32 s{sPART}, 0")
e("s_cbranch_scc1 L_pend")
e("L_fin:")
e(f"s_and_b32 s{sTMP}, s{sFLG}, 0x5555")
e(f"s_cmp_eq_u32 s{sTMP}, 0x5555")
e("s_cbranch_scc1 L_bump")
poll()
e("s_branch L_fin")
e("L_bump:")
e("s_mov_b64 exec, 1")
e(f"buffer_store_dwordx2 {vr(vTG2,2)}, v{vFA}, s[{sWS}:{sWS+3}], s{sFOFF} offen sc1")
e("s_mov_b64 exec, -1")
e("L_pend:")
if STAMP:
    stamp(18)
    e(f"s_add_u32 s{sTMP}, s{sWAVE}, 8")
    st_flush(sTMP)
e("s_endpgm")

c("|t| large (or NaN): find the true row max of the logits first, then run the main loop with C = -max")
e("L_maxpass:")
e(f"ds_read_b128 {vr(QB,4)}, v{vQR}")
e(f"ds_read_b128 {vr(QB+4,4)}, v{vQR} offset:1088")
c("lane (key=l&31,h=l>>5): frag i = bytes key*64 + i*32 + h*16")
e(f"s_mov_b32 s{sTMP}, s{sHEAD}")
e(f"s_mov_b32 s{sTMP2}, 0")
e(f"v_mov_b32 v{vT3}, 0xff800000")
e(f"v_mov_b32 v{vT4}, 0xff800000")
e("s_waitcnt lgkmcnt(0)")
e("L_maxloop:")
e(f"buffer_load_dwordx4 {vr(SB,4)}, v{vOUT}, s[{sK}:{sK+3}], s{sTMP} offen")
e(f"buffer_load_dwordx4 {vr(SB+4,4)}, v{vOUT}, s[{sK}:{sK+3}], s{sTMP} offen offset:32")
e("s_waitcnt vmcnt(0)")
unpack(SB, OA)
dots(vT0, SB, 8)
e("s_nop 2")
e(f"v_mov_b32 v{vT1}, v{vT0}"); e("s_nop 1")
e(f"v_permlane32_swap_b32 v{vT0}, v{vT1}"); e("s_nop 1")
e(f"v_add_f32 v{vT0}, v{vT0}, v{vT1}")
e(f"v_sqrt_f32 v{vT0}, v{vT0}"); e("s_nop 0")
e(f"v_add_f32 v{vT0}, 0x358637bd, v{vT0}")
e(f"v_rcp_f32 v{vT2}, v{vT0}"); e("s_nop 0")
scale_pack(OA, 8, vT2, OB)
e("s_nop 1")
for S, Q in ((CA, QA), (CB, QB)):
    e(f"v_mfma_f32_32x32x16_bf16 {vr(S,16)}, {vr(OB,4)}, {vr(Q,4)}, 0")
    e(f"v_mfma_f32_32x32x16_bf16 {vr(S,16)}, {vr(OB+4,4)}, {vr(Q+4,4)}, {vr(S,16)}")
e("s_nop 15")
for S, M in ((CA, vT3), (CB, vT4)):
    for j in range(8): e(f"v_max3_f32 v{M}, v{S+2*j}, v{S+2*j+1}, v{M}")
e(f"s_add_u32 s{sTMP}, s{sTMP}, 2048")
e(f"s_add_u32 s{sTMP2}, s{sTMP2}, 1")
e(f"s_cmp_lt_u32 s{sTMP2}, 64")
e("s_cbranch_scc1 L_maxloop")
for C, M in ((CA, vT3), (CB, vT4)):
    e(f"v_mov_b32 v{vT0}, v{M}")
    e("s_nop 1")
    e(f"v_permlane32_swap_b32 v{vT0}, v{M}")
    e("s_nop 1")
    e(f"v_max_f32 v{M}, v{M}, v{vT0}")
    e(f"v_xor_b32 v{C}, 0x80000000, v{M}")
    for j in range(1, 16): e(f"v_mov_b32 v{C+j}, v{C}")
zero(list(range(OA, OA+16)) + list(range(OB, OB+16)))
e("s_branch L_start")

nv = max(136, (NV + 7) // 8 * 8)
src = HEADER + f"; @launch grid=(256,1,1) block=(768,1,1) lds={LDS_TOTAL}\n" + f""".amdgcn_target "amdgcn-amd-amdhsa--gfx950"
.text
.globl {NAME}
.p2align 8
.type {NAME},@function
""" + "\n".join(L) + f"""
.section .rodata,"a"
.p2align 6
.amdhsa_kernel {NAME}
  .amdhsa_next_free_vgpr {nv}
  .amdhsa_next_free_sgpr 64
  .amdhsa_accum_offset {nv}
  .amdhsa_group_segment_fixed_size 0
  .amdhsa_kernarg_size 56
  .amdhsa_user_sgpr_count 2
  .amdhsa_user_sgpr_kernarg_segment_ptr 1
  .amdhsa_system_sgpr_workgroup_id_x 1
.end_amdhsa_kernel
"""
open(sys.argv[1], "w").write(src)
print("vgprs", NV, "->", nv)
```

```python
import sys
OPT = dict(a.split("=") for a in sys.argv[2:] if "=" in a)
def opt(name, default): return type(default)(OPT.get(name, default))
def flags(name, default): return OPT.get(name, default).replace("+", " ").replace("none", "")
STAMP = opt("stamp", 0)
PRIO = OPT.get("prio", "2103")
B1 = opt("b1", 2)
K1AT = opt("k1at", 0)
PPRIO = opt("pprio", 3)
NPOLL = opt("npoll", 8)
CZERO = opt("czero", 0)
STFLAGS = flags("stflags", "nt"); QFLAGS = flags("qflags", "nt"); PUBFL = flags("pubfl", "none")
KDMA = opt("kdma", 1)
OWNISS = opt("owniss", 1)
OWNAT = opt("ownat", 0)
FULL = opt("full", 1)
XFLAG = opt("xflag", 0)
OWNV = opt("ownv", 1)
V3AT = opt("v3at", 0)
NOPUB = opt("nopub", 0); COMMON = opt("common", 0); PUBST = flags("pubst", "sc1")
BV = opt("bv", 0)
BARAT = opt("barat", 2)
BAR7 = opt("bar7", 1)
LASTP = opt("lastp", 0)

HEADER = open("standalone__qk_norm__prompt.s.ref").read().split("; Override launch")[0]
NAME = "standalone__qk_norm__prompt_kernel"
L = []
def e(s=""): L.append("    " + s.rstrip() if s and not s.endswith(":") else s)
def c(s): L.append("    ; " + s)

class VA:
    def __init__(s, n=1): s.n = n
    def get(s, k=1, al=1):
        s.n = (s.n + al - 1) // al * al
        b = s.n; s.n += k; return b
def vr(b, n): return f"v[{b}:{b+n-1}]"
va = VA()
vLANE = va.get(); vG16 = va.get(); vT0 = va.get(); vT1 = va.get(); vT3 = va.get(); vT2 = va.get(2, 2); vT4 = va.get(2, 2)
vST = va.get(); vST2 = va.get()
UA = va.get(8, 4)
base = va.n
vKR = va.get(); vVR = va.get(); vKRl = va.get(); vVRl = va.get(); vIDX = va.get(); vTL = va.get(); vRED = va.get(); vOUT = va.get()
vQR = va.get(); vQW = va.get(); vXF = va.get(); vRD = va.get()
KF = UA
ONES = va.get(4, 4)
QA = va.get(8, 4); QB = va.get(8, 4)
VF0 = va.get(4, 4); VF1 = va.get(4, 4)
LA = va.get(4, 4); LB = va.get(4, 4)
SA = va.get(16, 4); SB = va.get(16, 4)
OA = va.get(16, 4); OB = va.get(16, 4)
CA = va.get(16, 4); CB = va.get(16, 4)
NV = va.n
vp = VA(base)
vG64 = vp.get(); vKWl = vp.get(); vKW = vp.get(); vFA = vp.get(); vFL = vp.get(); vTAG = vp.get(); vTG2 = vp.get(2, 2); vPUB = vp.get()
RAW = vp.get(16, 4); RAW2 = vp.get(16, 4); RAW3 = vp.get(16, 4); UNP = vp.get(32, 4); PK = vp.get(16, 4)
assert vp.n <= NV and NV <= 168 and B1 == 2 and not BV

sQ, sK, sV, sO, sWS = 16, 20, 24, 28, 12
sHEAD = 32; sPART = 33; sWAVE = 34; sSTG = 35; sT = 36; sGOFF = 37; sSLOT = 38; sCNT = 39
sTMP = 40; sTMP2 = 41; sW = 42; sCH = 43; sM0V = 44; sQOFF = 45; sFLG = 46; sWOFF = 47
sIP = 57; sPEND = 58; sPOFF = 59; sFOFF = 4; sIDX = 5; sC0 = 6; sCUR = 7; sTAG = 8; sTP = 10
LDS_Q = 131072; QSTR = 2176; LDS_XF = LDS_Q + 8 * QSTR; LDS_TOTAL = LDS_XF + 64
WSK = 0x400000; WSF = 0x800000

def st_issue(force=False):
    if STAMP == 1 or (STAMP and force):
        e("s_memtime s[52:53]"); e("s_memrealtime s[54:55]")
def st_put(lane):
    if STAMP == 1 or (STAMP and lane in (0, 18)):
        e(f"v_writelane_b32 v{vST}, s52, {lane}"); e(f"v_writelane_b32 v{vST2}, s54, {lane}")
def stamp(lane):
    if STAMP == 1 or (STAMP and lane == 18):
        st_issue(True); e("s_waitcnt lgkmcnt(0)"); st_put(lane)
def stamp_idx(add):
    if STAMP == 1:
        st_issue(); e("s_waitcnt lgkmcnt(0)"); e(f"s_add_u32 s56, s{sSTG}, {add}"); e("s_mov_b32 m0, s56"); st_put("m0")
def st_init():
    if STAMP:
        e(f"v_mov_b32 v{vST}, 0"); e(f"v_mov_b32 v{vST2}, 0"); st_put(0)
def st_flush(slot_sgpr):
    if STAMP:
        e(f"s_mul_i32 s56, s2, 12"); e(f"s_add_u32 s56, s56, s{slot_sgpr}"); e(f"s_lshl_b32 s56, s56, 9")
        e(f"v_lshlrev_b32 v{vT0}, 2, v{vLANE}")
        e(f"buffer_store_dword v{vST}, v{vT0}, s[{sWS}:{sWS+3}], s56 offen")
        e(f"buffer_store_dword v{vST2}, v{vT0}, s[{sWS}:{sWS+3}], s56 offen offset:256")

def unpack(raw, dst):
    e(f"v_mfma_f32_32x32x16_bf16 {vr(dst,16)}, {vr(UA,4)}, {vr(raw,4)}, 0")
    e(f"v_mfma_f32_32x32x16_bf16 {vr(dst,16)}, {vr(UA+4,4)}, {vr(raw+4,4)}, {vr(dst,16)}")
def dots(acc, raw, n):
    e(f"v_dot2_f32_bf16 v{acc}, v{raw}, v{raw}, 0")
    for j in range(1, n): e(f"v_dot2_f32_bf16 v{acc}, v{raw+j}, v{raw+j}, v{acc}")
def scale_pack(unp, n, sc, pk):
    for j in range(n): e(f"v_pk_mul_f32 {vr(unp+2*j,2)}, {vr(unp+2*j,2)}, {vr(sc,2)} op_sel_hi:[1,0]")
    for j in range(n): e(f"v_cvt_pk_bf16_f32 v{pk+j}, v{unp+2*j}, v{unp+2*j+1}")
def zero(regs):
    for r in list(regs)[::2]: e(f"v_mov_b64 {vr(r,2)}, 0")

def qk(S, Q, C):
    return [f"v_mfma_f32_32x32x16_bf16 {vr(S,16)}, {vr(KF,4)}, {vr(Q,4)}, " + ("0" if CZERO else vr(C,16)),
            f"v_mfma_f32_32x32x16_bf16 {vr(S,16)}, {vr(KF+4,4)}, {vr(Q+4,4)}, {vr(S,16)}"]
def pv(O, VF, S): return f"v_smfmac_f32_32x32x32_bf16 {vr(O,16)}, {vr(VF,4)}, {vr(S,8)}, v{vIDX}"
def sm(Lr, S): return f"v_smfmac_f32_16x16x64_bf16 {vr(Lr,4)}, {vr(ONES,4)}, {vr(S,8)}, v{vIDX}"
def ex(S, a, b):
    for j in range(a, b): e(f"v_exp_f32 v{S+j}, v{S+j}")
def rdK(t):
    e(f"ds_read_b128 {vr(KF,4)}, v{vKR} offset:{t*2048}")
    e(f"ds_read_b128 {vr(KF+4,4)}, v{vKR} offset:{t*2048+1024}")
def rdV(VF, t, half):
    e(f"ds_read_b64_tr_b16 {vr(VF,2)}, v{vVR} offset:{t*2048+half*1024}")
    e(f"ds_read_b64_tr_b16 {vr(VF+2,2)}, v{vVR} offset:{t*2048+half*1024+256}")
def rdX(withflag=True):
    if XFLAG and withflag: e(f"ds_read_b32 v{vT3}, v{vXF}")
    e(f"ds_read_b32 v{LA}, v{vKRl} offset:4096")
    for j in range(4): e(f"ds_read_b128 {vr(OA+4*j,4)}, v{vRD} offset:{1024*j}")

def setp(i, force=False):
    if PRIO == "none": return
    if i == 2*(BARAT+1) and not force and not BAR7: return
    p = PRIO if len(PRIO) == 8 else "".join(x + x for x in PRIO)
    if i == 0 or p[i] != p[i-1]: e(f"s_setprio {p[i]}")
def slotA(kt):
    c(f"--- slot A kt={kt}")
    setp(2*kt)
    q = qk(SB, QB, CB)
    ex(SA, 0, 2); e(pv(OB, VF1, SB+8)); ex(SA, 2, 5); e(sm(LB, SB+8))
    rdV(VF1, kt, 1)
    ex(SA, 5, 7)
    e(q[0]); ex(SA, 7, 10); e(q[1])
    if kt == 3: e(f"v_add_u32 v{vKR}, s{sSLOT}, v{vKRl}")
    rdK((kt + 1) & 3)
    ex(SA, 10, 13)
    e("s_waitcnt lgkmcnt(4)")
    e(pv(OA, VF0, SA)); ex(SA, 13, 16); e(sm(LA, SA))
def slotB(kt, last=False):
    c(f"--- slot B kt={kt}" + (" (last)" if last else ""))
    setp(2*kt+1)
    q = qk(SA, QA, CA)
    ex(SB, 0, 2)
    e("s_waitcnt lgkmcnt(2)")
    if kt == 3: st_issue()
    if STAMP == 3: st_issue(True)
    e(pv(OA, VF1, SA+8)); ex(SB, 2, 5); e(sm(LA, SA+8)); ex(SB, 5, 7)
    if not last or STAMP in (1, 3): e("s_waitcnt lgkmcnt(0)")
    if STAMP == 3:
        e(f"s_lshl2_add_u32 m0, s{sSTG}, {32+kt}")
        e(f"v_writelane_b32 v{vST}, s52, m0"); e(f"v_writelane_b32 v{vST2}, s54, m0")
    if kt == 3 and STAMP == 1:
        e(f"s_add_u32 s56, s{sSTG}, 8"); e(f"s_mov_b32 m0, s56"); st_put("m0")
    if last:
        ex(SB, 7, 10)
        e(pv(OB, VF0, SB))
        ex(SB, 10, 12)
        c("tile A is complete: hand its partial sums to the partner wave")
        for j in range(4): e(f"ds_write_b128 v{vRED}, {vr(OA+4*j,4)} offset:{1024*j}")
        e(f"ds_write_b32 v{vVRl}, v{LA} offset:4096")
        if XFLAG:
            e(f"ds_write_b32 v{vQW}, v{vIDX}")
            rdX()
        ex(SB, 12, 13)
        e(sm(LB, SB))
        ex(SB, 13, 16)
        return
    e(q[0]); ex(SB, 7, 10); e(q[1])
    if kt == 3: e(f"v_add_u32 v{vVR}, s{sSLOT}, v{vVRl}")
    ex(SB, 10, 13)
    e(pv(OB, VF0, SB))
    rdV(VF0, (kt + 1) & 3, 0)
    ex(SB, 13, 16); e(sm(LB, SB))

def ua_consts():
    c("unpack selection matrices: lane (m=l&31,hA=l>>5): A_i has 1.0 at e=(m&3)+4*((m>>3)&1) iff (m>>4)==i and ((m>>2)&1)==hA")
    e(f"v_bfe_u32 v{vT0}, v{vLANE}, 2, 1")
    e(f"v_lshrrev_b32 v{vT1}, 5, v{vLANE}")
    e(f"v_cmp_eq_u32 vcc, v{vT0}, v{vT1}")
    e(f"v_and_b32 v{vT0}, 1, v{vLANE}")
    e(f"v_lshlrev_b32 v{vT0}, 4, v{vT0}")
    e(f"v_mov_b32 v{vT1}, 0x3f80")
    e(f"v_lshlrev_b32 v{vT1}, v{vT0}, v{vT1}")
    e(f"v_cndmask_b32 v{vT1}, 0, v{vT1}, vcc")
    e(f"v_bfe_u32 v{vT0}, v{vLANE}, 1, 1")
    e(f"v_bfe_u32 v{vT2}, v{vLANE}, 3, 2")
    e(f"v_lshl_add_u32 v{vT0}, v{vT2}, 1, v{vT0}")
    for r in range(8):
        e(f"v_cmp_eq_u32 vcc, {r}, v{vT0}")
        e("s_nop 1")
        e(f"v_cndmask_b32 v{UA+r}, 0, v{vT1}, vcc")
def loadK(dst, soff, fl=""):
    for j in range(4): e(f"buffer_load_dwordx4 {vr(dst+4*j,4)}, v{vG64}, s[{sK}:{sK+3}], s{soff} offen offset:{16*j} {fl}")
def loadV(soff):
    for j in range(4): e(f"buffer_load_dwordx4 v{vG16}, s[{sV}:{sV+3}], s{soff} offen offset:{1024*j} lds")

e(f"{NAME}:")
for s, off in ((sQ, 0), (sK, 8), (sV, 16), (sTP, 24), (sO, 32), (sWS, 48)):
    e(f"s_load_dwordx2 s[{s}:{s+1}], s[0:1], {off}")
st_issue(True)
e("s_cmp_ge_u32 s2, 256")
e("s_cbranch_scc1 L_end")
c("head = (wg&7)*4 + ((wg>>3)&3), part = wg>>5")
e(f"v_lshrrev_b32 v{vT0}, 6, v0")
e(f"v_and_b32 v{vLANE}, 63, v0")
e(f"v_readfirstlane_b32 s{sWAVE}, v{vT0}")
e("s_and_b32 s3, s2, 7")
e("s_lshl_b32 s3, s3, 2")
e(f"s_bfe_u32 s{sTMP}, s2, 0x20003")
e(f"s_add_u32 s3, s3, s{sTMP}")
e(f"s_lshl_b32 s{sHEAD}, s3, 17")
e(f"s_lshr_b32 s{sPART}, s2, 5")
e(f"v_lshlrev_b32 v{vG16}, 4, v{vLANE}")
e(f"s_mov_b32 s{sQ+2}, 0x400000")
e(f"s_mov_b32 s{sQ+3}, 0x00020000")
for s in (sK, sV, sO): e(f"s_mov_b64 s[{s+2}:{s+3}], s[{sQ+2}:{sQ+3}]")
e(f"s_mov_b32 s{sWS+2}, 0x804000"); e(f"s_mov_b32 s{sWS+3}, 0x00020000")
e(f"s_cmp_ge_u32 s{sWAVE}, 4")
e("s_cbranch_scc1 L_consumer")
c("producer: first loads K(0) V(0) K(1)")
QFIRST = opt("qfirst", 0)
if not QFIRST: e(f"s_setprio {PPRIO}")
e(f"s_lshl_b32 s{sW}, s{sWAVE}, 12")
e(f"s_add_u32 s{sHEAD}, s{sHEAD}, s{sW}")
e(f"s_and_b32 s{sC0}, s3, 7"); e(f"s_lshl_b32 s{sC0}, s{sC0}, 14")
e(f"s_add_u32 s{sGOFF}, s{sHEAD}, s{sC0}")
e(f"s_add_u32 s{sM0V}, s{sW}, 16384")
e(f"v_lshlrev_b32 v{vG64}, 6, v{vLANE}")
e(f"s_mov_b32 m0, s{sM0V}")
e(f"s_add_u32 s{sTMP2}, s{sC0}, 16384")
e(f"s_and_b32 s{sTMP2}, s{sTMP2}, 0x1ffff")
e(f"s_add_u32 s{sTMP2}, s{sTMP2}, s{sHEAD}")
e("s_waitcnt lgkmcnt(0)")
if QFIRST: e("s_nop 7")
loadK(RAW, sGOFF)
e(f"s_mov_b32 s{sCUR}, s{sGOFF}")
if B1 in (0, 1): loadV(sGOFF)
if B1 in (0, 2, 4, 5, 6): loadK(RAW2, sTMP2)
if B1 == 4: loadV(sGOFF)
if QFIRST: e(f"s_setprio {PPRIO}")
e("s_branch L_producer")

c("===== consumer waves 4..11 =====")
e("L_consumer:")
if QFIRST: e("s_setprio 2")
e(f"s_sub_u32 s{sWAVE}, s{sWAVE}, 4")
e(f"s_lshl_b32 s{sW}, s{sWAVE}, 11")
e(f"s_lshl_b32 s{sTMP}, s{sPART}, 14")
e(f"s_add_u32 s{sQOFF}, s{sHEAD}, s{sTMP}")
e(f"s_add_u32 s{sQOFF}, s{sQOFF}, s{sW}")
e(f"s_lshr_b32 s{sTMP2}, s3, 1")
e(f"s_lshl_b32 s{sTMP2}, s{sTMP2}, 2")
e("s_waitcnt lgkmcnt(0)")
e(f"buffer_load_dwordx4 {vr(SA,4)}, v{vG16}, s[{sQ}:{sQ+3}], s{sQOFF} offen {QFLAGS}")
e(f"buffer_load_dwordx4 {vr(SA+4,4)}, v{vG16}, s[{sQ}:{sQ+3}], s{sQOFF} offen offset:1024 {QFLAGS}")
e(f"s_load_dword s{sT}, s[{sTP}:{sTP+1}], s{sTMP2}")
if B1 == 5:
    c("V tile w of the first chunk, queued behind Q")
    e(f"s_add_u32 m0, s{sW}, 16384")
    e(f"s_and_b32 s{sTMP}, s3, 7"); e(f"s_lshl_b32 s{sTMP}, s{sTMP}, 14")
    e(f"s_add_u32 s{sTMP}, s{sTMP}, s{sHEAD}"); e(f"s_add_u32 s{sTMP}, s{sTMP}, s{sW}")
    e(f"buffer_load_dwordx4 v{vG16}, s[{sV}:{sV+3}], s{sTMP} offen lds")
    e(f"buffer_load_dwordx4 v{vG16}, s[{sV}:{sV+3}], s{sTMP} offen offset:1024 lds")
st_init()
ua_consts()
c("K' read: group*8192 + lane*16")
e(f"s_and_b32 s{sTMP}, s{sWAVE}, 4")
e(f"s_lshl_b32 s{sTMP}, s{sTMP}, 11")
e(f"v_add_u32 v{vKRl}, s{sTMP}, v{vG16}")
c("V read: (8*hA + (i>>2))*64 + dhalf*32 + (i&3)*8 + 16384 + group*8192")
e(f"v_lshrrev_b32 v{vT0}, 5, v{vLANE}")
e(f"v_lshlrev_b32 v{vT0}, 9, v{vT0}")
e(f"v_bfe_u32 v{vT1}, v{vLANE}, 2, 2")
e(f"v_lshl_add_u32 v{vT0}, v{vT1}, 6, v{vT0}")
e(f"v_bfe_u32 v{vT1}, v{vLANE}, 4, 1")
e(f"v_lshl_add_u32 v{vT0}, v{vT1}, 5, v{vT0}")
e(f"v_and_b32 v{vT1}, 3, v{vLANE}")
e(f"v_lshl_add_u32 v{vT0}, v{vT1}, 3, v{vT0}")
e(f"s_add_u32 s{sTMP}, s{sTMP}, 16384")
e(f"v_add_u32 v{vVRl}, s{sTMP}, v{vT0}")
e(f"v_mov_b32 v{vKR}, v{vKRl}")
e(f"v_mov_b32 v{vVR}, v{vVRl}")
e(f"v_mov_b32 v{vIDX}, 0xdddddddd")
c("Q' write: LDS_Q + w*QSTR + (l&3)*544 + (l>>2)*16 ; read: LDS_Q + tile*QSTR + (l>>5)*544 + (l&31)*16")
e(f"s_mul_i32 s{sTMP}, s{sWAVE}, {QSTR}")
e(f"s_add_u32 s{sTMP}, s{sTMP}, {LDS_Q}")
e(f"v_mul_u32_u24 v{vT0}, 544, v{vT1}")
e(f"v_lshrrev_b32 v{vT1}, 2, v{vLANE}")
e(f"v_lshl_add_u32 v{vT0}, v{vT1}, 4, v{vT0}")
e(f"v_add_u32 v{vQW}, s{sTMP}, v{vT0}")
e(f"v_lshrrev_b32 v{vT1}, 5, v{vLANE}")
e(f"v_lshl_add_u32 v{vT0}, v{vT1}, 5, v{vG16}")
e(f"v_add_u32 v{vQR}, s{sTMP}, v{vT0}")
e(f"s_xor_b32 s{sTMP2}, s{sWAVE}, 4")
e(f"s_mul_i32 s{sTMP2}, s{sTMP2}, {QSTR}")
e(f"s_add_u32 s{sTMP2}, s{sTMP2}, {LDS_Q}")
e(f"v_add_u32 v{vT3}, s{sTMP2}, v{vT0}")
c("row-sum selector: only rows 0 (q 0..15) and 4 (q 16..31) carry ones")
e(f"v_and_b32 v{vT0}, 15, v{vLANE}")
e(f"v_mov_b32 v{vT1}, 0x3f803f80")
e(f"v_cmp_eq_u32 vcc, 0, v{vT0}")
e("s_nop 1")
e(f"v_cndmask_b32 v{ONES}, 0, v{vT1}, vcc")
e(f"v_cmp_eq_u32 vcc, 4, v{vT0}")
e(f"v_mov_b32 v{ONES+1}, v{ONES}")
e("s_nop 0")
e(f"v_cndmask_b32 v{ONES+2}, 0, v{vT1}, vcc")
e(f"v_mov_b32 v{ONES+3}, v{ONES+2}")
c("epilogue addresses")
e(f"s_lshl_b32 s{sTMP}, s{sWAVE}, 13")
e(f"v_add_u32 v{vRD}, s{sTMP}, v{vG16}")
e(f"v_xor_b32 v{vRED}, 0x8000, v{vRD}")
e(f"v_and_b32 v{vT0}, 31, v{vLANE}")
e(f"v_lshlrev_b32 v{vT0}, 6, v{vT0}")
e(f"v_lshrrev_b32 v{vT1}, 5, v{vLANE}")
e(f"v_lshl_add_u32 v{vOUT}, v{vT1}, 4, v{vT0}")
if FULL:
    c("output store: lane -> (row l&15, 16-byte chunk 2*((l>>4)&1) + (l>>5))")
    e(f"v_and_b32 v{vT0}, 15, v{vLANE}")
    e(f"v_lshlrev_b32 v{vT0}, 6, v{vT0}")
    e(f"v_lshl_add_u32 v{vT0}, v{vT1}, 4, v{vT0}")
    e(f"v_bfe_u32 v{vT1}, v{vLANE}, 4, 1")
    e(f"v_lshl_add_u32 v{vXF}, v{vT1}, 5, v{vT0}")
zero(list(range(OA, OA+16)) + list(range(OB, OB+16)) + list(range(LA, LA+4)) + list(range(LB, LB+4)) + list(range(VF1, VF1+4)))
if XFLAG:
    e(f"s_lshl_b32 s{sTMP}, s{sWAVE}, 2")
    e(f"s_add_u32 s{sTMP}, s{sTMP}, {LDS_XF}")
    e(f"v_mov_b32 v{vXF}, s{sTMP}")
e("s_waitcnt lgkmcnt(0)")
if XFLAG: e(f"ds_write_b32 v{vXF}, v{OA}")
e(f"s_lshl_b32 s{sTMP}, s{sT}, 16")
e(f"s_and_b32 s{sTMP2}, s{sT}, 0xffff0000")
e("s_bitcmp1_b32 s3, 0")
e(f"s_cselect_b32 s{sT}, s{sTMP2}, s{sTMP}")
e(f"v_mov_b32 v{vTL}, 0x3fb8aa3b")
e(f"v_mul_f32 v{vTL}, s{sT}, v{vTL}")
e(f"v_or_b32 v{CA}, 0x80000000, v{vTL}")
e(f"v_mov_b32 v{CA+1}, v{CA}")
for j in range(2, 32, 2): e(f"v_mov_b64 {vr(CA+j,2)}, {vr(CA,2)}")
zero(range(SB+8, SB+16))
e(f"s_mov_b32 s{sSTG}, 0")
e(f"s_mov_b32 s{sSLOT}, 32768")
e(f"s_and_b32 s{sT}, s{sT}, 0x7fffffff")
stamp(1)
c("Q tile: rows 16j + (l>>2), 8 elements per lane and j")
QU = QA
e(f"s_waitcnt vmcnt({2 if B1 == 5 else 0})")
stamp(2)
for j in range(4):
    e(f"v_dot2_f32_bf16 v{vT0}, v{SA+j}, v{SA+j}, " + ("0" if j == 0 else f"v{vT0}"))
    e(f"v_dot2_f32_bf16 v{vT1}, v{SA+4+j}, v{SA+4+j}, " + ("0" if j == 0 else f"v{vT1}"))
unpack(SA, QU)
for qp in ("[1,0,3,2]", "[2,3,0,1]"):
    e("s_nop 0")
    e(f"v_add_f32_dpp v{vT0}, v{vT0}, v{vT0} quad_perm:{qp} row_mask:0xf bank_mask:0xf")
    e(f"v_add_f32_dpp v{vT1}, v{vT1}, v{vT1} quad_perm:{qp} row_mask:0xf bank_mask:0xf")
e(f"v_sqrt_f32 v{vT0}, v{vT0}")
e(f"v_sqrt_f32 v{vT1}, v{vT1}")
e(f"v_add_f32 v{vT0}, 0x358637bd, v{vT0}")
e(f"v_add_f32 v{vT1}, 0x358637bd, v{vT1}")
e(f"v_rcp_f32 v{vT0}, v{vT0}")
e(f"v_rcp_f32 v{vT1}, v{vT1}")
e(f"v_mul_f32 v{vT2}, v{vT0}, v{vTL}")
e(f"v_mul_f32 v{vT4}, v{vT1}, v{vTL}")
scale_pack(QU, 4, vT2, SA+8)
e(f"ds_write_b128 v{vQW}, {vr(SA+8,4)}")
scale_pack(QU+8, 4, vT4, SA+12)
e(f"ds_write_b128 v{vQW}, {vr(SA+12,4)} offset:256")
stamp(3)
c("fast path check: |t| <= 16")
e(f"s_cmp_le_u32 s{sT}, 0x41800000")
e("s_waitcnt vmcnt(0) lgkmcnt(0)")
e("s_barrier")
e(f"ds_read_b128 {vr(QA,4)}, v{vT3}")
e(f"ds_read_b128 {vr(QA+4,4)}, v{vT3} offset:1088")
e("s_cbranch_scc0 L_maxpass")
e("L_start:")
rdK(0)
e(f"ds_read_b128 {vr(QB,4)}, v{vQR}")
e(f"ds_read_b128 {vr(QB+4,4)}, v{vQR} offset:1088")
if not BV: rdV(VF0, 0, 0)
if XFLAG: e(f"v_xor_b32 v{vQW}, 16, v{vXF}")
stamp(5)
e(f"s_waitcnt lgkmcnt({2 if BV else 4})")
for s in qk(SA, QA, CA): e(s)
if BV:
    e("s_barrier")
    rdV(VF0, 0, 0)
e("s_waitcnt lgkmcnt(2)")
e("s_nop 7")
if not BV: e("s_nop 2")
stamp(6)
e(".p2align 6")
e("L_stage:")
for kt in range(4):
    slotA(kt)
    if kt == 3:
        e("s_cbranch_scc1 L_last")
    slotB(kt)
    if kt == BARAT:
        e(f"s_cmp_eq_u32 s{sSTG}, 7")
        if not BAR7: e("s_cbranch_scc1 L_nobar")
        e("s_barrier")
        if not BAR7: setp(2*(BARAT+1), True)
        e("L_nobar:")
e(f"s_add_u32 s{sSTG}, s{sSTG}, 1")
e(f"s_add_u32 s{sSLOT}, s{sSLOT}, 32768")
e(f"s_and_b32 s{sSLOT}, s{sSLOT}, 0x1ffff")
e("s_branch L_stage")
e("L_last:")
if LASTP >= 0: e(f"s_setprio {LASTP}")
c("row-sum exchange addresses (4-byte lane stride); the ring bases are dead now")
e(f"s_lshl_b32 s{sTMP}, s{sWAVE}, 13")
e(f"v_lshl_add_u32 v{vKRl}, v{vLANE}, 2, s{sTMP}")
e(f"v_xor_b32 v{vVRl}, 0x8000, v{vKRl}")
slotB(3, last=True)
if XFLAG:
    e("s_waitcnt lgkmcnt(5)")
    e(f"v_readfirstlane_b32 s{sTMP}, v{vT3}")
    e(pv(OB, VF1, SB+8))
    e(sm(LB, SB+8))
    stamp(16)
    e(f"s_cmp_lg_u32 s{sTMP}, 0")
    e("s_cbranch_scc1 L_xok")
    e("L_xwait:")
    e(f"ds_read_b32 v{vT3}, v{vXF}")
    e("s_waitcnt lgkmcnt(0)")
    e(f"v_readfirstlane_b32 s{sTMP}, v{vT3}")
    e("s_nop 0")
    e(f"s_cmp_eq_u32 s{sTMP}, 0")
    e("s_cbranch_scc1 L_xwait")
    rdX(False)
    e("L_xok:")
    e("s_nop 6")
else:
    e("s_nop 0")
    e("s_waitcnt lgkmcnt(0)")
    e(pv(OB, VF1, SB+8))
    e(sm(LB, SB+8))
    stamp(16)
    e("s_barrier")
    rdX()
    e("s_nop 3")
e("s_waitcnt lgkmcnt(4)")
e(f"v_add_f32 v{LA}, v{LA}, v{LB}")
e(f"v_rcp_f32 v{vT2}, v{LA}")
e("s_nop 0")
e(f"v_mov_b32 v{vT1}, v{vT2}")
PKo = SA
for j in range(4):
    e(f"s_waitcnt lgkmcnt({3-j})")
    for i in range(2):
        r = 4*j + 2*i
        e(f"v_pk_add_f32 {vr(OA+r,2)}, {vr(OA+r,2)}, {vr(OB+r,2)}")
    if j == 0: e(f"v_permlane32_swap_b32 v{vT2}, v{vT1}")
assert not (FULL and XFLAG)
for i in range(8):
    e(f"v_pk_mul_f32 {vr(OA+2*i,2)}, {vr(OA+2*i,2)}, {vr(vT2,2)} op_sel_hi:[1,0]")
for i in range(8):
    e(f"v_cvt_pk_bf16_f32 v{PKo+i}, v{OA+2*i}, v{OA+2*i+1}")
    if i == 5:
        e(f"v_permlane32_swap_b32 v{PKo+0}, v{PKo+2}")
        e(f"v_permlane32_swap_b32 v{PKo+1}, v{PKo+3}")
if FULL:
    e("s_nop 1")
    e(f"v_permlane32_swap_b32 v{PKo+4}, v{PKo+6}")
    e(f"v_permlane32_swap_b32 v{PKo+5}, v{PKo+7}")
    e("s_nop 1")
    for j in range(4): e(f"v_permlane16_swap_b32 v{PKo+j}, v{PKo+4+j}")
    e("s_nop 1")
    e(f"buffer_store_dwordx4 {vr(PKo,4)}, v{vXF}, s[{sO}:{sO+3}], s{sQOFF} offen {STFLAGS}")
    e(f"buffer_store_dwordx4 {vr(PKo+4,4)}, v{vXF}, s[{sO}:{sO+3}], s{sQOFF} offen offset:1024 {STFLAGS}")
else:
    e(f"buffer_store_dwordx4 {vr(PKo,4)}, v{vOUT}, s[{sO}:{sO+3}], s{sQOFF} offen {STFLAGS}")
    e("s_nop 0")
    e(f"v_permlane32_swap_b32 v{PKo+4}, v{PKo+6}")
    e(f"v_permlane32_swap_b32 v{PKo+5}, v{PKo+7}")
    e("s_nop 1")
    e(f"buffer_store_dwordx4 {vr(PKo+4,4)}, v{vOUT}, s[{sO}:{sO+3}], s{sQOFF} offen offset:32 {STFLAGS}")
if STAMP:
    stamp(17)
    e("s_waitcnt vmcnt(0)")
    stamp(18)
    st_flush(sWAVE)
e("L_end:")
e("s_endpgm")

c("===== producer waves 0..3: K tiles 2w,2w+1 and V tiles 2w,2w+1 of every chunk =====")
def pnorm(raw):
    acc = [vT0, vT1, vT4, vT4+1]
    for j in range(16):
        a_ = acc[j & 3]
        e(f"v_dot2_f32_bf16 v{a_}, v{raw+j}, v{raw+j}, " + ("0" if j < 4 else f"v{a_}"))
    unpack(raw, UNP); unpack(raw+8, UNP+16)
    e(f"v_add_f32 v{vT0}, v{vT0}, v{vT1}")
    e(f"v_add_f32 v{vT4}, v{vT4}, v{vT4+1}")
    e(f"v_add_f32 v{vT0}, v{vT0}, v{vT4}")
    e(f"v_sqrt_f32 v{vT0}, v{vT0}"); e("s_nop 0")
    e(f"v_add_f32 v{vT0}, 0x358637bd, v{vT0}")
    e(f"v_rcp_f32 v{vT2}, v{vT0}")
    e("s_nop 5")
    scale_pack(UNP, 16, vT2, PK)
def goff(dst, idx_sgpr=None, add=0):
    e(f"s_add_u32 s{dst}, s{idx_sgpr}, {add}")
    e(f"s_lshl_b32 s{dst}, s{dst}, 14")
    e(f"s_add_u32 s{dst}, s{dst}, s{sC0}")
    e(f"s_and_b32 s{dst}, s{dst}, 0x1ffff")
    e(f"s_add_u32 s{dst}, s{dst}, s{sHEAD}")
def wrK(addr, off=0):
    for j in range(4): e(f"ds_write_b128 v{addr}, {vr(PK+4*j,4)} offset:{off+512*j}")
def setm0(base_sgpr, add): e(f"s_add_u32 m0, s{base_sgpr}, {add}")
def poll():
    e(f"buffer_load_dword v{vFL}, v{vFA}, s[{sWS}:{sWS+3}], s{sFOFF} offen sc1")
    e("s_waitcnt vmcnt(0)")
    e(f"v_cmp_eq_u32 vcc, v{vFL}, v{vTAG}")
    e("s_nop 0")
    e(f"s_lshr_b32 s{sFLG}, vcc_lo, 2")
    e(f"s_lshr_b32 s{sTMP}, vcc_lo, 3")
    e(f"s_and_b32 s{sFLG}, s{sFLG}, s{sTMP}")
def publish():
    pnorm(RAW3)
    e(f"s_lshl_b32 s{sTMP}, s{sPART}, 14")
    e(f"s_add_u32 s{sTMP}, s{sTMP}, s{sWOFF}")
    for j in range(4): e(f"buffer_store_dwordx4 {vr(PK+4*j,4)}, v{vPUB}, s[{sWS}:{sWS+3}], s{sTMP} offen offset:{512*j} sc1")
def raise_flag():
    e(f"s_lshl_b32 s{sTMP}, s{sPART}, 3")
    e(f"s_add_u32 s{sTMP}, s{sTMP}, s{sFOFF}")
    e("s_mov_b64 exec, 1")
    e(f"buffer_store_dwordx2 {vr(vTG2,2)}, v{vFA}, s[{sWS}:{sWS+3}], s{sTMP} offen offset:8 sc1")
    e("s_mov_b64 exec, -1")
e("L_producer:")
st_init()
c("hand-off line of (head, wave): dwords 0,1 = generation G, dwords 2+2p,3+2p = flag of part p")
e(f"s_lshl_b32 s{sFOFF}, s3, 2")
e(f"s_add_u32 s{sFOFF}, s{sFOFF}, s{sWAVE}")
e(f"s_lshl_b32 s{sFOFF}, s{sFOFF}, 7")
e(f"s_add_u32 s{sFOFF}, s{sFOFF}, {WSF}")
e(f"v_min_u32 v{vFA}, 17, v{vLANE}")
e(f"v_lshlrev_b32 v{vFA}, 2, v{vFA}")
e(f"s_add_u32 s{sWOFF}, s{sHEAD}, {WSK}")
c("part p < 6 normalises and publishes chunk p+2: parts 0,1 before the first barrier, part p in iteration p-2")
goff(sPOFF, sPART, 2)
def both(n_first, n_other, extra=""):
    _l[0] += 1; a_, b_ = f"L_wa{_l[0]}", f"L_wb{_l[0]}"
    e(f"s_cmp_ge_u32 s{sPART}, {NFIRST}")
    e(f"s_cbranch_scc1 {a_}")
    e(f"s_waitcnt vmcnt({n_first}){extra}")
    e(f"s_branch {b_}")
    e(f"{a_}:")
    e(f"s_waitcnt vmcnt({n_other}){extra}")
    e(f"{b_}:")
_l = [0]
NFIRST = 2
e(f"s_cmp_ge_u32 s{sPART}, {NFIRST}")
e("s_cbranch_scc1 L_notfirst")
loadK(RAW3, sPOFF)
e("L_notfirst:")
ua_consts()
c("K' write address: tile (l>>5)*2048 + key*16 (+ chunk c*512)")
e(f"v_and_b32 v{vT0}, 31, v{vLANE}")
e(f"v_lshlrev_b32 v{vT0}, 4, v{vT0}")
e(f"v_lshrrev_b32 v{vT1}, 5, v{vLANE}")
e(f"v_lshl_add_u32 v{vPUB}, v{vT1}, 11, v{vT0}")
e(f"v_add_u32 v{vKWl}, s{sW}, v{vPUB}")
e(f"s_mov_b32 s{sFLG}, 0")
e(f"s_mov_b32 s{sPEND}, 0")
e(f"s_mov_b32 s{sSTG}, 0")
e(f"s_sub_u32 s{sIP}, s{sPART}, 2")
e(f"s_cmp_ge_u32 s{sPART}, 6")
e(f"s_cselect_b32 s{sIP}, 100, s{sIP}")
c("--- stage 0 and stage 1 data")
both(8, 4)
stamp(20)
loadV(sCUR)
e(f"buffer_load_dword v{vFL}, v{vFA}, s[{sWS}:{sWS+3}], s{sFOFF} offen sc1")
pnorm(RAW); wrK(vKWl)
both(9, 5, " lgkmcnt(0)")
stamp(21)
pnorm(RAW2); wrK(vKWl, 32768)
e(f"s_cmp_ge_u32 s{sPART}, {NFIRST}")
e("s_cbranch_scc1 L_nofirstpub")
e("s_waitcnt vmcnt(5) lgkmcnt(0)")
stamp(28)
publish()
e("L_nofirstpub:")
setm0(sM0V, 32768)
both(4, 0, " lgkmcnt(0)")
stamp(8)
e("s_barrier")
c("--- iteration -1: V(1), V(2); flags of parts 0,1,6,7; part 2 fetches its raw chunk")
loadV(sTMP2)
goff(sGOFF, sSTG, 2)
setm0(sM0V, 65536)
e(f"s_mov_b32 s{sSLOT}, 65536")
loadV(sGOFF)
c("tag of this launch: T = G + golden ratio (64 bit)")
e(f"v_readlane_b32 s{sTAG}, v{vFL}, 0")
e(f"v_readlane_b32 s{sTAG+1}, v{vFL}, 1")
e(f"v_and_b32 v{vT0}, 1, v{vLANE}")
e(f"s_add_u32 s{sTAG}, s{sTAG}, 0x7f4a7c15")
e(f"s_addc_u32 s{sTAG+1}, s{sTAG+1}, 0x9e3779b9")
e(f"v_cmp_eq_u32 vcc, 1, v{vT0}")
e(f"v_mov_b32 v{vTG2}, s{sTAG}")
e(f"v_mov_b32 v{vTG2+1}, s{sTAG+1}")
e(f"v_cndmask_b32 v{vTAG}, v{vTG2}, v{vTG2+1}, vcc")
e(f"s_cmp_lt_u32 s{sIP}, 4")
e("s_cbranch_scc1 L_i1")
e("s_waitcnt vmcnt(8)")
stamp(29)
raise_flag()
e("s_waitcnt vmcnt(5)")
e("s_branch L_i3")
e("L_i1:")
e("s_waitcnt vmcnt(4)")
e(f"s_cmp_lg_u32 s{sPART}, 2")
e("s_cbranch_scc1 L_i3")
loadK(RAW3, sPOFF)
e("L_i3:")
stamp(9)
e("s_barrier")
c("--- iteration i = 0..5 (after barrier B_i): K'(i+2), V(i+3)")
e("L_ploop:")
e("s_waitcnt vmcnt(0)")
e(f"s_cmp_eq_u32 s{sPEND}, 0")
e("s_cbranch_scc1 L_nopend")
raise_flag()
e(f"s_mov_b32 s{sPEND}, 0")
e("L_nopend:")
c("is chunk i+2 published (by part i)?  bounded polling, else normalise locally")
e(f"s_mov_b32 s{sCNT}, {NPOLL}")
e("L_poll:")
e(f"s_lshl_b32 s{sTMP}, s{sSTG}, 1")
e(f"s_bitcmp1_b32 s{sFLG}, s{sTMP}")
e("s_cbranch_scc1 L_ready")
e(f"s_cmp_eq_u32 s{sCNT}, 0")
e("s_cbranch_scc1 L_local")
e(f"s_sub_u32 s{sCNT}, s{sCNT}, 1")
poll()
e("s_branch L_poll")
e("L_local:")
loadK(RAW, sGOFF)
e(f"v_add_u32 v{vKW}, s{sSLOT}, v{vKWl}")
e("s_waitcnt vmcnt(0)")
pnorm(RAW)
wrK(vKW)
e("s_waitcnt lgkmcnt(0)")
e("s_branch L_have")
e("L_ready:")
e(f"s_lshl_b32 s{sTMP}, s{sSTG}, 14")
e(f"s_add_u32 s{sTMP}, s{sTMP}, s{sWOFF}")
setm0(sW, f"s{sSLOT}")
e("s_nop 0")
for j in range(4): e(f"buffer_load_dwordx4 v{vG16}, s[{sWS}:{sWS+3}], s{sTMP} offen offset:{1024*j} sc1 lds")
e("L_have:")
stamp_idx(22)
if STAMP == 1:
    e(f"s_add_u32 s56, s{sSTG}, 42"); e("s_mov_b32 m0, s56"); e(f"v_writelane_b32 v{vST}, s{sCNT}, m0")
e(f"s_cmp_eq_u32 s{sSTG}, 5")
e("s_cbranch_scc1 L_plast")
e(f"s_add_u32 s{sSLOT}, s{sSLOT}, 32768")
e(f"s_and_b32 s{sSLOT}, s{sSLOT}, 0x1ffff")
setm0(sM0V, f"s{sSLOT}")
goff(sGOFF, sSTG, 3)
loadV(sGOFF)
e(f"s_cmp_eq_u32 s{sSTG}, s{sIP}")
e("s_cbranch_scc1 L_pub")
e(f"s_add_u32 s{sSTG}, s{sSTG}, 1")
e(f"s_cmp_eq_u32 s{sSTG}, s{sIP}")
e("s_cbranch_scc1 L_raw")
e("s_waitcnt vmcnt(4)")
e("L_pbar:")
stamp_idx(9)
e("s_barrier")
e("s_branch L_ploop")
e("L_pub:")
publish()
e(f"s_mov_b32 s{sPEND}, 1")
e(f"s_add_u32 s{sSTG}, s{sSTG}, 1")
e("s_waitcnt vmcnt(8)")
e("s_branch L_pbar")
e("L_raw:")
loadK(RAW3, sPOFF)
e("s_waitcnt vmcnt(8)")
e("s_branch L_pbar")
e("L_plast:")
e("s_waitcnt vmcnt(0)")
e("s_barrier")
c("part 0: once every part has raised its flag (so has read G), advance the generation for the next launch")
e(f"s_cmp_lg_u32 s{sPART}, 0")
e("s_cbranch_scc1 L_pend")
e("L_fin:")
e(f"s_and_b32 s{sTMP}, s{sFLG}, 0x5555")
e(f"s_cmp_eq_u32 s{sTMP}, 0x5555")
e("s_cbranch_scc1 L_bump")
poll()
e("s_branch L_fin")
e("L_bump:")
e("s_mov_b64 exec, 1")
e(f"buffer_store_dwordx2 {vr(vTG2,2)}, v{vFA}, s[{sWS}:{sWS+3}], s{sFOFF} offen sc1")
e("s_mov_b64 exec, -1")
e("L_pend:")
if STAMP:
    stamp(18)
    e(f"s_add_u32 s{sTMP}, s{sWAVE}, 8")
    st_flush(sTMP)
e("s_endpgm")

c("|t| large (or NaN): find the true row max of the logits first, then run the main loop with C = -max")
e("L_maxpass:")
e(f"ds_read_b128 {vr(QB,4)}, v{vQR}")
e(f"ds_read_b128 {vr(QB+4,4)}, v{vQR} offset:1088")
c("lane (key=l&31,h=l>>5): frag i = bytes key*64 + i*32 + h*16")
e(f"s_mov_b32 s{sTMP}, s{sHEAD}")
e(f"s_mov_b32 s{sTMP2}, 0")
e(f"v_mov_b32 v{vT3}, 0xff800000")
e(f"v_mov_b32 v{vT4}, 0xff800000")
e("s_waitcnt lgkmcnt(0)")
e("L_maxloop:")
e(f"buffer_load_dwordx4 {vr(SB,4)}, v{vOUT}, s[{sK}:{sK+3}], s{sTMP} offen")
e(f"buffer_load_dwordx4 {vr(SB+4,4)}, v{vOUT}, s[{sK}:{sK+3}], s{sTMP} offen offset:32")
e("s_waitcnt vmcnt(0)")
unpack(SB, OA)
dots(vT0, SB, 8)
e("s_nop 2")
e(f"v_mov_b32 v{vT1}, v{vT0}"); e("s_nop 1")
e(f"v_permlane32_swap_b32 v{vT0}, v{vT1}"); e("s_nop 1")
e(f"v_add_f32 v{vT0}, v{vT0}, v{vT1}")
e(f"v_sqrt_f32 v{vT0}, v{vT0}"); e("s_nop 0")
e(f"v_add_f32 v{vT0}, 0x358637bd, v{vT0}")
e(f"v_rcp_f32 v{vT2}, v{vT0}"); e("s_nop 0")
scale_pack(OA, 8, vT2, OB)
e("s_nop 1")
for S, Q in ((CA, QA), (CB, QB)):
    e(f"v_mfma_f32_32x32x16_bf16 {vr(S,16)}, {vr(OB,4)}, {vr(Q,4)}, 0")
    e(f"v_mfma_f32_32x32x16_bf16 {vr(S,16)}, {vr(OB+4,4)}, {vr(Q+4,4)}, {vr(S,16)}")
e("s_nop 15")
for S, M in ((CA, vT3), (CB, vT4)):
    for j in range(8): e(f"v_max3_f32 v{M}, v{S+2*j}, v{S+2*j+1}, v{M}")
e(f"s_add_u32 s{sTMP}, s{sTMP}, 2048")
e(f"s_add_u32 s{sTMP2}, s{sTMP2}, 1")
e(f"s_cmp_lt_u32 s{sTMP2}, 64")
e("s_cbranch_scc1 L_maxloop")
for C, M in ((CA, vT3), (CB, vT4)):
    e(f"v_mov_b32 v{vT0}, v{M}")
    e("s_nop 1")
    e(f"v_permlane32_swap_b32 v{vT0}, v{M}")
    e("s_nop 1")
    e(f"v_max_f32 v{M}, v{M}, v{vT0}")
    e(f"v_xor_b32 v{C}, 0x80000000, v{M}")
    for j in range(1, 16): e(f"v_mov_b32 v{C+j}, v{C}")
zero(list(range(OA, OA+16)) + list(range(OB, OB+16)))
e("s_branch L_start")

nv = max(136, (NV + 7) // 8 * 8)
src = HEADER + f"; @launch grid=(256,1,1) block=(768,1,1) lds={LDS_TOTAL}\n" + f""".amdgcn_target "amdgcn-amd-amdhsa--gfx950"
.text
.globl {NAME}
.p2align 8
.type {NAME},@function
""" + "\n".join(L) + f"""
.section .rodata,"a"
.p2align 6
.amdhsa_kernel {NAME}
  .amdhsa_next_free_vgpr {nv}
  .amdhsa_next_free_sgpr 64
  .amdhsa_accum_offset {nv}
  .amdhsa_group_segment_fixed_size 0
  .amdhsa_kernarg_size 56
  .amdhsa_user_sgpr_count 2
  .amdhsa_user_sgpr_kernarg_segment_ptr 1
  .amdhsa_system_sgpr_workgroup_id_x 1
.end_amdhsa_kernel
"""
open(sys.argv[1], "w").write(src)
print("vgprs", NV, "->", nv)
```

```python
import sys
OPT = dict(a.split("=") for a in sys.argv[2:] if "=" in a)
def opt(name, default): return type(default)(OPT.get(name, default))
def flags(name, default): return OPT.get(name, default).replace("+", " ").replace("none", "")
STAMP = opt("stamp", 0)
PRIO = OPT.get("prio", "2103")
B1 = opt("b1", 2)
K1AT = opt("k1at", 0)
PPRIO = opt("pprio", 3)
NPOLL = opt("npoll", 8)
CZERO = opt("czero", 0)
STFLAGS = flags("stflags", "nt"); QFLAGS = flags("qflags", "nt"); PUBFL = flags("pubfl", "none")
KDMA = opt("kdma", 1)
OWNISS = opt("owniss", 1)
OWNAT = opt("ownat", 0)
FULL = opt("full", 1)
XFLAG = opt("xflag", 0)
OWNV = opt("ownv", 1)
V3AT = opt("v3at", 0)
NOPUB = opt("nopub", 0); COMMON = opt("common", 0); PUBST = flags("pubst", "sc1")
BV = opt("bv", 0)
BARAT = opt("barat", 2)
BAR7 = opt("bar7", 1)
LASTP = opt("lastp", 0)

HEADER = open("standalone__qk_norm__prompt.s.ref").read().split("; Override launch")[0]
NAME = "standalone__qk_norm__prompt_kernel"
L = []
def e(s=""): L.append("    " + s.rstrip() if s and not s.endswith(":") else s)
def c(s): L.append("    ; " + s)

class VA:
    def __init__(s, n=1): s.n = n
    def get(s, k=1, al=1):
        s.n = (s.n + al - 1) // al * al
        b = s.n; s.n += k; return b
def vr(b, n): return f"v[{b}:{b+n-1}]"
va = VA()
vLANE = va.get(); vG16 = va.get(); vT0 = va.get(); vT1 = va.get(); vT3 = va.get(); vT2 = va.get(2, 2); vT4 = va.get(2, 2)
vST = va.get(); vST2 = va.get()
UA = va.get(8, 4)
base = va.n
vKR = va.get(); vVR = va.get(); vKRl = va.get(); vVRl = va.get(); vIDX = va.get(); vTL = va.get(); vRED = va.get(); vOUT = va.get()
vQR = va.get(); vQW = va.get(); vXF = va.get(); vRD = va.get()
KF = UA
ONES = va.get(4, 4)
QA = va.get(8, 4); QB = va.get(8, 4)
VF0 = va.get(4, 4); VF1 = va.get(4, 4)
LA = va.get(4, 4); LB = va.get(4, 4)
SA = va.get(16, 4); SB = va.get(16, 4)
OA = va.get(16, 4); OB = va.get(16, 4)
CA = va.get(16, 4); CB = va.get(16, 4)
NV = va.n
vp = VA(base)
vG64 = vp.get(); vKWl = vp.get(); vKW = vp.get(); vFA = vp.get(); vFL = vp.get(); vTAG = vp.get(); vTG2 = vp.get(2, 2); vPUB = vp.get()
RAW = vp.get(16, 4); RAW2 = vp.get(16, 4); RAW3 = vp.get(16, 4); UNP = vp.get(32, 4); PK = vp.get(16, 4)
assert vp.n <= NV and NV <= 168 and B1 == 2 and not BV

sQ, sK, sV, sO, sWS = 16, 20, 24, 28, 12
sHEAD = 32; sPART = 33; sWAVE = 34; sSTG = 35; sT = 36; sGOFF = 37; sSLOT = 38; sCNT = 39
sTMP = 40; sTMP2 = 41; sW = 42; sCH = 43; sM0V = 44; sQOFF = 45; sFLG = 46; sWOFF = 47
sIP = 57; sPEND = 58; sPOFF = 59; sFOFF = 4; sIDX = 5; sC0 = 6; sCUR = 7; sTAG = 8; sTP = 10
LDS_Q = 131072; QSTR = 2176; LDS_XF = LDS_Q + 8 * QSTR; LDS_TOTAL = LDS_XF + 64
WSK = 0x400000; WSF = 0x800000

def st_issue(force=False):
    if STAMP == 1 or (STAMP and force):
        e("s_memtime s[52:53]"); e("s_memrealtime s[54:55]")
def st_put(lane):
    if STAMP == 1 or (STAMP and lane in (0, 18)):
        e(f"v_writelane_b32 v{vST}, s52, {lane}"); e(f"v_writelane_b32 v{vST2}, s54, {lane}")
def stamp(lane):
    if STAMP == 1 or (STAMP and lane == 18):
        st_issue(True); e("s_waitcnt lgkmcnt(0)"); st_put(lane)
def stamp_idx(add):
    if STAMP == 1:
        st_issue(); e("s_waitcnt lgkmcnt(0)"); e(f"s_add_u32 s56, s{sSTG}, {add}"); e("s_mov_b32 m0, s56"); st_put("m0")
def st_init():
    if STAMP:
        e(f"v_mov_b32 v{vST}, 0"); e(f"v_mov_b32 v{vST2}, 0"); st_put(0)
def st_flush(slot_sgpr):
    if STAMP:
        e(f"s_mul_i32 s56, s2, 12"); e(f"s_add_u32 s56, s56, s{slot_sgpr}"); e(f"s_lshl_b32 s56, s56, 9")
        e(f"v_lshlrev_b32 v{vT0}, 2, v{vLANE}")
        e(f"buffer_store_dword v{vST}, v{vT0}, s[{sWS}:{sWS+3}], s56 offen")
        e(f"buffer_store_dword v{vST2}, v{vT0}, s[{sWS}:{sWS+3}], s56 offen offset:256")

def unpack(raw, dst):
    e(f"v_mfma_f32_32x32x16_bf16 {vr(dst,16)}, {vr(UA,4)}, {vr(raw,4)}, 0")
    e(f"v_mfma_f32_32x32x16_bf16 {vr(dst,16)}, {vr(UA+4,4)}, {vr(raw+4,4)}, {vr(dst,16)}")
def dots(acc, raw, n):
    e(f"v_dot2_f32_bf16 v{acc}, v{raw}, v{raw}, 0")
    for j in range(1, n): e(f"v_dot2_f32_bf16 v{acc}, v{raw+j}, v{raw+j}, v{acc}")
def scale_pack(unp, n, sc, pk):
    for j in range(n): e(f"v_pk_mul_f32 {vr(unp+2*j,2)}, {vr(unp+2*j,2)}, {vr(sc,2)} op_sel_hi:[1,0]")
    for j in range(n): e(f"v_cvt_pk_bf16_f32 v{pk+j}, v{unp+2*j}, v{unp+2*j+1}")
def zero(regs):
    for r in list(regs)[::2]: e(f"v_mov_b64 {vr(r,2)}, 0")

def qk(S, Q, C):
    return [f"v_mfma_f32_32x32x16_bf16 {vr(S,16)}, {vr(KF,4)}, {vr(Q,4)}, " + ("0" if CZERO else vr(C,16)),
            f"v_mfma_f32_32x32x16_bf16 {vr(S,16)}, {vr(KF+4,4)}, {vr(Q+4,4)}, {vr(S,16)}"]
def pv(O, VF, S): return f"v_smfmac_f32_32x32x32_bf16 {vr(O,16)}, {vr(VF,4)}, {vr(S,8)}, v{vIDX}"
def sm(Lr, S): return f"v_smfmac_f32_16x16x64_bf16 {vr(Lr,4)}, {vr(ONES,4)}, {vr(S,8)}, v{vIDX}"
def ex(S, a, b):
    for j in range(a, b): e(f"v_exp_f32 v{S+j}, v{S+j}")
def rdK(t):
    e(f"ds_read_b128 {vr(KF,4)}, v{vKR} offset:{t*2048}")
    e(f"ds_read_b128 {vr(KF+4,4)}, v{vKR} offset:{t*2048+1024}")
def rdV(VF, t, half):
    e(f"ds_read_b64_tr_b16 {vr(VF,2)}, v{vVR} offset:{t*2048+half*1024}")
    e(f"ds_read_b64_tr_b16 {vr(VF+2,2)}, v{vVR} offset:{t*2048+half*1024+256}")
def rdX(withflag=True):
    if XFLAG and withflag: e(f"ds_read_b32 v{vT3}, v{vXF}")
    e(f"ds_read_b32 v{LA}, v{vKRl} offset:4096")
    for j in range(4): e(f"ds_read_b128 {vr(OA+4*j,4)}, v{vRD} offset:{1024*j}")

def setp(i, force=False):
    if PRIO == "none": return
    if i == 2*(BARAT+1) and not force and not BAR7: return
    p = PRIO if len(PRIO) == 8 else "".join(x + x for x in PRIO)
    if i == 0 or p[i] != p[i-1]: e(f"s_setprio {p[i]}")
def slotA(kt):
    c(f"--- slot A kt={kt}")
    setp(2*kt)
    q = qk(SB, QB, CB)
    ex(SA, 0, 2); e(pv(OB, VF1, SB+8)); ex(SA, 2, 5); e(sm(LB, SB+8))
    rdV(VF1, kt, 1)
    ex(SA, 5, 7)
    e(q[0]); ex(SA, 7, 10); e(q[1])
    if kt == 3: e(f"v_add_u32 v{vKR}, s{sSLOT}, v{vKRl}")
    rdK((kt + 1) & 3)
    ex(SA, 10, 13)
    e("s_waitcnt lgkmcnt(4)")
    e(pv(OA, VF0, SA)); ex(SA, 13, 16); e(sm(LA, SA))
def slotB(kt, last=False):
    c(f"--- slot B kt={kt}" + (" (last)" if last else ""))
    setp(2*kt+1)
    q = qk(SA, QA, CA)
    ex(SB, 0, 2)
    e("s_waitcnt lgkmcnt(2)")
    if kt == 3: st_issue()
    if STAMP == 3: st_issue(True)
    e(pv(OA, VF1, SA+8)); ex(SB, 2, 5); e(sm(LA, SA+8)); ex(SB, 5, 7)
    if not last or STAMP in (1, 3): e("s_waitcnt lgkmcnt(0)")
    if STAMP == 3:
        e(f"s_lshl2_add_u32 m0, s{sSTG}, {32+kt}")
        e(f"v_writelane_b32 v{vST}, s52, m0"); e(f"v_writelane_b32 v{vST2}, s54, m0")
    if kt == 3 and STAMP == 1:
        e(f"s_add_u32 s56, s{sSTG}, 8"); e(f"s_mov_b32 m0, s56"); st_put("m0")
    if last:
        ex(SB, 7, 10)
        e(pv(OB, VF0, SB))
        ex(SB, 10, 12)
        c("tile A is complete: hand its partial sums to the partner wave")
        for j in range(4): e(f"ds_write_b128 v{vRED}, {vr(OA+4*j,4)} offset:{1024*j}")
        e(f"ds_write_b32 v{vVRl}, v{LA} offset:4096")
        if XFLAG:
            e(f"ds_write_b32 v{vQW}, v{vIDX}")
            rdX()
        ex(SB, 12, 13)
        e(sm(LB, SB))
        ex(SB, 13, 16)
        return
    e(q[0]); ex(SB, 7, 10); e(q[1])
    if kt == 3: e(f"v_add_u32 v{vVR}, s{sSLOT}, v{vVRl}")
    ex(SB, 10, 13)
    e(pv(OB, VF0, SB))
    rdV(VF0, (kt + 1) & 3, 0)
    ex(SB, 13, 16); e(sm(LB, SB))

def ua_consts():
    c("unpack selection matrices: lane (m=l&31,hA=l>>5): A_i has 1.0 at e=(m&3)+4*((m>>3)&1) iff (m>>4)==i and ((m>>2)&1)==hA")
    e(f"v_bfe_u32 v{vT0}, v{vLANE}, 2, 1")
    e(f"v_lshrrev_b32 v{vT1}, 5, v{vLANE}")
    e(f"v_cmp_eq_u32 vcc, v{vT0}, v{vT1}")
    e(f"v_and_b32 v{vT0}, 1, v{vLANE}")
    e(f"v_lshlrev_b32 v{vT0}, 4, v{vT0}")
    e(f"v_mov_b32 v{vT1}, 0x3f80")
    e(f"v_lshlrev_b32 v{vT1}, v{vT0}, v{vT1}")
    e(f"v_cndmask_b32 v{vT1}, 0, v{vT1}, vcc")
    e(f"v_bfe_u32 v{vT0}, v{vLANE}, 1, 1")
    e(f"v_bfe_u32 v{vT2}, v{vLANE}, 3, 2")
    e(f"v_lshl_add_u32 v{vT0}, v{vT2}, 1, v{vT0}")
    for r in range(8):
        e(f"v_cmp_eq_u32 vcc, {r}, v{vT0}")
        e("s_nop 1")
        e(f"v_cndmask_b32 v{UA+r}, 0, v{vT1}, vcc")
def loadK(dst, soff, fl=""):
    for j in range(4): e(f"buffer_load_dwordx4 {vr(dst+4*j,4)}, v{vG64}, s[{sK}:{sK+3}], s{soff} offen offset:{16*j} {fl}")
def loadV(soff):
    for j in range(4): e(f"buffer_load_dwordx4 v{vG16}, s[{sV}:{sV+3}], s{soff} offen offset:{1024*j} lds")

e(f"{NAME}:")
for s, off in ((sQ, 0), (sK, 8), (sV, 16), (sTP, 24), (sO, 32), (sWS, 48)):
    e(f"s_load_dwordx2 s[{s}:{s+1}], s[0:1], {off}")
st_issue(True)
e("s_cmp_ge_u32 s2, 256")
e("s_cbranch_scc1 L_end")
c("head = (wg&7)*4 + ((wg>>3)&3), part = wg>>5")
e(f"v_lshrrev_b32 v{vT0}, 6, v0")
e(f"v_and_b32 v{vLANE}, 63, v0")
e(f"v_readfirstlane_b32 s{sWAVE}, v{vT0}")
e("s_and_b32 s3, s2, 7")
e("s_lshl_b32 s3, s3, 2")
e(f"s_bfe_u32 s{sTMP}, s2, 0x20003")
e(f"s_add_u32 s3, s3, s{sTMP}")
e(f"s_lshl_b32 s{sHEAD}, s3, 17")
e(f"s_lshr_b32 s{sPART}, s2, 5")
e(f"v_lshlrev_b32 v{vG16}, 4, v{vLANE}")
e(f"s_mov_b32 s{sQ+2}, 0x400000")
e(f"s_mov_b32 s{sQ+3}, 0x00020000")
for s in (sK, sV, sO): e(f"s_mov_b64 s[{s+2}:{s+3}], s[{sQ+2}:{sQ+3}]")
e(f"s_mov_b32 s{sWS+2}, 0x804000"); e(f"s_mov_b32 s{sWS+3}, 0x00020000")
e(f"s_cmp_ge_u32 s{sWAVE}, 4")
e("s_cbranch_scc1 L_consumer")
c("producer: first loads K(0) V(0) K(1)")
QFIRST = opt("qfirst", 0)
if not QFIRST: e(f"s_setprio {PPRIO}")
e(f"s_lshl_b32 s{sW}, s{sWAVE}, 12")
e(f"s_add_u32 s{sHEAD}, s{sHEAD}, s{sW}")
e(f"s_and_b32 s{sC0}, s3, 7"); e(f"s_lshl_b32 s{sC0}, s{sC0}, 14")
e(f"s_add_u32 s{sGOFF}, s{sHEAD}, s{sC0}")
e(f"s_add_u32 s{sM0V}, s{sW}, 16384")
e(f"v_lshlrev_b32 v{vG64}, 6, v{vLANE}")
e(f"s_mov_b32 m0, s{sM0V}")
e(f"s_add_u32 s{sTMP2}, s{sC0}, 16384")
e(f"s_and_b32 s{sTMP2}, s{sTMP2}, 0x1ffff")
e(f"s_add_u32 s{sTMP2}, s{sTMP2}, s{sHEAD}")
e("s_waitcnt lgkmcnt(0)")
if QFIRST: e("s_nop 7")
loadK(RAW, sGOFF)
e(f"s_mov_b32 s{sCUR}, s{sGOFF}")
if B1 in (0, 1): loadV(sGOFF)
if B1 in (0, 2, 4, 5, 6): loadK(RAW2, sTMP2)
if B1 == 4: loadV(sGOFF)
if QFIRST: e(f"s_setprio {PPRIO}")
e("s_branch L_producer")

c("===== consumer waves 4..11 =====")
e("L_consumer:")
if QFIRST: e("s_setprio 2")
e(f"s_sub_u32 s{sWAVE}, s{sWAVE}, 4")
e(f"s_lshl_b32 s{sW}, s{sWAVE}, 11")
e(f"s_lshl_b32 s{sTMP}, s{sPART}, 14")
e(f"s_add_u32 s{sQOFF}, s{sHEAD}, s{sTMP}")
e(f"s_add_u32 s{sQOFF}, s{sQOFF}, s{sW}")
e(f"s_lshr_b32 s{sTMP2}, s3, 1")
e(f"s_lshl_b32 s{sTMP2}, s{sTMP2}, 2")
e("s_waitcnt lgkmcnt(0)")
e(f"buffer_load_dwordx4 {vr(SA,4)}, v{vG16}, s[{sQ}:{sQ+3}], s{sQOFF} offen {QFLAGS}")
e(f"buffer_load_dwordx4 {vr(SA+4,4)}, v{vG16}, s[{sQ}:{sQ+3}], s{sQOFF} offen offset:1024 {QFLAGS}")
e(f"s_load_dword s{sT}, s[{sTP}:{sTP+1}], s{sTMP2}")
if B1 == 5:
    c("V tile w of the first chunk, queued behind Q")
    e(f"s_add_u32 m0, s{sW}, 16384")
    e(f"s_and_b32 s{sTMP}, s3, 7"); e(f"s_lshl_b32 s{sTMP}, s{sTMP}, 14")
    e(f"s_add_u32 s{sTMP}, s{sTMP}, s{sHEAD}"); e(f"s_add_u32 s{sTMP}, s{sTMP}, s{sW}")
    e(f"buffer_load_dwordx4 v{vG16}, s[{sV}:{sV+3}], s{sTMP} offen lds")
    e(f"buffer_load_dwordx4 v{vG16}, s[{sV}:{sV+3}], s{sTMP} offen offset:1024 lds")
st_init()
ua_consts()
c("K' read: group*8192 + lane*16")
e(f"s_and_b32 s{sTMP}, s{sWAVE}, 4")
e(f"s_lshl_b32 s{sTMP}, s{sTMP}, 11")
e(f"v_add_u32 v{vKRl}, s{sTMP}, v{vG16}")
c("V read: (8*hA + (i>>2))*64 + dhalf*32 + (i&3)*8 + 16384 + group*8192")
e(f"v_lshrrev_b32 v{vT0}, 5, v{vLANE}")
e(f"v_lshlrev_b32 v{vT0}, 9, v{vT0}")
e(f"v_bfe_u32 v{vT1}, v{vLANE}, 2, 2")
e(f"v_lshl_add_u32 v{vT0}, v{vT1}, 6, v{vT0}")
e(f"v_bfe_u32 v{vT1}, v{vLANE}, 4, 1")
e(f"v_lshl_add_u32 v{vT0}, v{vT1}, 5, v{vT0}")
e(f"v_and_b32 v{vT1}, 3, v{vLANE}")
e(f"v_lshl_add_u32 v{vT0}, v{vT1}, 3, v{vT0}")
e(f"s_add_u32 s{sTMP}, s{sTMP}, 16384")
e(f"v_add_u32 v{vVRl}, s{sTMP}, v{vT0}")
e(f"v_mov_b32 v{vKR}, v{vKRl}")
e(f"v_mov_b32 v{vVR}, v{vVRl}")
e(f"v_mov_b32 v{vIDX}, 0xdddddddd")
c("Q' write: LDS_Q + w*QSTR + (l&3)*544 + (l>>2)*16 ; read: LDS_Q + tile*QSTR + (l>>5)*544 + (l&31)*16")
e(f"s_mul_i32 s{sTMP}, s{sWAVE}, {QSTR}")
e(f"s_add_u32 s{sTMP}, s{sTMP}, {LDS_Q}")
e(f"v_mul_u32_u24 v{vT0}, 544, v{vT1}")
e(f"v_lshrrev_b32 v{vT1}, 2, v{vLANE}")
e(f"v_lshl_add_u32 v{vT0}, v{vT1}, 4, v{vT0}")
e(f"v_add_u32 v{vQW}, s{sTMP}, v{vT0}")
e(f"v_lshrrev_b32 v{vT1}, 5, v{vLANE}")
e(f"v_lshl_add_u32 v{vT0}, v{vT1}, 5, v{vG16}")
e(f"v_add_u32 v{vQR}, s{sTMP}, v{vT0}")
e(f"s_xor_b32 s{sTMP2}, s{sWAVE}, 4")
e(f"s_mul_i32 s{sTMP2}, s{sTMP2}, {QSTR}")
e(f"s_add_u32 s{sTMP2}, s{sTMP2}, {LDS_Q}")
e(f"v_add_u32 v{vT3}, s{sTMP2}, v{vT0}")
c("row-sum selector: only rows 0 (q 0..15) and 4 (q 16..31) carry ones")
e(f"v_and_b32 v{vT0}, 15, v{vLANE}")
e(f"v_mov_b32 v{vT1}, 0x3f803f80")
e(f"v_cmp_eq_u32 vcc, 0, v{vT0}")
e("s_nop 1")
e(f"v_cndmask_b32 v{ONES}, 0, v{vT1}, vcc")
e(f"v_cmp_eq_u32 vcc, 4, v{vT0}")
e(f"v_mov_b32 v{ONES+1}, v{ONES}")
e("s_nop 0")
e(f"v_cndmask_b32 v{ONES+2}, 0, v{vT1}, vcc")
e(f"v_mov_b32 v{ONES+3}, v{ONES+2}")
c("epilogue addresses")
e(f"s_lshl_b32 s{sTMP}, s{sWAVE}, 13")
e(f"v_add_u32 v{vRD}, s{sTMP}, v{vG16}")
e(f"v_xor_b32 v{vRED}, 0x8000, v{vRD}")
e(f"v_and_b32 v{vT0}, 31, v{vLANE}")
e(f"v_lshlrev_b32 v{vT0}, 6, v{vT0}")
e(f"v_lshrrev_b32 v{vT1}, 5, v{vLANE}")
e(f"v_lshl_add_u32 v{vOUT}, v{vT1}, 4, v{vT0}")
if FULL:
    c("output store: lane -> (row l&15, 16-byte chunk 2*((l>>4)&1) + (l>>5))")
    e(f"v_and_b32 v{vT0}, 15, v{vLANE}")
    e(f"v_lshlrev_b32 v{vT0}, 6, v{vT0}")
    e(f"v_lshl_add_u32 v{vT0}, v{vT1}, 4, v{vT0}")
    e(f"v_bfe_u32 v{vT1}, v{vLANE}, 4, 1")
    e(f"v_lshl_add_u32 v{vXF}, v{vT1}, 5, v{vT0}")
zero(list(range(OA, OA+16)) + list(range(OB, OB+16)) + list(range(LA, LA+4)) + list(range(LB, LB+4)) + list(range(VF1, VF1+4)))
if XFLAG:
    e(f"s_lshl_b32 s{sTMP}, s{sWAVE}, 2")
    e(f"s_add_u32 s{sTMP}, s{sTMP}, {LDS_XF}")
    e(f"v_mov_b32 v{vXF}, s{sTMP}")
e("s_waitcnt lgkmcnt(0)")
if XFLAG: e(f"ds_write_b32 v{vXF}, v{OA}")
e(f"s_lshl_b32 s{sTMP}, s{sT}, 16")
e(f"s_and_b32 s{sTMP2}, s{sT}, 0xffff0000")
e("s_bitcmp1_b32 s3, 0")
e(f"s_cselect_b32 s{sT}, s{sTMP2}, s{sTMP}")
e(f"v_mov_b32 v{vTL}, 0x3fb8aa3b")
e(f"v_mul_f32 v{vTL}, s{sT}, v{vTL}")
e(f"v_or_b32 v{CA}, 0x80000000, v{vTL}")
e(f"v_mov_b32 v{CA+1}, v{CA}")
for j in range(2, 32, 2): e(f"v_mov_b64 {vr(CA+j,2)}, {vr(CA,2)}")
zero(range(SB+8, SB+16))
e(f"s_mov_b32 s{sSTG}, 0")
e(f"s_mov_b32 s{sSLOT}, 32768")
e(f"s_and_b32 s{sT}, s{sT}, 0x7fffffff")
stamp(1)
c("Q tile: rows 16j + (l>>2), 8 elements per lane and j")
QU = QA
e(f"s_waitcnt vmcnt({2 if B1 == 5 else 0})")
stamp(2)
for j in range(4):
    e(f"v_dot2_f32_bf16 v{vT0}, v{SA+j}, v{SA+j}, " + ("0" if j == 0 else f"v{vT0}"))
    e(f"v_dot2_f32_bf16 v{vT1}, v{SA+4+j}, v{SA+4+j}, " + ("0" if j == 0 else f"v{vT1}"))
unpack(SA, QU)
for qp in ("[1,0,3,2]", "[2,3,0,1]"):
    e("s_nop 0")
    e(f"v_add_f32_dpp v{vT0}, v{vT0}, v{vT0} quad_perm:{qp} row_mask:0xf bank_mask:0xf")
    e(f"v_add_f32_dpp v{vT1}, v{vT1}, v{vT1} quad_perm:{qp} row_mask:0xf bank_mask:0xf")
e(f"v_sqrt_f32 v{vT0}, v{vT0}")
e(f"v_sqrt_f32 v{vT1}, v{vT1}")
e(f"v_add_f32 v{vT0}, 0x358637bd, v{vT0}")
e(f"v_add_f32 v{vT1}, 0x358637bd, v{vT1}")
e(f"v_rcp_f32 v{vT0}, v{vT0}")
e(f"v_rcp_f32 v{vT1}, v{vT1}")
e(f"v_mul_f32 v{vT2}, v{vT0}, v{vTL}")
e(f"v_mul_f32 v{vT4}, v{vT1}, v{vTL}")
scale_pack(QU, 4, vT2, SA+8)
e(f"ds_write_b128 v{vQW}, {vr(SA+8,4)}")
scale_pack(QU+8, 4, vT4, SA+12)
e(f"ds_write_b128 v{vQW}, {vr(SA+12,4)} offset:256")
stamp(3)
c("fast path check: |t| <= 16")
e(f"s_cmp_le_u32 s{sT}, 0x41800000")
e("s_waitcnt vmcnt(0) lgkmcnt(0)")
e("s_barrier")
e(f"ds_read_b128 {vr(QA,4)}, v{vT3}")
e(f"ds_read_b128 {vr(QA+4,4)}, v{vT3} offset:1088")
e("s_cbranch_scc0 L_maxpass")
e("L_start:")
rdK(0)
e(f"ds_read_b128 {vr(QB,4)}, v{vQR}")
e(f"ds_read_b128 {vr(QB+4,4)}, v{vQR} offset:1088")
if not BV: rdV(VF0, 0, 0)
if XFLAG: e(f"v_xor_b32 v{vQW}, 16, v{vXF}")
stamp(5)
e(f"s_waitcnt lgkmcnt({2 if BV else 4})")
for s in qk(SA, QA, CA): e(s)
if BV:
    e("s_barrier")
    rdV(VF0, 0, 0)
e("s_waitcnt lgkmcnt(2)")
e("s_nop 7")
if not BV: e("s_nop 2")
stamp(6)
e(".p2align 6")
e("L_stage:")
for kt in range(4):
    slotA(kt)
    if kt == 3:
        e("s_cbranch_scc1 L_last")
    slotB(kt)
    if kt == BARAT:
        e(f"s_cmp_eq_u32 s{sSTG}, 7")
        if not BAR7: e("s_cbranch_scc1 L_nobar")
        e("s_barrier")
        if not BAR7: setp(2*(BARAT+1), True)
        e("L_nobar:")
e(f"s_add_u32 s{sSTG}, s{sSTG}, 1")
e(f"s_add_u32 s{sSLOT}, s{sSLOT}, 32768")
e(f"s_and_b32 s{sSLOT}, s{sSLOT}, 0x1ffff")
e("s_branch L_stage")
e("L_last:")
if LASTP >= 0: e(f"s_setprio {LASTP}")
c("row-sum exchange addresses (4-byte lane stride); the ring bases are dead now")
e(f"s_lshl_b32 s{sTMP}, s{sWAVE}, 13")
e(f"v_lshl_add_u32 v{vKRl}, v{vLANE}, 2, s{sTMP}")
e(f"v_xor_b32 v{vVRl}, 0x8000, v{vKRl}")
slotB(3, last=True)
if XFLAG:
    e("s_waitcnt lgkmcnt(5)")
    e(f"v_readfirstlane_b32 s{sTMP}, v{vT3}")
    e(pv(OB, VF1, SB+8))
    e(sm(LB, SB+8))
    stamp(16)
    e(f"s_cmp_lg_u32 s{sTMP}, 0")
    e("s_cbranch_scc1 L_xok")
    e("L_xwait:")
    e(f"ds_read_b32 v{vT3}, v{vXF}")
    e("s_waitcnt lgkmcnt(0)")
    e(f"v_readfirstlane_b32 s{sTMP}, v{vT3}")
    e("s_nop 0")
    e(f"s_cmp_eq_u32 s{sTMP}, 0")
    e("s_cbranch_scc1 L_xwait")
    rdX(False)
    e("L_xok:")
    e("s_nop 6")
else:
    e("s_nop 0")
    e("s_waitcnt lgkmcnt(0)")
    e(pv(OB, VF1, SB+8))
    e(sm(LB, SB+8))
    stamp(16)
    e("s_barrier")
    rdX()
    e("s_nop 3")
e("s_waitcnt lgkmcnt(4)")
e(f"v_add_f32 v{LA}, v{LA}, v{LB}")
e(f"v_rcp_f32 v{vT2}, v{LA}")
e("s_nop 0")
e(f"v_mov_b32 v{vT1}, v{vT2}")
PKo = SA
for j in range(4):
    e(f"s_waitcnt lgkmcnt({3-j})")
    for i in range(2):
        r = 4*j + 2*i
        e(f"v_pk_add_f32 {vr(OA+r,2)}, {vr(OA+r,2)}, {vr(OB+r,2)}")
    if j == 0: e(f"v_permlane32_swap_b32 v{vT2}, v{vT1}")
assert not (FULL and XFLAG)
for i in range(8):
    e(f"v_pk_mul_f32 {vr(OA+2*i,2)}, {vr(OA+2*i,2)}, {vr(vT2,2)} op_sel_hi:[1,0]")
for i in range(8):
    e(f"v_cvt_pk_bf16_f32 v{PKo+i}, v{OA+2*i}, v{OA+2*i+1}")
    if i == 5:
        e(f"v_permlane32_swap_b32 v{PKo+0}, v{PKo+2}")
        e(f"v_permlane32_swap_b32 v{PKo+1}, v{PKo+3}")
if FULL:
    e("s_nop 1")
    e(f"v_permlane32_swap_b32 v{PKo+4}, v{PKo+6}")
    e(f"v_permlane32_swap_b32 v{PKo+5}, v{PKo+7}")
    e("s_nop 1")
    for j in range(4): e(f"v_permlane16_swap_b32 v{PKo+j}, v{PKo+4+j}")
    e("s_nop 1")
    e(f"buffer_store_dwordx4 {vr(PKo,4)}, v{vXF}, s[{sO}:{sO+3}], s{sQOFF} offen {STFLAGS}")
    e(f"buffer_store_dwordx4 {vr(PKo+4,4)}, v{vXF}, s[{sO}:{sO+3}], s{sQOFF} offen offset:1024 {STFLAGS}")
else:
    e(f"buffer_store_dwordx4 {vr(PKo,4)}, v{vOUT}, s[{sO}:{sO+3}], s{sQOFF} offen {STFLAGS}")
    e("s_nop 0")
    e(f"v_permlane32_swap_b32 v{PKo+4}, v{PKo+6}")
    e(f"v_permlane32_swap_b32 v{PKo+5}, v{PKo+7}")
    e("s_nop 1")
    e(f"buffer_store_dwordx4 {vr(PKo+4,4)}, v{vOUT}, s[{sO}:{sO+3}], s{sQOFF} offen offset:32 {STFLAGS}")
if STAMP:
    stamp(17)
    e("s_waitcnt vmcnt(0)")
    stamp(18)
    st_flush(sWAVE)
e("L_end:")
e("s_endpgm")

c("===== producer waves 0..3: K tiles 2w,2w+1 and V tiles 2w,2w+1 of every chunk =====")
def pnorm(raw):
    acc = [vT0, vT1, vT4, vT4+1]
    for j in range(16):
        a_ = acc[j & 3]
        e(f"v_dot2_f32_bf16 v{a_}, v{raw+j}, v{raw+j}, " + ("0" if j < 4 else f"v{a_}"))
    unpack(raw, UNP); unpack(raw+8, UNP+16)
    e(f"v_add_f32 v{vT0}, v{vT0}, v{vT1}")
    e(f"v_add_f32 v{vT4}, v{vT4}, v{vT4+1}")
    e(f"v_add_f32 v{vT0}, v{vT0}, v{vT4}")
    e(f"v_sqrt_f32 v{vT0}, v{vT0}"); e("s_nop 0")
    e(f"v_add_f32 v{vT0}, 0x358637bd, v{vT0}")
    e(f"v_rcp_f32 v{vT2}, v{vT0}")
    e("s_nop 5")
    scale_pack(UNP, 16, vT2, PK)
def goff(dst, idx_sgpr=None, add=0):
    e(f"s_add_u32 s{dst}, s{idx_sgpr}, {add}")
    e(f"s_lshl_b32 s{dst}, s{dst}, 14")
    e(f"s_add_u32 s{dst}, s{dst}, s{sC0}")
    e(f"s_and_b32 s{dst}, s{dst}, 0x1ffff")
    e(f"s_add_u32 s{dst}, s{dst}, s{sHEAD}")
def wrK(addr, off=0):
    for j in range(4): e(f"ds_write_b128 v{addr}, {vr(PK+4*j,4)} offset:{off+512*j}")
def setm0(base_sgpr, add): e(f"s_add_u32 m0, s{base_sgpr}, {add}")
def poll():
    e(f"buffer_load_dword v{vFL}, v{vFA}, s[{sWS}:{sWS+3}], s{sFOFF} offen sc1")
    e("s_waitcnt vmcnt(0)")
    e(f"v_cmp_eq_u32 vcc, v{vFL}, v{vTAG}")
    e("s_nop 0")
    e(f"s_lshr_b32 s{sFLG}, vcc_lo, 2")
    e(f"s_lshr_b32 s{sTMP}, vcc_lo, 3")
    e(f"s_and_b32 s{sFLG}, s{sFLG}, s{sTMP}")
def publish():
    pnorm(RAW3)
    e(f"s_lshl_b32 s{sTMP}, s{sPART}, 14")
    e(f"s_add_u32 s{sTMP}, s{sTMP}, s{sWOFF}")
    for j in range(4): e(f"buffer_store_dwordx4 {vr(PK+4*j,4)}, v{vPUB}, s[{sWS}:{sWS+3}], s{sTMP} offen offset:{512*j} sc1")
def raise_flag():
    e(f"s_lshl_b32 s{sTMP}, s{sPART}, 3")
    e(f"s_add_u32 s{sTMP}, s{sTMP}, s{sFOFF}")
    e("s_mov_b64 exec, 1")
    e(f"buffer_store_dwordx2 {vr(vTG2,2)}, v{vFA}, s[{sWS}:{sWS+3}], s{sTMP} offen offset:8 sc1")
    e("s_mov_b64 exec, -1")
e("L_producer:")
st_init()
c("hand-off line of (head, wave): dwords 0,1 = generation G, dwords 2+2p,3+2p = flag of part p")
e(f"s_lshl_b32 s{sFOFF}, s3, 2")
e(f"s_add_u32 s{sFOFF}, s{sFOFF}, s{sWAVE}")
e(f"s_lshl_b32 s{sFOFF}, s{sFOFF}, 7")
e(f"s_add_u32 s{sFOFF}, s{sFOFF}, {WSF}")
e(f"v_min_u32 v{vFA}, 17, v{vLANE}")
e(f"v_lshlrev_b32 v{vFA}, 2, v{vFA}")
e(f"s_add_u32 s{sWOFF}, s{sHEAD}, {WSK}")
c("part p < 6 normalises and publishes chunk p+2: parts 0,1 before the first barrier, part p in iteration p-2")
goff(sPOFF, sPART, 2)
def both(n_first, n_other, extra=""):
    _l[0] += 1; a_, b_ = f"L_wa{_l[0]}", f"L_wb{_l[0]}"
    e(f"s_cmp_ge_u32 s{sPART}, {NFIRST}")
    e(f"s_cbranch_scc1 {a_}")
    e(f"s_waitcnt vmcnt({n_first}){extra}")
    e(f"s_branch {b_}")
    e(f"{a_}:")
    e(f"s_waitcnt vmcnt({n_other}){extra}")
    e(f"{b_}:")
_l = [0]
NFIRST = opt("nfirst", 2)
e(f"s_cmp_ge_u32 s{sPART}, {NFIRST}")
e("s_cbranch_scc1 L_notfirst")
loadK(RAW3, sPOFF)
e("L_notfirst:")
ua_consts()
c("K' write address: tile (l>>5)*2048 + key*16 (+ chunk c*512)")
e(f"v_and_b32 v{vT0}, 31, v{vLANE}")
e(f"v_lshlrev_b32 v{vT0}, 4, v{vT0}")
e(f"v_lshrrev_b32 v{vT1}, 5, v{vLANE}")
e(f"v_lshl_add_u32 v{vPUB}, v{vT1}, 11, v{vT0}")
e(f"v_add_u32 v{vKWl}, s{sW}, v{vPUB}")
e(f"s_mov_b32 s{sFLG}, 0")
e(f"s_mov_b32 s{sPEND}, 0")
e(f"s_mov_b32 s{sSTG}, 0")
e(f"s_sub_u32 s{sIP}, s{sPART}, {NFIRST}")
e(f"s_cmp_ge_u32 s{sPART}, 6")
e(f"s_cselect_b32 s{sIP}, 100, s{sIP}")
c("--- stage 0 and stage 1 data")
both(8, 4)
stamp(20)
loadV(sCUR)
e(f"buffer_load_dword v{vFL}, v{vFA}, s[{sWS}:{sWS+3}], s{sFOFF} offen sc1")
pnorm(RAW); wrK(vKWl)
both(9, 5, " lgkmcnt(0)")
stamp(21)
pnorm(RAW2); wrK(vKWl, 32768)
e(f"s_cmp_ge_u32 s{sPART}, {NFIRST}")
e("s_cbranch_scc1 L_nofirstpub")
e("s_waitcnt vmcnt(5) lgkmcnt(0)")
stamp(28)
publish()
e("L_nofirstpub:")
setm0(sM0V, 32768)
both(5, 1, " lgkmcnt(0)")
stamp(8)
e("s_barrier")
c("--- iteration -1: V(1), V(2); flags of parts 0,1,6,7; part 2 fetches its raw chunk")
loadV(sTMP2)
goff(sGOFF, sSTG, 2)
setm0(sM0V, 65536)
e(f"s_mov_b32 s{sSLOT}, 65536")
loadV(sGOFF)
e("s_waitcnt vmcnt(8)")
c("tag of this launch: T = G + golden ratio (64 bit)")
e(f"v_readlane_b32 s{sTAG}, v{vFL}, 0")
e(f"v_readlane_b32 s{sTAG+1}, v{vFL}, 1")
e(f"v_and_b32 v{vT0}, 1, v{vLANE}")
e(f"s_add_u32 s{sTAG}, s{sTAG}, 0x7f4a7c15")
e(f"s_addc_u32 s{sTAG+1}, s{sTAG+1}, 0x9e3779b9")
e(f"v_cmp_eq_u32 vcc, 1, v{vT0}")
e(f"v_mov_b32 v{vTG2}, s{sTAG}")
e(f"v_mov_b32 v{vTG2+1}, s{sTAG+1}")
e(f"v_cndmask_b32 v{vTAG}, v{vTG2}, v{vTG2+1}, vcc")
e(f"s_cmp_lt_u32 s{sIP}, 6")
e("s_cbranch_scc1 L_i1")
stamp(29)
raise_flag()
e("s_waitcnt vmcnt(5)")
e("s_branch L_i3")
e("L_i1:")
e("s_waitcnt vmcnt(4)")
e(f"s_cmp_lg_u32 s{sIP}, 0")
e("s_cbranch_scc1 L_i3")
loadK(RAW3, sPOFF)
e("L_i3:")
stamp(9)
e("s_barrier")
c("--- iteration i = 0..5 (after barrier B_i): K'(i+2), V(i+3)")
e("L_ploop:")
e("s_waitcnt vmcnt(0)")
e(f"s_cmp_eq_u32 s{sPEND}, 0")
e("s_cbranch_scc1 L_nopend")
raise_flag()
e(f"s_mov_b32 s{sPEND}, 0")
e("L_nopend:")
c("is chunk i+2 published (by part i)?  bounded polling, else normalise locally")
e(f"s_mov_b32 s{sCNT}, {NPOLL}")
e("L_poll:")
e(f"s_lshl_b32 s{sTMP}, s{sSTG}, 1")
e(f"s_bitcmp1_b32 s{sFLG}, s{sTMP}")
e("s_cbranch_scc1 L_ready")
e(f"s_cmp_eq_u32 s{sCNT}, 0")
e("s_cbranch_scc1 L_local")
e(f"s_sub_u32 s{sCNT}, s{sCNT}, 1")
poll()
e("s_branch L_poll")
e("L_local:")
loadK(RAW, sGOFF)
e(f"v_add_u32 v{vKW}, s{sSLOT}, v{vKWl}")
e("s_waitcnt vmcnt(0)")
pnorm(RAW)
wrK(vKW)
e("s_waitcnt lgkmcnt(0)")
e("s_branch L_have")
e("L_ready:")
e(f"s_lshl_b32 s{sTMP}, s{sSTG}, 14")
e(f"s_add_u32 s{sTMP}, s{sTMP}, s{sWOFF}")
setm0(sW, f"s{sSLOT}")
e("s_nop 0")
for j in range(4): e(f"buffer_load_dwordx4 v{vG16}, s[{sWS}:{sWS+3}], s{sTMP} offen offset:{1024*j} sc1 lds")
e("L_have:")
stamp_idx(22)
if STAMP == 1:
    e(f"s_add_u32 s56, s{sSTG}, 42"); e("s_mov_b32 m0, s56"); e(f"v_writelane_b32 v{vST}, s{sCNT}, m0")
e(f"s_cmp_eq_u32 s{sSTG}, 5")
e("s_cbranch_scc1 L_plast")
e(f"s_add_u32 s{sSLOT}, s{sSLOT}, 32768")
e(f"s_and_b32 s{sSLOT}, s{sSLOT}, 0x1ffff")
setm0(sM0V, f"s{sSLOT}")
goff(sGOFF, sSTG, 3)
loadV(sGOFF)
e(f"s_cmp_eq_u32 s{sSTG}, s{sIP}")
e("s_cbranch_scc1 L_pub")
e(f"s_add_u32 s{sSTG}, s{sSTG}, 1")
e(f"s_cmp_eq_u32 s{sSTG}, s{sIP}")
e("s_cbranch_scc1 L_raw")
e("s_waitcnt vmcnt(4)")
e("L_pbar:")
stamp_idx(9)
e("s_barrier")
e("s_branch L_ploop")
e("L_pub:")
publish()
e(f"s_mov_b32 s{sPEND}, 1")
e(f"s_add_u32 s{sSTG}, s{sSTG}, 1")
e("s_waitcnt vmcnt(8)")
e("s_branch L_pbar")
e("L_raw:")
loadK(RAW3, sPOFF)
e("s_waitcnt vmcnt(8)")
e("s_branch L_pbar")
e("L_plast:")
e("s_waitcnt vmcnt(0)")
e("s_barrier")
c("part 0: once every part has raised its flag (so has read G), advance the generation for the next launch")
e(f"s_cmp_lg_u32 s{sPART}, 0")
e("s_cbranch_scc1 L_pend")
e("L_fin:")
e(f"s_and_b32 s{sTMP}, s{sFLG}, 0x5555")
e(f"s_cmp_eq_u32 s{sTMP}, 0x5555")
e("s_cbranch_scc1 L_bump")
poll()
e("s_branch L_fin")
e("L_bump:")
e("s_mov_b64 exec, 1")
e(f"buffer_store_dwordx2 {vr(vTG2,2)}, v{vFA}, s[{sWS}:{sWS+3}], s{sFOFF} offen sc1")
e("s_mov_b64 exec, -1")
e("L_pend:")
if STAMP:
    stamp(18)
    e(f"s_add_u32 s{sTMP}, s{sWAVE}, 8")
    st_flush(sTMP)
e("s_endpgm")

c("|t| large (or NaN): find the true row max of the logits first, then run the main loop with C = -max")
e("L_maxpass:")
e(f"ds_read_b128 {vr(QB,4)}, v{vQR}")
e(f"ds_read_b128 {vr(QB+4,4)}, v{vQR} offset:1088")
c("lane (key=l&31,h=l>>5): frag i = bytes key*64 + i*32 + h*16")
e(f"s_mov_b32 s{sTMP}, s{sHEAD}")
e(f"s_mov_b32 s{sTMP2}, 0")
e(f"v_mov_b32 v{vT3}, 0xff800000")
e(f"v_mov_b32 v{vT4}, 0xff800000")
e("s_waitcnt lgkmcnt(0)")
e("L_maxloop:")
e(f"buffer_load_dwordx4 {vr(SB,4)}, v{vOUT}, s[{sK}:{sK+3}], s{sTMP} offen")
e(f"buffer_load_dwordx4 {vr(SB+4,4)}, v{vOUT}, s[{sK}:{sK+3}], s{sTMP} offen offset:32")
e("s_waitcnt vmcnt(0)")
unpack(SB, OA)
dots(vT0, SB, 8)
e("s_nop 2")
e(f"v_mov_b32 v{vT1}, v{vT0}"); e("s_nop 1")
e(f"v_permlane32_swap_b32 v{vT0}, v{vT1}"); e("s_nop 1")
e(f"v_add_f32 v{vT0}, v{vT0}, v{vT1}")
e(f"v_sqrt_f32 v{vT0}, v{vT0}"); e("s_nop 0")
e(f"v_add_f32 v{vT0}, 0x358637bd, v{vT0}")
e(f"v_rcp_f32 v{vT2}, v{vT0}"); e("s_nop 0")
scale_pack(OA, 8, vT2, OB)
e("s_nop 1")
for S, Q in ((CA, QA), (CB, QB)):
    e(f"v_mfma_f32_32x32x16_bf16 {vr(S,16)}, {vr(OB,4)}, {vr(Q,4)}, 0")
    e(f"v_mfma_f32_32x32x16_bf16 {vr(S,16)}, {vr(OB+4,4)}, {vr(Q+4,4)}, {vr(S,16)}")
e("s_nop 15")
for S, M in ((CA, vT3), (CB, vT4)):
    for j in range(8): e(f"v_max3_f32 v{M}, v{S+2*j}, v{S+2*j+1}, v{M}")
e(f"s_add_u32 s{sTMP}, s{sTMP}, 2048")
e(f"s_add_u32 s{sTMP2}, s{sTMP2}, 1")
e(f"s_cmp_lt_u32 s{sTMP2}, 64")
e("s_cbranch_scc1 L_maxloop")
for C, M in ((CA, vT3), (CB, vT4)):
    e(f"v_mov_b32 v{vT0}, v{M}")
    e("s_nop 1")
    e(f"v_permlane32_swap_b32 v{vT0}, v{M}")
    e("s_nop 1")
    e(f"v_max_f32 v{M}, v{M}, v{vT0}")
    e(f"v_xor_b32 v{C}, 0x80000000, v{M}")
    for j in range(1, 16): e(f"v_mov_b32 v{C+j}, v{C}")
zero(list(range(OA, OA+16)) + list(range(OB, OB+16)))
e("s_branch L_start")

nv = max(136, (NV + 7) // 8 * 8)
src = HEADER + f"; @launch grid=(256,1,1) block=(768,1,1) lds={LDS_TOTAL}\n" + f""".amdgcn_target "amdgcn-amd-amdhsa--gfx950"
.text
.globl {NAME}
.p2align 8
.type {NAME},@function
""" + "\n".join(L) + f"""
.section .rodata,"a"
.p2align 6
.amdhsa_kernel {NAME}
  .amdhsa_next_free_vgpr {nv}
  .amdhsa_next_free_sgpr 64
  .amdhsa_accum_offset {nv}
  .amdhsa_group_segment_fixed_size 0
  .amdhsa_kernarg_size 56
  .amdhsa_user_sgpr_count 2
  .amdhsa_user_sgpr_kernarg_segment_ptr 1
  .amdhsa_system_sgpr_workgroup_id_x 1
.end_amdhsa_kernel
"""
open(sys.argv[1], "w").write(src)
print("vgprs", NV, "->", nv)
```

```python
import sys
OPT = dict(a.split("=") for a in sys.argv[2:] if "=" in a)
def opt(name, default): return type(default)(OPT.get(name, default))
def flags(name, default): return OPT.get(name, default).replace("+", " ").replace("none", "")
STAMP = opt("stamp", 0)
PRIO = OPT.get("prio", "2103")
B1 = opt("b1", 2)
K1AT = opt("k1at", 0)
PPRIO = opt("pprio", 3)
NPOLL = opt("npoll", 8)
CZERO = opt("czero", 0)
STFLAGS = flags("stflags", "nt"); QFLAGS = flags("qflags", "nt"); PUBFL = flags("pubfl", "none")
KDMA = opt("kdma", 1)
OWNISS = opt("owniss", 1)
OWNAT = opt("ownat", 0)
FULL = opt("full", 1)
XFLAG = opt("xflag", 0)
OWNV = opt("ownv", 1)
V3AT = opt("v3at", 0)
NOPUB = opt("nopub", 0); COMMON = opt("common", 0); PUBST = flags("pubst", "sc1")
BV = opt("bv", 0)
BARAT = opt("barat", 2)
BAR7 = opt("bar7", 1)
LASTP = opt("lastp", 0)

HEADER = open("standalone__qk_norm__prompt.s.ref").read().split("; Override launch")[0]
NAME = "standalone__qk_norm__prompt_kernel"
L = []
def e(s=""): L.append("    " + s.rstrip() if s and not s.endswith(":") else s)
def c(s): L.append("    ; " + s)

class VA:
    def __init__(s, n=1): s.n = n
    def get(s, k=1, al=1):
        s.n = (s.n + al - 1) // al * al
        b = s.n; s.n += k; return b
def vr(b, n): return f"v[{b}:{b+n-1}]"
va = VA()
vLANE = va.get(); vG16 = va.get(); vT0 = va.get(); vT1 = va.get(); vT3 = va.get(); vT2 = va.get(2, 2); vT4 = va.get(2, 2)
vST = va.get(); vST2 = va.get()
UA = va.get(8, 4)
base = va.n
vKR = va.get(); vVR = va.get(); vKRl = va.get(); vVRl = va.get(); vIDX = va.get(); vTL = va.get(); vRED = va.get(); vOUT = va.get()
vQR = va.get(); vQW = va.get(); vXF = va.get(); vRD = va.get()
KF = UA
ONES = va.get(4, 4)
QA = va.get(8, 4); QB = va.get(8, 4)
VF0 = va.get(4, 4); VF1 = va.get(4, 4)
LA = va.get(4, 4); LB = va.get(4, 4)
SA = va.get(16, 4); SB = va.get(16, 4)
OA = va.get(16, 4); OB = va.get(16, 4)
CA = va.get(16, 4); CB = va.get(16, 4)
NV = va.n
vp = VA(base)
vG64 = vp.get(); vKWl = vp.get(); vKW = vp.get(); vFA = vp.get(); vFL = vp.get(); vTAG = vp.get(); vTG2 = vp.get(2, 2); vPUB = vp.get()
RAW = vp.get(16, 4); RAW2 = vp.get(16, 4); RAW3 = vp.get(16, 4); UNP = vp.get(32, 4); PK = vp.get(16, 4)
assert vp.n <= NV and NV <= 168 and B1 == 2 and not BV

sQ, sK, sV, sO, sWS = 16, 20, 24, 28, 12
sHEAD = 32; sPART = 33; sWAVE = 34; sSTG = 35; sT = 36; sGOFF = 37; sSLOT = 38; sCNT = 39
sTMP = 40; sTMP2 = 41; sW = 42; sCH = 43; sM0V = 44; sQOFF = 45; sFLG = 46; sWOFF = 47
sIP = 57; sPEND = 58; sPOFF = 59; sPJ = 60; sEARLY = 61; sPMAP = 62; sFOFF = 4; sIDX = 5; sC0 = 6; sCUR = 7; sTAG = 8; sTP = 10
LDS_Q = 131072; QSTR = 2176; LDS_XF = LDS_Q + 8 * QSTR; LDS_TOTAL = LDS_XF + 64
WSK = 0x400000; WSF = 0x800000

def st_issue(force=False):
    if STAMP == 1 or (STAMP and force):
        e("s_memtime s[52:53]"); e("s_memrealtime s[54:55]")
def st_put(lane):
    if STAMP == 1 or (STAMP and lane in (0, 18)):
        e(f"v_writelane_b32 v{vST}, s52, {lane}"); e(f"v_writelane_b32 v{vST2}, s54, {lane}")
def stamp(lane):
    if STAMP == 1 or (STAMP and lane == 18):
        st_issue(True); e("s_waitcnt lgkmcnt(0)"); st_put(lane)
def stamp_idx(add):
    if STAMP == 1:
        st_issue(); e("s_waitcnt lgkmcnt(0)"); e(f"s_add_u32 s56, s{sSTG}, {add}"); e("s_mov_b32 m0, s56"); st_put("m0")
def st_init():
    if STAMP:
        e(f"v_mov_b32 v{vST}, 0"); e(f"v_mov_b32 v{vST2}, 0"); st_put(0)
def st_flush(slot_sgpr):
    if STAMP:
        e(f"s_mul_i32 s56, s2, 12"); e(f"s_add_u32 s56, s56, s{slot_sgpr}"); e(f"s_lshl_b32 s56, s56, 9")
        e(f"v_lshlrev_b32 v{vT0}, 2, v{vLANE}")
        e(f"buffer_store_dword v{vST}, v{vT0}, s[{sWS}:{sWS+3}], s56 offen")
        e(f"buffer_store_dword v{vST2}, v{vT0}, s[{sWS}:{sWS+3}], s56 offen offset:256")

def unpack(raw, dst):
    e(f"v_mfma_f32_32x32x16_bf16 {vr(dst,16)}, {vr(UA,4)}, {vr(raw,4)}, 0")
    e(f"v_mfma_f32_32x32x16_bf16 {vr(dst,16)}, {vr(UA+4,4)}, {vr(raw+4,4)}, {vr(dst,16)}")
def dots(acc, raw, n):
    e(f"v_dot2_f32_bf16 v{acc}, v{raw}, v{raw}, 0")
    for j in range(1, n): e(f"v_dot2_f32_bf16 v{acc}, v{raw+j}, v{raw+j}, v{acc}")
def scale_pack(unp, n, sc, pk):
    for j in range(n): e(f"v_pk_mul_f32 {vr(unp+2*j,2)}, {vr(unp+2*j,2)}, {vr(sc,2)} op_sel_hi:[1,0]")
    for j in range(n): e(f"v_cvt_pk_bf16_f32 v{pk+j}, v{unp+2*j}, v{unp+2*j+1}")
def zero(regs):
    for r in list(regs)[::2]: e(f"v_mov_b64 {vr(r,2)}, 0")

def qk(S, Q, C):
    return [f"v_mfma_f32_32x32x16_bf16 {vr(S,16)}, {vr(KF,4)}, {vr(Q,4)}, " + ("0" if CZERO else vr(C,16)),
            f"v_mfma_f32_32x32x16_bf16 {vr(S,16)}, {vr(KF+4,4)}, {vr(Q+4,4)}, {vr(S,16)}"]
def pv(O, VF, S): return f"v_smfmac_f32_32x32x32_bf16 {vr(O,16)}, {vr(VF,4)}, {vr(S,8)}, v{vIDX}"
def sm(Lr, S): return f"v_smfmac_f32_16x16x64_bf16 {vr(Lr,4)}, {vr(ONES,4)}, {vr(S,8)}, v{vIDX}"
def ex(S, a, b):
    for j in range(a, b): e(f"v_exp_f32 v{S+j}, v{S+j}")
def rdK(t):
    e(f"ds_read_b128 {vr(KF,4)}, v{vKR} offset:{t*2048}")
    e(f"ds_read_b128 {vr(KF+4,4)}, v{vKR} offset:{t*2048+1024}")
def rdV(VF, t, half):
    e(f"ds_read_b64_tr_b16 {vr(VF,2)}, v{vVR} offset:{t*2048+half*1024}")
    e(f"ds_read_b64_tr_b16 {vr(VF+2,2)}, v{vVR} offset:{t*2048+half*1024+256}")
def rdX(withflag=True):
    if XFLAG and withflag: e(f"ds_read_b32 v{vT3}, v{vXF}")
    e(f"ds_read_b32 v{LA}, v{vKRl} offset:4096")
    for j in range(4): e(f"ds_read_b128 {vr(OA+4*j,4)}, v{vRD} offset:{1024*j}")

def setp(i, force=False):
    if PRIO == "none": return
    if i == 2*(BARAT+1) and not force and not BAR7: return
    p = PRIO if len(PRIO) == 8 else "".join(x + x for x in PRIO)
    if i == 0 or p[i] != p[i-1]: e(f"s_setprio {p[i]}")
def slotA(kt):
    c(f"--- slot A kt={kt}")
    setp(2*kt)
    q = qk(SB, QB, CB)
    ex(SA, 0, 2); e(pv(OB, VF1, SB+8)); ex(SA, 2, 5); e(sm(LB, SB+8))
    rdV(VF1, kt, 1)
    ex(SA, 5, 7)
    e(q[0]); ex(SA, 7, 10); e(q[1])
    if kt == 3: e(f"v_add_u32 v{vKR}, s{sSLOT}, v{vKRl}")
    rdK((kt + 1) & 3)
    ex(SA, 10, 13)
    e("s_waitcnt lgkmcnt(4)")
    e(pv(OA, VF0, SA)); ex(SA, 13, 16); e(sm(LA, SA))
def slotB(kt, last=False):
    c(f"--- slot B kt={kt}" + (" (last)" if last else ""))
    setp(2*kt+1)
    q = qk(SA, QA, CA)
    ex(SB, 0, 2)
    e("s_waitcnt lgkmcnt(2)")
    if kt == 3: st_issue()
    if STAMP == 3: st_issue(True)
    e(pv(OA, VF1, SA+8)); ex(SB, 2, 5); e(sm(LA, SA+8)); ex(SB, 5, 7)
    if not last or STAMP in (1, 3): e("s_waitcnt lgkmcnt(0)")
    if STAMP == 3:
        e(f"s_lshl2_add_u32 m0, s{sSTG}, {32+kt}")
        e(f"v_writelane_b32 v{vST}, s52, m0"); e(f"v_writelane_b32 v{vST2}, s54, m0")
    if kt == 3 and STAMP == 1:
        e(f"s_add_u32 s56, s{sSTG}, 8"); e(f"s_mov_b32 m0, s56"); st_put("m0")
    if last:
        ex(SB, 7, 10)
        e(pv(OB, VF0, SB))
        ex(SB, 10, 12)
        c("tile A is complete: hand its partial sums to the partner wave")
        for j in range(4): e(f"ds_write_b128 v{vRED}, {vr(OA+4*j,4)} offset:{1024*j}")
        e(f"ds_write_b32 v{vVRl}, v{LA} offset:4096")
        if XFLAG:
            e(f"ds_write_b32 v{vQW}, v{vIDX}")
            rdX()
        ex(SB, 12, 13)
        e(sm(LB, SB))
        ex(SB, 13, 16)
        return
    e(q[0]); ex(SB, 7, 10); e(q[1])
    if kt == 3: e(f"v_add_u32 v{vVR}, s{sSLOT}, v{vVRl}")
    ex(SB, 10, 13)
    e(pv(OB, VF0, SB))
    rdV(VF0, (kt + 1) & 3, 0)
    ex(SB, 13, 16); e(sm(LB, SB))

def ua_consts():
    c("unpack selection matrices: lane (m=l&31,hA=l>>5): A_i has 1.0 at e=(m&3)+4*((m>>3)&1) iff (m>>4)==i and ((m>>2)&1)==hA")
    e(f"v_bfe_u32 v{vT0}, v{vLANE}, 2, 1")
    e(f"v_lshrrev_b32 v{vT1}, 5, v{vLANE}")
    e(f"v_cmp_eq_u32 vcc, v{vT0}, v{vT1}")
    e(f"v_and_b32 v{vT0}, 1, v{vLANE}")
    e(f"v_lshlrev_b32 v{vT0}, 4, v{vT0}")
    e(f"v_mov_b32 v{vT1}, 0x3f80")
    e(f"v_lshlrev_b32 v{vT1}, v{vT0}, v{vT1}")
    e(f"v_cndmask_b32 v{vT1}, 0, v{vT1}, vcc")
    e(f"v_bfe_u32 v{vT0}, v{vLANE}, 1, 1")
    e(f"v_bfe_u32 v{vT2}, v{vLANE}, 3, 2")
    e(f"v_lshl_add_u32 v{vT0}, v{vT2}, 1, v{vT0}")
    for r in range(8):
        e(f"v_cmp_eq_u32 vcc, {r}, v{vT0}")
        e("s_nop 1")
        e(f"v_cndmask_b32 v{UA+r}, 0, v{vT1}, vcc")
def loadK(dst, soff, fl=""):
    for j in range(4): e(f"buffer_load_dwordx4 {vr(dst+4*j,4)}, v{vG64}, s[{sK}:{sK+3}], s{soff} offen offset:{16*j} {fl}")
def loadV(soff):
    for j in range(4): e(f"buffer_load_dwordx4 v{vG16}, s[{sV}:{sV+3}], s{soff} offen offset:{1024*j} lds")

e(f"{NAME}:")
for s, off in ((sQ, 0), (sK, 8), (sV, 16), (sTP, 24), (sO, 32), (sWS, 48)):
    e(f"s_load_dwordx2 s[{s}:{s+1}], s[0:1], {off}")
st_issue(True)
e("s_cmp_ge_u32 s2, 256")
e("s_cbranch_scc1 L_end")
c("head = (wg&7)*4 + ((wg>>3)&3), part = wg>>5")
e(f"v_lshrrev_b32 v{vT0}, 6, v0")
e(f"v_and_b32 v{vLANE}, 63, v0")
e(f"v_readfirstlane_b32 s{sWAVE}, v{vT0}")
e("s_and_b32 s3, s2, 7")
e("s_lshl_b32 s3, s3, 2")
e(f"s_bfe_u32 s{sTMP}, s2, 0x20003")
e(f"s_add_u32 s3, s3, s{sTMP}")
e(f"s_lshl_b32 s{sHEAD}, s3, 17")
e(f"s_lshr_b32 s{sPART}, s2, 5")
e(f"v_lshlrev_b32 v{vG16}, 4, v{vLANE}")
e(f"s_mov_b32 s{sQ+2}, 0x400000")
e(f"s_mov_b32 s{sQ+3}, 0x00020000")
for s in (sK, sV, sO): e(f"s_mov_b64 s[{s+2}:{s+3}], s[{sQ+2}:{sQ+3}]")
e(f"s_mov_b32 s{sWS+2}, 0x804000"); e(f"s_mov_b32 s{sWS+3}, 0x00020000")
e(f"s_cmp_ge_u32 s{sWAVE}, 4")
e("s_cbranch_scc1 L_consumer")
c("producer: first loads K(0) V(0) K(1)")
QFIRST = opt("qfirst", 0)
if not QFIRST: e(f"s_setprio {PPRIO}")
e(f"s_lshl_b32 s{sW}, s{sWAVE}, 12")
e(f"s_add_u32 s{sHEAD}, s{sHEAD}, s{sW}")
e(f"s_and_b32 s{sC0}, s3, 7"); e(f"s_lshl_b32 s{sC0}, s{sC0}, 14")
e(f"s_add_u32 s{sGOFF}, s{sHEAD}, s{sC0}")
e(f"s_add_u32 s{sM0V}, s{sW}, 16384")
e(f"v_lshlrev_b32 v{vG64}, 6, v{vLANE}")
e(f"s_mov_b32 m0, s{sM0V}")
e(f"s_add_u32 s{sTMP2}, s{sC0}, 16384")
e(f"s_and_b32 s{sTMP2}, s{sTMP2}, 0x1ffff")
e(f"s_add_u32 s{sTMP2}, s{sTMP2}, s{sHEAD}")
e("s_waitcnt lgkmcnt(0)")
if QFIRST: e("s_nop 7")
loadK(RAW, sGOFF)
e(f"s_mov_b32 s{sCUR}, s{sGOFF}")
if B1 in (0, 1): loadV(sGOFF)
if B1 in (0, 2, 4, 5, 6): loadK(RAW2, sTMP2)
if B1 == 4: loadV(sGOFF)
if QFIRST: e(f"s_setprio {PPRIO}")
e("s_branch L_producer")

c("===== consumer waves 4..11 =====")
e("L_consumer:")
if QFIRST: e("s_setprio 2")
e(f"s_sub_u32 s{sWAVE}, s{sWAVE}, 4")
e(f"s_lshl_b32 s{sW}, s{sWAVE}, 11")
e(f"s_lshl_b32 s{sTMP}, s{sPART}, 14")
e(f"s_add_u32 s{sQOFF}, s{sHEAD}, s{sTMP}")
e(f"s_add_u32 s{sQOFF}, s{sQOFF}, s{sW}")
e(f"s_lshr_b32 s{sTMP2}, s3, 1")
e(f"s_lshl_b32 s{sTMP2}, s{sTMP2}, 2")
e("s_waitcnt lgkmcnt(0)")
e(f"buffer_load_dwordx4 {vr(SA,4)}, v{vG16}, s[{sQ}:{sQ+3}], s{sQOFF} offen {QFLAGS}")
e(f"buffer_load_dwordx4 {vr(SA+4,4)}, v{vG16}, s[{sQ}:{sQ+3}], s{sQOFF} offen offset:1024 {QFLAGS}")
e(f"s_load_dword s{sT}, s[{sTP}:{sTP+1}], s{sTMP2}")
if B1 == 5:
    c("V tile w of the first chunk, queued behind Q")
    e(f"s_add_u32 m0, s{sW}, 16384")
    e(f"s_and_b32 s{sTMP}, s3, 7"); e(f"s_lshl_b32 s{sTMP}, s{sTMP}, 14")
    e(f"s_add_u32 s{sTMP}, s{sTMP}, s{sHEAD}"); e(f"s_add_u32 s{sTMP}, s{sTMP}, s{sW}")
    e(f"buffer_load_dwordx4 v{vG16}, s[{sV}:{sV+3}], s{sTMP} offen lds")
    e(f"buffer_load_dwordx4 v{vG16}, s[{sV}:{sV+3}], s{sTMP} offen offset:1024 lds")
st_init()
ua_consts()
c("K' read: group*8192 + lane*16")
e(f"s_and_b32 s{sTMP}, s{sWAVE}, 4")
e(f"s_lshl_b32 s{sTMP}, s{sTMP}, 11")
e(f"v_add_u32 v{vKRl}, s{sTMP}, v{vG16}")
c("V read: (8*hA + (i>>2))*64 + dhalf*32 + (i&3)*8 + 16384 + group*8192")
e(f"v_lshrrev_b32 v{vT0}, 5, v{vLANE}")
e(f"v_lshlrev_b32 v{vT0}, 9, v{vT0}")
e(f"v_bfe_u32 v{vT1}, v{vLANE}, 2, 2")
e(f"v_lshl_add_u32 v{vT0}, v{vT1}, 6, v{vT0}")
e(f"v_bfe_u32 v{vT1}, v{vLANE}, 4, 1")
e(f"v_lshl_add_u32 v{vT0}, v{vT1}, 5, v{vT0}")
e(f"v_and_b32 v{vT1}, 3, v{vLANE}")
e(f"v_lshl_add_u32 v{vT0}, v{vT1}, 3, v{vT0}")
e(f"s_add_u32 s{sTMP}, s{sTMP}, 16384")
e(f"v_add_u32 v{vVRl}, s{sTMP}, v{vT0}")
e(f"v_mov_b32 v{vKR}, v{vKRl}")
e(f"v_mov_b32 v{vVR}, v{vVRl}")
e(f"v_mov_b32 v{vIDX}, 0xdddddddd")
c("Q' write: LDS_Q + w*QSTR + (l&3)*544 + (l>>2)*16 ; read: LDS_Q + tile*QSTR + (l>>5)*544 + (l&31)*16")
e(f"s_mul_i32 s{sTMP}, s{sWAVE}, {QSTR}")
e(f"s_add_u32 s{sTMP}, s{sTMP}, {LDS_Q}")
e(f"v_mul_u32_u24 v{vT0}, 544, v{vT1}")
e(f"v_lshrrev_b32 v{vT1}, 2, v{vLANE}")
e(f"v_lshl_add_u32 v{vT0}, v{vT1}, 4, v{vT0}")
e(f"v_add_u32 v{vQW}, s{sTMP}, v{vT0}")
e(f"v_lshrrev_b32 v{vT1}, 5, v{vLANE}")
e(f"v_lshl_add_u32 v{vT0}, v{vT1}, 5, v{vG16}")
e(f"v_add_u32 v{vQR}, s{sTMP}, v{vT0}")
e(f"s_xor_b32 s{sTMP2}, s{sWAVE}, 4")
e(f"s_mul_i32 s{sTMP2}, s{sTMP2}, {QSTR}")
e(f"s_add_u32 s{sTMP2}, s{sTMP2}, {LDS_Q}")
e(f"v_add_u32 v{vT3}, s{sTMP2}, v{vT0}")
c("row-sum selector: only rows 0 (q 0..15) and 4 (q 16..31) carry ones")
e(f"v_and_b32 v{vT0}, 15, v{vLANE}")
e(f"v_mov_b32 v{vT1}, 0x3f803f80")
e(f"v_cmp_eq_u32 vcc, 0, v{vT0}")
e("s_nop 1")
e(f"v_cndmask_b32 v{ONES}, 0, v{vT1}, vcc")
e(f"v_cmp_eq_u32 vcc, 4, v{vT0}")
e(f"v_mov_b32 v{ONES+1}, v{ONES}")
e("s_nop 0")
e(f"v_cndmask_b32 v{ONES+2}, 0, v{vT1}, vcc")
e(f"v_mov_b32 v{ONES+3}, v{ONES+2}")
c("epilogue addresses")
e(f"s_lshl_b32 s{sTMP}, s{sWAVE}, 13")
e(f"v_add_u32 v{vRD}, s{sTMP}, v{vG16}")
e(f"v_xor_b32 v{vRED}, 0x8000, v{vRD}")
e(f"v_and_b32 v{vT0}, 31, v{vLANE}")
e(f"v_lshlrev_b32 v{vT0}, 6, v{vT0}")
e(f"v_lshrrev_b32 v{vT1}, 5, v{vLANE}")
e(f"v_lshl_add_u32 v{vOUT}, v{vT1}, 4, v{vT0}")
if FULL:
    c("output store: lane -> (row l&15, 16-byte chunk 2*((l>>4)&1) + (l>>5))")
    e(f"v_and_b32 v{vT0}, 15, v{vLANE}")
    e(f"v_lshlrev_b32 v{vT0}, 6, v{vT0}")
    e(f"v_lshl_add_u32 v{vT0}, v{vT1}, 4, v{vT0}")
    e(f"v_bfe_u32 v{vT1}, v{vLANE}, 4, 1")
    e(f"v_lshl_add_u32 v{vXF}, v{vT1}, 5, v{vT0}")
zero(list(range(OA, OA+16)) + list(range(OB, OB+16)) + list(range(LA, LA+4)) + list(range(LB, LB+4)) + list(range(VF1, VF1+4)))
if XFLAG:
    e(f"s_lshl_b32 s{sTMP}, s{sWAVE}, 2")
    e(f"s_add_u32 s{sTMP}, s{sTMP}, {LDS_XF}")
    e(f"v_mov_b32 v{vXF}, s{sTMP}")
e("s_waitcnt lgkmcnt(0)")
if XFLAG: e(f"ds_write_b32 v{vXF}, v{OA}")
e(f"s_lshl_b32 s{sTMP}, s{sT}, 16")
e(f"s_and_b32 s{sTMP2}, s{sT}, 0xffff0000")
e("s_bitcmp1_b32 s3, 0")
e(f"s_cselect_b32 s{sT}, s{sTMP2}, s{sTMP}")
e(f"v_mov_b32 v{vTL}, 0x3fb8aa3b")
e(f"v_mul_f32 v{vTL}, s{sT}, v{vTL}")
e(f"v_or_b32 v{CA}, 0x80000000, v{vTL}")
e(f"v_mov_b32 v{CA+1}, v{CA}")
for j in range(2, 32, 2): e(f"v_mov_b64 {vr(CA+j,2)}, {vr(CA,2)}")
zero(range(SB+8, SB+16))
e(f"s_mov_b32 s{sSTG}, 0")
e(f"s_mov_b32 s{sSLOT}, 32768")
e(f"s_and_b32 s{sT}, s{sT}, 0x7fffffff")
stamp(1)
c("Q tile: rows 16j + (l>>2), 8 elements per lane and j")
QU = QA
e(f"s_waitcnt vmcnt({2 if B1 == 5 else 0})")
stamp(2)
for j in range(4):
    e(f"v_dot2_f32_bf16 v{vT0}, v{SA+j}, v{SA+j}, " + ("0" if j == 0 else f"v{vT0}"))
    e(f"v_dot2_f32_bf16 v{vT1}, v{SA+4+j}, v{SA+4+j}, " + ("0" if j == 0 else f"v{vT1}"))
unpack(SA, QU)
for qp in ("[1,0,3,2]", "[2,3,0,1]"):
    e("s_nop 0")
    e(f"v_add_f32_dpp v{vT0}, v{vT0}, v{vT0} quad_perm:{qp} row_mask:0xf bank_mask:0xf")
    e(f"v_add_f32_dpp v{vT1}, v{vT1}, v{vT1} quad_perm:{qp} row_mask:0xf bank_mask:0xf")
e(f"v_sqrt_f32 v{vT0}, v{vT0}")
e(f"v_sqrt_f32 v{vT1}, v{vT1}")
e(f"v_add_f32 v{vT0}, 0x358637bd, v{vT0}")
e(f"v_add_f32 v{vT1}, 0x358637bd, v{vT1}")
e(f"v_rcp_f32 v{vT0}, v{vT0}")
e(f"v_rcp_f32 v{vT1}, v{vT1}")
e(f"v_mul_f32 v{vT2}, v{vT0}, v{vTL}")
e(f"v_mul_f32 v{vT4}, v{vT1}, v{vTL}")
scale_pack(QU, 4, vT2, SA+8)
e(f"ds_write_b128 v{vQW}, {vr(SA+8,4)}")
scale_pack(QU+8, 4, vT4, SA+12)
e(f"ds_write_b128 v{vQW}, {vr(SA+12,4)} offset:256")
stamp(3)
c("fast path check: |t| <= 16")
e(f"s_cmp_le_u32 s{sT}, 0x41800000")
e("s_waitcnt vmcnt(0) lgkmcnt(0)")
e("s_barrier")
e(f"ds_read_b128 {vr(QA,4)}, v{vT3}")
e(f"ds_read_b128 {vr(QA+4,4)}, v{vT3} offset:1088")
e("s_cbranch_scc0 L_maxpass")
e("L_start:")
rdK(0)
e(f"ds_read_b128 {vr(QB,4)}, v{vQR}")
e(f"ds_read_b128 {vr(QB+4,4)}, v{vQR} offset:1088")
if not BV: rdV(VF0, 0, 0)
if XFLAG: e(f"v_xor_b32 v{vQW}, 16, v{vXF}")
stamp(5)
e(f"s_waitcnt lgkmcnt({2 if BV else 4})")
for s in qk(SA, QA, CA): e(s)
if BV:
    e("s_barrier")
    rdV(VF0, 0, 0)
e("s_waitcnt lgkmcnt(2)")
e("s_nop 7")
if not BV: e("s_nop 2")
stamp(6)
e(".p2align 6")
e("L_stage:")
for kt in range(4):
    slotA(kt)
    if kt == 3:
        e("s_cbranch_scc1 L_last")
    slotB(kt)
    if kt == BARAT:
        e(f"s_cmp_eq_u32 s{sSTG}, 7")
        if not BAR7: e("s_cbranch_scc1 L_nobar")
        e("s_barrier")
        if not BAR7: setp(2*(BARAT+1), True)
        e("L_nobar:")
e(f"s_add_u32 s{sSTG}, s{sSTG}, 1")
e(f"s_add_u32 s{sSLOT}, s{sSLOT}, 32768")
e(f"s_and_b32 s{sSLOT}, s{sSLOT}, 0x1ffff")
e("s_branch L_stage")
e("L_last:")
if LASTP >= 0: e(f"s_setprio {LASTP}")
c("row-sum exchange addresses (4-byte lane stride); the ring bases are dead now")
e(f"s_lshl_b32 s{sTMP}, s{sWAVE}, 13")
e(f"v_lshl_add_u32 v{vKRl}, v{vLANE}, 2, s{sTMP}")
e(f"v_xor_b32 v{vVRl}, 0x8000, v{vKRl}")
slotB(3, last=True)
if XFLAG:
    e("s_waitcnt lgkmcnt(5)")
    e(f"v_readfirstlane_b32 s{sTMP}, v{vT3}")
    e(pv(OB, VF1, SB+8))
    e(sm(LB, SB+8))
    stamp(16)
    e(f"s_cmp_lg_u32 s{sTMP}, 0")
    e("s_cbranch_scc1 L_xok")
    e("L_xwait:")
    e(f"ds_read_b32 v{vT3}, v{vXF}")
    e("s_waitcnt lgkmcnt(0)")
    e(f"v_readfirstlane_b32 s{sTMP}, v{vT3}")
    e("s_nop 0")
    e(f"s_cmp_eq_u32 s{sTMP}, 0")
    e("s_cbranch_scc1 L_xwait")
    rdX(False)
    e("L_xok:")
    e("s_nop 6")
else:
    e("s_nop 0")
    e("s_waitcnt lgkmcnt(0)")
    e(pv(OB, VF1, SB+8))
    e(sm(LB, SB+8))
    stamp(16)
    e("s_barrier")
    rdX()
    e("s_nop 3")
e("s_waitcnt lgkmcnt(4)")
e(f"v_add_f32 v{LA}, v{LA}, v{LB}")
e(f"v_rcp_f32 v{vT2}, v{LA}")
e("s_nop 0")
e(f"v_mov_b32 v{vT1}, v{vT2}")
PKo = SA
for j in range(4):
    e(f"s_waitcnt lgkmcnt({3-j})")
    for i in range(2):
        r = 4*j + 2*i
        e(f"v_pk_add_f32 {vr(OA+r,2)}, {vr(OA+r,2)}, {vr(OB+r,2)}")
    if j == 0: e(f"v_permlane32_swap_b32 v{vT2}, v{vT1}")
assert not (FULL and XFLAG)
for i in range(8):
    e(f"v_pk_mul_f32 {vr(OA+2*i,2)}, {vr(OA+2*i,2)}, {vr(vT2,2)} op_sel_hi:[1,0]")
for i in range(8):
    e(f"v_cvt_pk_bf16_f32 v{PKo+i}, v{OA+2*i}, v{OA+2*i+1}")
    if i == 5:
        e(f"v_permlane32_swap_b32 v{PKo+0}, v{PKo+2}")
        e(f"v_permlane32_swap_b32 v{PKo+1}, v{PKo+3}")
if FULL:
    e("s_nop 1")
    e(f"v_permlane32_swap_b32 v{PKo+4}, v{PKo+6}")
    e(f"v_permlane32_swap_b32 v{PKo+5}, v{PKo+7}")
    e("s_nop 1")
    for j in range(4): e(f"v_permlane16_swap_b32 v{PKo+j}, v{PKo+4+j}")
    e("s_nop 1")
    e(f"buffer_store_dwordx4 {vr(PKo,4)}, v{vXF}, s[{sO}:{sO+3}], s{sQOFF} offen {STFLAGS}")
    e(f"buffer_store_dwordx4 {vr(PKo+4,4)}, v{vXF}, s[{sO}:{sO+3}], s{sQOFF} offen offset:1024 {STFLAGS}")
else:
    e(f"buffer_store_dwordx4 {vr(PKo,4)}, v{vOUT}, s[{sO}:{sO+3}], s{sQOFF} offen {STFLAGS}")
    e("s_nop 0")
    e(f"v_permlane32_swap_b32 v{PKo+4}, v{PKo+6}")
    e(f"v_permlane32_swap_b32 v{PKo+5}, v{PKo+7}")
    e("s_nop 1")
    e(f"buffer_store_dwordx4 {vr(PKo+4,4)}, v{vOUT}, s[{sO}:{sO+3}], s{sQOFF} offen offset:32 {STFLAGS}")
if STAMP:
    stamp(17)
    e("s_waitcnt vmcnt(0)")
    stamp(18)
    st_flush(sWAVE)
e("L_end:")
e("s_endpgm")

c("===== producer waves 0..3: K tiles 2w,2w+1 and V tiles 2w,2w+1 of every chunk =====")
def pnorm(raw):
    acc = [vT0, vT1, vT4, vT4+1]
    for j in range(16):
        a_ = acc[j & 3]
        e(f"v_dot2_f32_bf16 v{a_}, v{raw+j}, v{raw+j}, " + ("0" if j < 4 else f"v{a_}"))
    unpack(raw, UNP); unpack(raw+8, UNP+16)
    e(f"v_add_f32 v{vT0}, v{vT0}, v{vT1}")
    e(f"v_add_f32 v{vT4}, v{vT4}, v{vT4+1}")
    e(f"v_add_f32 v{vT0}, v{vT0}, v{vT4}")
    e(f"v_sqrt_f32 v{vT0}, v{vT0}"); e("s_nop 0")
    e(f"v_add_f32 v{vT0}, 0x358637bd, v{vT0}")
    e(f"v_rcp_f32 v{vT2}, v{vT0}")
    e("s_nop 5")
    scale_pack(UNP, 16, vT2, PK)
def goff(dst, idx_sgpr=None, add=0):
    e(f"s_add_u32 s{dst}, s{idx_sgpr}, {add}")
    e(f"s_lshl_b32 s{dst}, s{dst}, 14")
    e(f"s_add_u32 s{dst}, s{dst}, s{sC0}")
    e(f"s_and_b32 s{dst}, s{dst}, 0x1ffff")
    e(f"s_add_u32 s{dst}, s{dst}, s{sHEAD}")
def wrK(addr, off=0):
    for j in range(4): e(f"ds_write_b128 v{addr}, {vr(PK+4*j,4)} offset:{off+512*j}")
def setm0(base_sgpr, add): e(f"s_add_u32 m0, s{base_sgpr}, {add}")
def poll():
    e(f"buffer_load_dword v{vFL}, v{vFA}, s[{sWS}:{sWS+3}], s{sFOFF} offen sc1")
    e("s_waitcnt vmcnt(0)")
    e(f"v_cmp_eq_u32 vcc, v{vFL}, v{vTAG}")
    e("s_nop 0")
    e(f"s_lshr_b32 s{sFLG}, vcc_lo, 2")
    e(f"s_lshr_b32 s{sTMP}, vcc_lo, 3")
    e(f"s_and_b32 s{sFLG}, s{sFLG}, s{sTMP}")
def publish():
    pnorm(RAW3)
    e(f"s_lshl_b32 s{sTMP}, s{sPJ}, 14")
    e(f"s_add_u32 s{sTMP}, s{sTMP}, s{sWOFF}")
    for j in range(4): e(f"buffer_store_dwordx4 {vr(PK+4*j,4)}, v{vPUB}, s[{sWS}:{sWS+3}], s{sTMP} offen offset:{512*j} sc1")
def raise_flag():
    e(f"s_lshl_b32 s{sTMP}, s{sPART}, 3")
    e(f"s_add_u32 s{sTMP}, s{sTMP}, s{sFOFF}")
    e("s_mov_b64 exec, 1")
    e(f"buffer_store_dwordx2 {vr(vTG2,2)}, v{vFA}, s[{sWS}:{sWS+3}], s{sTMP} offen offset:8 sc1")
    e("s_mov_b64 exec, -1")
e("L_producer:")
st_init()
c("hand-off line of (head, wave): dwords 0,1 = generation G, dwords 2+2p,3+2p = flag of part p")
e(f"s_lshl_b32 s{sFOFF}, s3, 2")
e(f"s_add_u32 s{sFOFF}, s{sFOFF}, s{sWAVE}")
e(f"s_lshl_b32 s{sFOFF}, s{sFOFF}, 7")
e(f"s_add_u32 s{sFOFF}, s{sFOFF}, {WSF}")
e(f"v_min_u32 v{vFA}, 17, v{vLANE}")
e(f"v_lshlrev_b32 v{vFA}, 2, v{vFA}")
e(f"s_add_u32 s{sWOFF}, s{sHEAD}, {WSK}")
c("publishing duty of (part p, wave w): w == p&3 -> chunk 2+(p>>2) before the first barrier;")
c("(w^p)&1 -> chunk 4+(p>>1) in iteration p>>1; otherwise none")
e(f"s_and_b32 s{sTMP}, s{sPART}, 3")
e(f"s_cmp_eq_u32 s{sTMP}, s{sWAVE}")
e(f"s_cselect_b32 s{sEARLY}, 1, 0")
e(f"s_lshr_b32 s{sPJ}, s{sPART}, 2")
e(f"s_lshr_b32 s{sIP}, s{sPART}, 1")
e(f"s_add_u32 s{sTMP}, s{sIP}, 2")
e(f"s_cmp_eq_u32 s{sEARLY}, 1")
e(f"s_cselect_b32 s{sPJ}, s{sPJ}, s{sTMP}")
e(f"s_xor_b32 s{sTMP}, s{sPART}, s{sWAVE}")
e(f"s_bitcmp1_b32 s{sTMP}, 0")
e(f"s_cselect_b32 s{sIP}, s{sIP}, 100")
goff(sPOFF, sPJ, 2)
c("flag bit (2 * publisher part) of chunks 2..7 on this wave's line, one nibble each")
e(f"s_lshl_b32 s{sPMAP}, s{sWAVE}, 1")
e(f"s_mul_i32 s{sPMAP}, s{sPMAP}, 0x11")
e(f"s_bitcmp1_b32 s{sWAVE}, 0")
e(f"s_cselect_b32 s{sTMP}, 0xc84080, 0xea6280") if False else None
e(f"s_mov_b32 s{sTMP}, 0xc84080")
e(f"s_cselect_b32 s{sTMP}, s{sTMP}, 0xea6280")
e(f"s_add_u32 s{sPMAP}, s{sPMAP}, s{sTMP}")
def both(n_first, n_other, extra=""):
    _l[0] += 1; a_, b_ = f"L_wa{_l[0]}", f"L_wb{_l[0]}"
    e(f"s_cmp_eq_u32 s{sEARLY}, 0")
    e(f"s_cbranch_scc1 {a_}")
    e(f"s_waitcnt vmcnt({n_first}){extra}")
    e(f"s_branch {b_}")
    e(f"{a_}:")
    e(f"s_waitcnt vmcnt({n_other}){extra}")
    e(f"{b_}:")
_l = [0]
NFIRST = opt("nfirst", 2)
R3 = opt("r3", 0)
GAT = opt("gat", 0)
NOBAR = opt("nobar", 0)
P0 = opt("p0", 0)
def raw3_first():
    e(f"s_cmp_eq_u32 s{sEARLY}, 0")
    e("s_cbranch_scc1 L_notfirst")
    loadK(RAW3, sPOFF, PUBFL)
    e("L_notfirst:")
if R3 == 0: raw3_first()
ua_consts()
c("K' write address: tile (l>>5)*2048 + key*16 (+ chunk c*512)")
e(f"v_and_b32 v{vT0}, 31, v{vLANE}")
e(f"v_lshlrev_b32 v{vT0}, 4, v{vT0}")
e(f"v_lshrrev_b32 v{vT1}, 5, v{vLANE}")
e(f"v_lshl_add_u32 v{vPUB}, v{vT1}, 11, v{vT0}")
e(f"v_add_u32 v{vKWl}, s{sW}, v{vPUB}")
e(f"s_mov_b32 s{sFLG}, 0")
e(f"s_mov_b32 s{sPEND}, 0")
e(f"s_mov_b32 s{sSTG}, 0")
c("--- stage 0 and stage 1 data")
both(8, 4) if R3 == 0 else e("s_waitcnt vmcnt(4)")
stamp(20)
loadV(sCUR)
if R3 == 1: raw3_first()
g1 = 1 if GAT == 0 else 0
if GAT == 0: e(f"buffer_load_dword v{vFL}, v{vFA}, s[{sWS}:{sWS+3}], s{sFOFF} offen sc1")
pnorm(RAW); wrK(vKWl)
both(8 + g1, 4 + g1, " lgkmcnt(0)")
stamp(21)
pnorm(RAW2); wrK(vKWl, 32768)
def first_pub(n):
    e(f"s_cmp_eq_u32 s{sEARLY}, 0")
    e("s_cbranch_scc1 L_nofirstpub")
    e(f"s_waitcnt vmcnt({n}) lgkmcnt(0)")
    stamp(28)
    publish()
    e("L_nofirstpub:")
if P0 == 0:
    first_pub((4 if R3 == 0 else 0) + g1)
    both(4 + g1, g1, " lgkmcnt(0)")
elif R3 == 0: e(f"s_waitcnt vmcnt({g1}) lgkmcnt(0)")
else: both(4 + g1, g1, " lgkmcnt(0)")
stamp(8)
e("s_barrier")
c("--- iteration -1: V(1), V(2); flags of parts 0,1,6,7; part 2 fetches its raw chunk")
if GAT == 1: e(f"buffer_load_dword v{vFL}, v{vFA}, s[{sWS}:{sWS+3}], s{sFOFF} offen sc1")
if P0 == 1: first_pub(1)
setm0(sM0V, 32768)
goff(sGOFF, sSTG, 2)
loadV(sTMP2)
setm0(sM0V, 65536)
e(f"s_mov_b32 s{sSLOT}, 65536")
loadV(sGOFF)
e("s_waitcnt vmcnt(8)")
c("tag of this launch: T = G + golden ratio (64 bit)")
e(f"v_readlane_b32 s{sTAG}, v{vFL}, 0")
e(f"v_readlane_b32 s{sTAG+1}, v{vFL}, 1")
e(f"v_and_b32 v{vT0}, 1, v{vLANE}")
e(f"s_add_u32 s{sTAG}, s{sTAG}, 0x7f4a7c15")
e(f"s_addc_u32 s{sTAG+1}, s{sTAG+1}, 0x9e3779b9")
e(f"v_cmp_eq_u32 vcc, 1, v{vT0}")
e(f"v_mov_b32 v{vTG2}, s{sTAG}")
e(f"v_mov_b32 v{vTG2+1}, s{sTAG+1}")
e(f"v_cndmask_b32 v{vTAG}, v{vTG2}, v{vTG2+1}, vcc")
e(f"s_cmp_lt_u32 s{sIP}, 6")
e("s_cbranch_scc1 L_i1")
stamp(29)
raise_flag()
e("s_waitcnt vmcnt(5)")
e("s_branch L_i3")
e("L_i1:")
e("s_waitcnt vmcnt(4)")
e(f"s_cmp_lg_u32 s{sIP}, 0")
e("s_cbranch_scc1 L_i3")
loadK(RAW3, sPOFF, PUBFL)
e("L_i3:")
stamp(9)
e("s_barrier")
c("--- iteration i = 0..5 (after barrier B_i): K'(i+2), V(i+3)")
e("L_ploop:")
e("s_waitcnt vmcnt(0)")
e(f"s_cmp_eq_u32 s{sPEND}, 0")
e("s_cbranch_scc1 L_nopend")
raise_flag()
e(f"s_mov_b32 s{sPEND}, 0")
e("L_nopend:")
c("is chunk i+2 published?  bounded polling, else normalise locally")
e(f"s_mov_b32 s{sCNT}, {NPOLL}")
e("L_poll:")
e(f"s_lshl_b32 s{sTMP}, s{sSTG}, 2")
e(f"s_lshr_b32 s{sTMP}, s{sPMAP}, s{sTMP}")
e(f"s_and_b32 s{sTMP}, s{sTMP}, 15")
e(f"s_bitcmp1_b32 s{sFLG}, s{sTMP}")
e("s_cbranch_scc1 L_ready")
e(f"s_cmp_eq_u32 s{sCNT}, 0")
e("s_cbranch_scc1 L_local")
e(f"s_sub_u32 s{sCNT}, s{sCNT}, 1")
poll()
e("s_branch L_poll")
e("L_local:")
loadK(RAW, sGOFF)
e(f"v_add_u32 v{vKW}, s{sSLOT}, v{vKWl}")
e("s_waitcnt vmcnt(0)")
pnorm(RAW)
wrK(vKW)
e("s_waitcnt lgkmcnt(0)")
e("s_branch L_have")
e("L_ready:")
e(f"s_lshl_b32 s{sTMP}, s{sSTG}, 14")
e(f"s_add_u32 s{sTMP}, s{sTMP}, s{sWOFF}")
setm0(sW, f"s{sSLOT}")
e("s_nop 0")
for j in range(4): e(f"buffer_load_dwordx4 v{vG16}, s[{sWS}:{sWS+3}], s{sTMP} offen offset:{1024*j} sc1 lds")
e("L_have:")
stamp_idx(22)
if STAMP == 1:
    e(f"s_add_u32 s56, s{sSTG}, 42"); e("s_mov_b32 m0, s56"); e(f"v_writelane_b32 v{vST}, s{sCNT}, m0")
e(f"s_cmp_eq_u32 s{sSTG}, 5")
e("s_cbranch_scc1 L_plast")
e(f"s_add_u32 s{sSLOT}, s{sSLOT}, 32768")
e(f"s_and_b32 s{sSLOT}, s{sSLOT}, 0x1ffff")
setm0(sM0V, f"s{sSLOT}")
goff(sGOFF, sSTG, 3)
loadV(sGOFF)
e(f"s_cmp_eq_u32 s{sSTG}, s{sIP}")
e("s_cbranch_scc1 L_pub")
e(f"s_add_u32 s{sSTG}, s{sSTG}, 1")
e(f"s_cmp_eq_u32 s{sSTG}, s{sIP}")
e("s_cbranch_scc1 L_raw")
e("s_waitcnt vmcnt(4)")
e("L_pbar:")
stamp_idx(9)
e("s_barrier")
e("s_branch L_ploop")
e("L_pub:")
publish()
e(f"s_mov_b32 s{sPEND}, 1")
e(f"s_add_u32 s{sSTG}, s{sSTG}, 1")
e("s_waitcnt vmcnt(8)")
e("s_branch L_pbar")
e("L_raw:")
loadK(RAW3, sPOFF, PUBFL)
e("s_waitcnt vmcnt(8)")
e("s_branch L_pbar")
e("L_plast:")
e("s_waitcnt vmcnt(0)")
e("s_barrier")
c("part 0: once every part has raised its flag (so has read G), advance the generation for the next launch")
e(f"s_cmp_lg_u32 s{sPART}, 0")
e("s_cbranch_scc1 L_pend")
e("L_fin:")
e(f"s_and_b32 s{sTMP}, s{sFLG}, 0x5555")
e(f"s_cmp_eq_u32 s{sTMP}, 0x5555")
e("s_cbranch_scc1 L_bump")
poll()
e("s_branch L_fin")
e("L_bump:")
e("s_mov_b64 exec, 1")
e(f"buffer_store_dwordx2 {vr(vTG2,2)}, v{vFA}, s[{sWS}:{sWS+3}], s{sFOFF} offen sc1")
e("s_mov_b64 exec, -1")
e("L_pend:")
if STAMP:
    stamp(18)
    e(f"s_add_u32 s{sTMP}, s{sWAVE}, 8")
    st_flush(sTMP)
e("s_endpgm")

c("|t| large (or NaN): find the true row max of the logits first, then run the main loop with C = -max")
e("L_maxpass:")
e(f"ds_read_b128 {vr(QB,4)}, v{vQR}")
e(f"ds_read_b128 {vr(QB+4,4)}, v{vQR} offset:1088")
c("lane (key=l&31,h=l>>5): frag i = bytes key*64 + i*32 + h*16")
e(f"s_mov_b32 s{sTMP}, s{sHEAD}")
e(f"s_mov_b32 s{sTMP2}, 0")
e(f"v_mov_b32 v{vT3}, 0xff800000")
e(f"v_mov_b32 v{vT4}, 0xff800000")
e("s_waitcnt lgkmcnt(0)")
e("L_maxloop:")
e(f"buffer_load_dwordx4 {vr(SB,4)}, v{vOUT}, s[{sK}:{sK+3}], s{sTMP} offen")
e(f"buffer_load_dwordx4 {vr(SB+4,4)}, v{vOUT}, s[{sK}:{sK+3}], s{sTMP} offen offset:32")
e("s_waitcnt vmcnt(0)")
unpack(SB, OA)
dots(vT0, SB, 8)
e("s_nop 2")
e(f"v_mov_b32 v{vT1}, v{vT0}"); e("s_nop 1")
e(f"v_permlane32_swap_b32 v{vT0}, v{vT1}"); e("s_nop 1")
e(f"v_add_f32 v{vT0}, v{vT0}, v{vT1}")
e(f"v_sqrt_f32 v{vT0}, v{vT0}"); e("s_nop 0")
e(f"v_add_f32 v{vT0}, 0x358637bd, v{vT0}")
e(f"v_rcp_f32 v{vT2}, v{vT0}"); e("s_nop 0")
scale_pack(OA, 8, vT2, OB)
e("s_nop 1")
for S, Q in ((CA, QA), (CB, QB)):
    e(f"v_mfma_f32_32x32x16_bf16 {vr(S,16)}, {vr(OB,4)}, {vr(Q,4)}, 0")
    e(f"v_mfma_f32_32x32x16_bf16 {vr(S,16)}, {vr(OB+4,4)}, {vr(Q+4,4)}, {vr(S,16)}")
e("s_nop 15")
for S, M in ((CA, vT3), (CB, vT4)):
    for j in range(8): e(f"v_max3_f32 v{M}, v{S+2*j}, v{S+2*j+1}, v{M}")
e(f"s_add_u32 s{sTMP}, s{sTMP}, 2048")
e(f"s_add_u32 s{sTMP2}, s{sTMP2}, 1")
e(f"s_cmp_lt_u32 s{sTMP2}, 64")
e("s_cbranch_scc1 L_maxloop")
for C, M in ((CA, vT3), (CB, vT4)):
    e(f"v_mov_b32 v{vT0}, v{M}")
    e("s_nop 1")
    e(f"v_permlane32_swap_b32 v{vT0}, v{M}")
    e("s_nop 1")
    e(f"v_max_f32 v{M}, v{M}, v{vT0}")
    e(f"v_xor_b32 v{C}, 0x80000000, v{M}")
    for j in range(1, 16): e(f"v_mov_b32 v{C+j}, v{C}")
zero(list(range(OA, OA+16)) + list(range(OB, OB+16)))
e("s_branch L_start")

nv = max(136, (NV + 7) // 8 * 8)
src = HEADER + f"; @launch grid=(256,1,1) block=(768,1,1) lds={LDS_TOTAL}\n" + f""".amdgcn_target "amdgcn-amd-amdhsa--gfx950"
.text
.globl {NAME}
.p2align 8
.type {NAME},@function
""" + "\n".join(L) + f"""
.section .rodata,"a"
.p2align 6
.amdhsa_kernel {NAME}
  .amdhsa_next_free_vgpr {nv}
  .amdhsa_next_free_sgpr 64
  .amdhsa_accum_offset {nv}
  .amdhsa_group_segment_fixed_size 0
  .amdhsa_kernarg_size 56
  .amdhsa_user_sgpr_count 2
  .amdhsa_user_sgpr_kernarg_segment_ptr 1
  .amdhsa_system_sgpr_workgroup_id_x 1
.end_amdhsa_kernel
"""
open(sys.argv[1], "w").write(src)
print("vgprs", NV, "->", nv)
```

```python
import sys
OPT = dict(a.split("=") for a in sys.argv[2:] if "=" in a)
def opt(name, default): return type(default)(OPT.get(name, default))
def flags(name, default): return OPT.get(name, default).replace("+", " ").replace("none", "")
STAMP = opt("stamp", 0)
PRIO = OPT.get("prio", "2103")
B1 = opt("b1", 2)
K1AT = opt("k1at", 0)
PPRIO = opt("pprio", 3)
NPOLL = opt("npoll", 8)
CZERO = opt("czero", 0)
STFLAGS = flags("stflags", "nt+sc1"); QFLAGS = flags("qflags", "nt"); PUBFL = flags("pubfl", "none")
KDMA = opt("kdma", 1)
OWNISS = opt("owniss", 1)
OWNAT = opt("ownat", 0)
FULL = opt("full", 1)
XFLAG = opt("xflag", 0)
OWNV = opt("ownv", 1)
V3AT = opt("v3at", 0)
NOPUB = opt("nopub", 0); COMMON = opt("common", 0); PUBST = flags("pubst", "sc1")
BV = opt("bv", 0)
BARAT = opt("barat", 2)
BAR7 = opt("bar7", 1)
LASTP = opt("lastp", 0)

HEADER = open("standalone__qk_norm__prompt.s.ref").read().split("; Override launch")[0]
NAME = "standalone__qk_norm__prompt_kernel"
L = []
def e(s=""): L.append("    " + s.rstrip() if s and not s.endswith(":") else s)
def c(s): L.append("    ; " + s)

class VA:
    def __init__(s, n=1): s.n = n
    def get(s, k=1, al=1):
        s.n = (s.n + al - 1) // al * al
        b = s.n; s.n += k; return b
def vr(b, n): return f"v[{b}:{b+n-1}]"
va = VA()
vLANE = va.get(); vG16 = va.get(); vT0 = va.get(); vT1 = va.get(); vT3 = va.get(); vT2 = va.get(2, 2); vT4 = va.get(2, 2)
vST = va.get(); vST2 = va.get()
UA = va.get(8, 4)
base = va.n
vKR = va.get(); vVR = va.get(); vKRl = va.get(); vVRl = va.get(); vIDX = va.get(); vTL = va.get(); vRED = va.get(); vOUT = va.get()
vQR = va.get(); vQW = va.get(); vXF = va.get(); vRD = va.get()
KF = UA
ONES = va.get(4, 4)
QA = va.get(8, 4); QB = va.get(8, 4)
VF0 = va.get(4, 4); VF1 = va.get(4, 4)
LA = va.get(4, 4); LB = va.get(4, 4)
SA = va.get(16, 4); SB = va.get(16, 4)
OA = va.get(16, 4); OB = va.get(16, 4)
CA = va.get(16, 4); CB = va.get(16, 4)
NV = va.n
vp = VA(base)
vG64 = vp.get(); vKWl = vp.get(); vKW = vp.get(); vFA = vp.get(); vFL = vp.get(); vTAG = vp.get(); vTG2 = vp.get(2, 2); vPUB = vp.get()
RAW = vp.get(16, 4); RAW2 = vp.get(16, 4); RAW3 = vp.get(16, 4); UNP = vp.get(32, 4); PK = vp.get(16, 4)
assert vp.n <= NV and NV <= 168 and B1 == 2 and not BV

sQ, sK, sV, sO, sWS = 16, 20, 24, 28, 12
sHEAD = 32; sPART = 33; sWAVE = 34; sSTG = 35; sT = 36; sGOFF = 37; sSLOT = 38; sCNT = 39
sTMP = 40; sTMP2 = 41; sW = 42; sCH = 43; sM0V = 44; sQOFF = 45; sFLG = 46; sWOFF = 47
sIP = 57; sPEND = 58; sPOFF = 59; sFOFF = 4; sIDX = 5; sC0 = 6; sCUR = 7; sTAG = 8; sTP = 10
LDS_Q = 131072; QSTR = 2176; LDS_XF = LDS_Q + 8 * QSTR; LDS_TOTAL = LDS_XF + 64
WSK = 0x400000; WSF = 0x800000

def st_issue(force=False):
    if STAMP == 1 or (STAMP and force):
        e("s_memtime s[52:53]"); e("s_memrealtime s[54:55]")
def st_put(lane):
    if STAMP == 1 or (STAMP and lane in (0, 18)):
        e(f"v_writelane_b32 v{vST}, s52, {lane}"); e(f"v_writelane_b32 v{vST2}, s54, {lane}")
def stamp(lane):
    if STAMP == 1 or (STAMP and lane == 18):
        st_issue(True); e("s_waitcnt lgkmcnt(0)"); st_put(lane)
def stamp_idx(add):
    if STAMP == 1:
        st_issue(); e("s_waitcnt lgkmcnt(0)"); e(f"s_add_u32 s56, s{sSTG}, {add}"); e("s_mov_b32 m0, s56"); st_put("m0")
def st_init():
    if STAMP:
        e(f"v_mov_b32 v{vST}, 0"); e(f"v_mov_b32 v{vST2}, 0"); st_put(0)
def st_flush(slot_sgpr):
    if STAMP:
        e(f"s_mul_i32 s56, s2, 12"); e(f"s_add_u32 s56, s56, s{slot_sgpr}"); e(f"s_lshl_b32 s56, s56, 9")
        e(f"v_lshlrev_b32 v{vT0}, 2, v{vLANE}")
        e(f"buffer_store_dword v{vST}, v{vT0}, s[{sWS}:{sWS+3}], s56 offen")
        e(f"buffer_store_dword v{vST2}, v{vT0}, s[{sWS}:{sWS+3}], s56 offen offset:256")

def unpack(raw, dst):
    e(f"v_mfma_f32_32x32x16_bf16 {vr(dst,16)}, {vr(UA,4)}, {vr(raw,4)}, 0")
    e(f"v_mfma_f32_32x32x16_bf16 {vr(dst,16)}, {vr(UA+4,4)}, {vr(raw+4,4)}, {vr(dst,16)}")
def dots(acc, raw, n):
    e(f"v_dot2_f32_bf16 v{acc}, v{raw}, v{raw}, 0")
    for j in range(1, n): e(f"v_dot2_f32_bf16 v{acc}, v{raw+j}, v{raw+j}, v{acc}")
def scale_pack(unp, n, sc, pk):
    for j in range(n): e(f"v_pk_mul_f32 {vr(unp+2*j,2)}, {vr(unp+2*j,2)}, {vr(sc,2)} op_sel_hi:[1,0]")
    for j in range(n): e(f"v_cvt_pk_bf16_f32 v{pk+j}, v{unp+2*j}, v{unp+2*j+1}")
def zero(regs):
    for r in list(regs)[::2]: e(f"v_mov_b64 {vr(r,2)}, 0")

def qk(S, Q, C):
    return [f"v_mfma_f32_32x32x16_bf16 {vr(S,16)}, {vr(KF,4)}, {vr(Q,4)}, " + ("0" if CZERO else vr(C,16)),
            f"v_mfma_f32_32x32x16_bf16 {vr(S,16)}, {vr(KF+4,4)}, {vr(Q+4,4)}, {vr(S,16)}"]
def pv(O, VF, S): return f"v_smfmac_f32_32x32x32_bf16 {vr(O,16)}, {vr(VF,4)}, {vr(S,8)}, v{vIDX}"
def sm(Lr, S): return f"v_smfmac_f32_16x16x64_bf16 {vr(Lr,4)}, {vr(ONES,4)}, {vr(S,8)}, v{vIDX}"
def ex(S, a, b):
    for j in range(a, b): e(f"v_exp_f32 v{S+j}, v{S+j}")
def rdK(t):
    e(f"ds_read_b128 {vr(KF,4)}, v{vKR} offset:{t*2048}")
    e(f"ds_read_b128 {vr(KF+4,4)}, v{vKR} offset:{t*2048+1024}")
def rdV(VF, t, half):
    e(f"ds_read_b64_tr_b16 {vr(VF,2)}, v{vVR} offset:{t*2048+half*1024}")
    e(f"ds_read_b64_tr_b16 {vr(VF+2,2)}, v{vVR} offset:{t*2048+half*1024+256}")
def rdX(withflag=True):
    if XFLAG and withflag: e(f"ds_read_b32 v{vT3}, v{vXF}")
    e(f"ds_read_b32 v{LA}, v{vKRl} offset:4096")
    for j in range(4): e(f"ds_read_b128 {vr(OA+4*j,4)}, v{vRD} offset:{1024*j}")

def setp(i, force=False):
    if PRIO == "none": return
    if i == 2*(BARAT+1) and not force and not BAR7: return
    p = PRIO if len(PRIO) == 8 else "".join(x + x for x in PRIO)
    if i == 0 or p[i] != p[i-1]: e(f"s_setprio {p[i]}")
def slotA(kt):
    c(f"--- slot A kt={kt}")
    setp(2*kt)
    q = qk(SB, QB, CB)
    ex(SA, 0, 2); e(pv(OB, VF1, SB+8)); ex(SA, 2, 5); e(sm(LB, SB+8))
    rdV(VF1, kt, 1)
    ex(SA, 5, 7)
    e(q[0]); ex(SA, 7, 10); e(q[1])
    if kt == 3: e(f"v_add_u32 v{vKR}, s{sSLOT}, v{vKRl}")
    rdK((kt + 1) & 3)
    ex(SA, 10, 13)
    e("s_waitcnt lgkmcnt(4)")
    e(pv(OA, VF0, SA)); ex(SA, 13, 16); e(sm(LA, SA))
def slotB(kt, last=False):
    c(f"--- slot B kt={kt}" + (" (last)" if last else ""))
    setp(2*kt+1)
    q = qk(SA, QA, CA)
    ex(SB, 0, 2)
    e("s_waitcnt lgkmcnt(2)")
    if kt == 3: st_issue()
    if STAMP == 3: st_issue(True)
    e(pv(OA, VF1, SA+8)); ex(SB, 2, 5); e(sm(LA, SA+8)); ex(SB, 5, 7)
    if not last or STAMP in (1, 3): e("s_waitcnt lgkmcnt(0)")
    if STAMP == 3:
        e(f"s_lshl2_add_u32 m0, s{sSTG}, {32+kt}")
        e(f"v_writelane_b32 v{vST}, s52, m0"); e(f"v_writelane_b32 v{vST2}, s54, m0")
    if kt == 3 and STAMP == 1:
        e(f"s_add_u32 s56, s{sSTG}, 8"); e(f"s_mov_b32 m0, s56"); st_put("m0")
    if last:
        ex(SB, 7, 10)
        e(pv(OB, VF0, SB))
        ex(SB, 10, 12)
        c("tile A is complete: hand its partial sums to the partner wave")
        for j in range(4): e(f"ds_write_b128 v{vRED}, {vr(OA+4*j,4)} offset:{1024*j}")
        e(f"ds_write_b32 v{vVRl}, v{LA} offset:4096")
        if XFLAG:
            e(f"ds_write_b32 v{vQW}, v{vIDX}")
            rdX()
        ex(SB, 12, 13)
        e(sm(LB, SB))
        ex(SB, 13, 16)
        return
    e(q[0]); ex(SB, 7, 10); e(q[1])
    if kt == 3: e(f"v_add_u32 v{vVR}, s{sSLOT}, v{vVRl}")
    ex(SB, 10, 13)
    e(pv(OB, VF0, SB))
    rdV(VF0, (kt + 1) & 3, 0)
    ex(SB, 13, 16); e(sm(LB, SB))

def ua_consts():
    c("unpack selection matrices: lane (m=l&31,hA=l>>5): A_i has 1.0 at e=(m&3)+4*((m>>3)&1) iff (m>>4)==i and ((m>>2)&1)==hA")
    e(f"v_bfe_u32 v{vT0}, v{vLANE}, 2, 1")
    e(f"v_lshrrev_b32 v{vT1}, 5, v{vLANE}")
    e(f"v_cmp_eq_u32 vcc, v{vT0}, v{vT1}")
    e(f"v_and_b32 v{vT0}, 1, v{vLANE}")
    e(f"v_lshlrev_b32 v{vT0}, 4, v{vT0}")
    e(f"v_mov_b32 v{vT1}, 0x3f80")
    e(f"v_lshlrev_b32 v{vT1}, v{vT0}, v{vT1}")
    e(f"v_cndmask_b32 v{vT1}, 0, v{vT1}, vcc")
    e(f"v_bfe_u32 v{vT0}, v{vLANE}, 1, 1")
    e(f"v_bfe_u32 v{vT2}, v{vLANE}, 3, 2")
    e(f"v_lshl_add_u32 v{vT0}, v{vT2}, 1, v{vT0}")
    for r in range(8):
        e(f"v_cmp_eq_u32 vcc, {r}, v{vT0}")
        e("s_nop 1")
        e(f"v_cndmask_b32 v{UA+r}, 0, v{vT1}, vcc")
def loadK(dst, soff, fl=""):
    for j in range(4): e(f"buffer_load_dwordx4 {vr(dst+4*j,4)}, v{vG64}, s[{sK}:{sK+3}], s{soff} offen offset:{16*j} {fl}")
def loadV(soff):
    for j in range(4): e(f"buffer_load_dwordx4 v{vG16}, s[{sV}:{sV+3}], s{soff} offen offset:{1024*j} lds")

e(f"{NAME}:")
for s, off in ((sQ, 0), (sK, 8), (sV, 16), (sTP, 24), (sO, 32), (sWS, 48)):
    e(f"s_load_dwordx2 s[{s}:{s+1}], s[0:1], {off}")
st_issue(True)
e("s_cmp_ge_u32 s2, 256")
e("s_cbranch_scc1 L_end")
c("head = (wg&7)*4 + ((wg>>3)&3), part = wg>>5")
e(f"v_lshrrev_b32 v{vT0}, 6, v0")
e(f"v_and_b32 v{vLANE}, 63, v0")
e(f"v_readfirstlane_b32 s{sWAVE}, v{vT0}")
e("s_and_b32 s3, s2, 7")
e("s_lshl_b32 s3, s3, 2")
e(f"s_bfe_u32 s{sTMP}, s2, 0x20003")
e(f"s_add_u32 s3, s3, s{sTMP}")
e(f"s_lshl_b32 s{sHEAD}, s3, 17")
e(f"s_lshr_b32 s{sPART}, s2, 5")
e(f"v_lshlrev_b32 v{vG16}, 4, v{vLANE}")
e(f"s_mov_b32 s{sQ+2}, 0x400000")
e(f"s_mov_b32 s{sQ+3}, 0x00020000")
for s in (sK, sV, sO): e(f"s_mov_b64 s[{s+2}:{s+3}], s[{sQ+2}:{sQ+3}]")
e(f"s_mov_b32 s{sWS+2}, 0x804000"); e(f"s_mov_b32 s{sWS+3}, 0x00020000")
e(f"s_cmp_ge_u32 s{sWAVE}, 4")
e("s_cbranch_scc1 L_consumer")
c("producer: first loads K(0) V(0) K(1)")
QFIRST = opt("qfirst", 0)
if not QFIRST: e(f"s_setprio {PPRIO}")
e(f"s_lshl_b32 s{sW}, s{sWAVE}, 12")
e(f"s_add_u32 s{sHEAD}, s{sHEAD}, s{sW}")
e(f"s_and_b32 s{sC0}, s3, 7"); e(f"s_lshl_b32 s{sC0}, s{sC0}, 14")
e(f"s_add_u32 s{sGOFF}, s{sHEAD}, s{sC0}")
e(f"s_add_u32 s{sM0V}, s{sW}, 16384")
e(f"v_lshlrev_b32 v{vG64}, 6, v{vLANE}")
e(f"s_mov_b32 m0, s{sM0V}")
e(f"s_add_u32 s{sTMP2}, s{sC0}, 16384")
e(f"s_and_b32 s{sTMP2}, s{sTMP2}, 0x1ffff")
e(f"s_add_u32 s{sTMP2}, s{sTMP2}, s{sHEAD}")
e("s_waitcnt lgkmcnt(0)")
if QFIRST: e("s_nop 7")
loadK(RAW, sGOFF)
e(f"s_mov_b32 s{sCUR}, s{sGOFF}")
if B1 in (0, 1): loadV(sGOFF)
if B1 in (0, 2, 4, 5, 6): loadK(RAW2, sTMP2)
if B1 == 4: loadV(sGOFF)
if QFIRST: e(f"s_setprio {PPRIO}")
e("s_branch L_producer")

c("===== consumer waves 4..11 =====")
e("L_consumer:")
if QFIRST: e("s_setprio 2")
e(f"s_sub_u32 s{sWAVE}, s{sWAVE}, 4")
e(f"s_lshl_b32 s{sW}, s{sWAVE}, 11")
e(f"s_lshl_b32 s{sTMP}, s{sPART}, 14")
e(f"s_add_u32 s{sQOFF}, s{sHEAD}, s{sTMP}")
e(f"s_add_u32 s{sQOFF}, s{sQOFF}, s{sW}")
e(f"s_lshr_b32 s{sTMP2}, s3, 1")
e(f"s_lshl_b32 s{sTMP2}, s{sTMP2}, 2")
e("s_waitcnt lgkmcnt(0)")
e(f"buffer_load_dwordx4 {vr(SA,4)}, v{vG16}, s[{sQ}:{sQ+3}], s{sQOFF} offen {QFLAGS}")
e(f"buffer_load_dwordx4 {vr(SA+4,4)}, v{vG16}, s[{sQ}:{sQ+3}], s{sQOFF} offen offset:1024 {QFLAGS}")
e(f"s_load_dword s{sT}, s[{sTP}:{sTP+1}], s{sTMP2}")
if B1 == 5:
    c("V tile w of the first chunk, queued behind Q")
    e(f"s_add_u32 m0, s{sW}, 16384")
    e(f"s_and_b32 s{sTMP}, s3, 7"); e(f"s_lshl_b32 s{sTMP}, s{sTMP}, 14")
    e(f"s_add_u32 s{sTMP}, s{sTMP}, s{sHEAD}"); e(f"s_add_u32 s{sTMP}, s{sTMP}, s{sW}")
    e(f"buffer_load_dwordx4 v{vG16}, s[{sV}:{sV+3}], s{sTMP} offen lds")
    e(f"buffer_load_dwordx4 v{vG16}, s[{sV}:{sV+3}], s{sTMP} offen offset:1024 lds")
st_init()
ua_consts()
c("K' read: group*8192 + lane*16")
e(f"s_and_b32 s{sTMP}, s{sWAVE}, 4")
e(f"s_lshl_b32 s{sTMP}, s{sTMP}, 11")
e(f"v_add_u32 v{vKRl}, s{sTMP}, v{vG16}")
c("V read: (8*hA + (i>>2))*64 + dhalf*32 + (i&3)*8 + 16384 + group*8192")
e(f"v_lshrrev_b32 v{vT0}, 5, v{vLANE}")
e(f"v_lshlrev_b32 v{vT0}, 9, v{vT0}")
e(f"v_bfe_u32 v{vT1}, v{vLANE}, 2, 2")
e(f"v_lshl_add_u32 v{vT0}, v{vT1}, 6, v{vT0}")
e(f"v_bfe_u32 v{vT1}, v{vLANE}, 4, 1")
e(f"v_lshl_add_u32 v{vT0}, v{vT1}, 5, v{vT0}")
e(f"v_and_b32 v{vT1}, 3, v{vLANE}")
e(f"v_lshl_add_u32 v{vT0}, v{vT1}, 3, v{vT0}")
e(f"s_add_u32 s{sTMP}, s{sTMP}, 16384")
e(f"v_add_u32 v{vVRl}, s{sTMP}, v{vT0}")
e(f"v_mov_b32 v{vKR}, v{vKRl}")
e(f"v_mov_b32 v{vVR}, v{vVRl}")
e(f"v_mov_b32 v{vIDX}, 0xdddddddd")
c("Q' write: LDS_Q + w*QSTR + (l&3)*544 + (l>>2)*16 ; read: LDS_Q + tile*QSTR + (l>>5)*544 + (l&31)*16")
e(f"s_mul_i32 s{sTMP}, s{sWAVE}, {QSTR}")
e(f"s_add_u32 s{sTMP}, s{sTMP}, {LDS_Q}")
e(f"v_mul_u32_u24 v{vT0}, 544, v{vT1}")
e(f"v_lshrrev_b32 v{vT1}, 2, v{vLANE}")
e(f"v_lshl_add_u32 v{vT0}, v{vT1}, 4, v{vT0}")
e(f"v_add_u32 v{vQW}, s{sTMP}, v{vT0}")
e(f"v_lshrrev_b32 v{vT1}, 5, v{vLANE}")
e(f"v_lshl_add_u32 v{vT0}, v{vT1}, 5, v{vG16}")
e(f"v_add_u32 v{vQR}, s{sTMP}, v{vT0}")
e(f"s_xor_b32 s{sTMP2}, s{sWAVE}, 4")
e(f"s_mul_i32 s{sTMP2}, s{sTMP2}, {QSTR}")
e(f"s_add_u32 s{sTMP2}, s{sTMP2}, {LDS_Q}")
e(f"v_add_u32 v{vT3}, s{sTMP2}, v{vT0}")
c("row-sum selector: only rows 0 (q 0..15) and 4 (q 16..31) carry ones")
e(f"v_and_b32 v{vT0}, 15, v{vLANE}")
e(f"v_mov_b32 v{vT1}, 0x3f803f80")
e(f"v_cmp_eq_u32 vcc, 0, v{vT0}")
e("s_nop 1")
e(f"v_cndmask_b32 v{ONES}, 0, v{vT1}, vcc")
e(f"v_cmp_eq_u32 vcc, 4, v{vT0}")
e(f"v_mov_b32 v{ONES+1}, v{ONES}")
e("s_nop 0")
e(f"v_cndmask_b32 v{ONES+2}, 0, v{vT1}, vcc")
e(f"v_mov_b32 v{ONES+3}, v{ONES+2}")
c("epilogue addresses")
e(f"s_lshl_b32 s{sTMP}, s{sWAVE}, 13")
e(f"v_add_u32 v{vRD}, s{sTMP}, v{vG16}")
e(f"v_xor_b32 v{vRED}, 0x8000, v{vRD}")
e(f"v_and_b32 v{vT0}, 31, v{vLANE}")
e(f"v_lshlrev_b32 v{vT0}, 6, v{vT0}")
e(f"v_lshrrev_b32 v{vT1}, 5, v{vLANE}")
e(f"v_lshl_add_u32 v{vOUT}, v{vT1}, 4, v{vT0}")
if FULL:
    c("output store: lane -> (row l&15, 16-byte chunk 2*((l>>4)&1) + (l>>5))")
    e(f"v_and_b32 v{vT0}, 15, v{vLANE}")
    e(f"v_lshlrev_b32 v{vT0}, 6, v{vT0}")
    e(f"v_lshl_add_u32 v{vT0}, v{vT1}, 4, v{vT0}")
    e(f"v_bfe_u32 v{vT1}, v{vLANE}, 4, 1")
    e(f"v_lshl_add_u32 v{vXF}, v{vT1}, 5, v{vT0}")
zero(list(range(OA, OA+16)) + list(range(OB, OB+16)) + list(range(LA, LA+4)) + list(range(LB, LB+4)) + list(range(VF1, VF1+4)))
if XFLAG:
    e(f"s_lshl_b32 s{sTMP}, s{sWAVE}, 2")
    e(f"s_add_u32 s{sTMP}, s{sTMP}, {LDS_XF}")
    e(f"v_mov_b32 v{vXF}, s{sTMP}")
e("s_waitcnt lgkmcnt(0)")
if XFLAG: e(f"ds_write_b32 v{vXF}, v{OA}")
e(f"s_lshl_b32 s{sTMP}, s{sT}, 16")
e(f"s_and_b32 s{sTMP2}, s{sT}, 0xffff0000")
e("s_bitcmp1_b32 s3, 0")
e(f"s_cselect_b32 s{sT}, s{sTMP2}, s{sTMP}")
e(f"v_mov_b32 v{vTL}, 0x3fb8aa3b")
e(f"v_mul_f32 v{vTL}, s{sT}, v{vTL}")
e(f"v_or_b32 v{CA}, 0x80000000, v{vTL}")
e(f"v_mov_b32 v{CA+1}, v{CA}")
for j in range(2, 32, 2): e(f"v_mov_b64 {vr(CA+j,2)}, {vr(CA,2)}")
zero(range(SB+8, SB+16))
e(f"s_mov_b32 s{sSTG}, 0")
e(f"s_mov_b32 s{sSLOT}, 32768")
e(f"s_and_b32 s{sT}, s{sT}, 0x7fffffff")
stamp(1)
c("Q tile: rows 16j + (l>>2), 8 elements per lane and j")
QU = QA
e(f"s_waitcnt vmcnt({2 if B1 == 5 else 0})")
stamp(2)
for j in range(4):
    e(f"v_dot2_f32_bf16 v{vT0}, v{SA+j}, v{SA+j}, " + ("0" if j == 0 else f"v{vT0}"))
    e(f"v_dot2_f32_bf16 v{vT1}, v{SA+4+j}, v{SA+4+j}, " + ("0" if j == 0 else f"v{vT1}"))
unpack(SA, QU)
for qp in ("[1,0,3,2]", "[2,3,0,1]"):
    e("s_nop 0")
    e(f"v_add_f32_dpp v{vT0}, v{vT0}, v{vT0} quad_perm:{qp} row_mask:0xf bank_mask:0xf")
    e(f"v_add_f32_dpp v{vT1}, v{vT1}, v{vT1} quad_perm:{qp} row_mask:0xf bank_mask:0xf")
e(f"v_sqrt_f32 v{vT0}, v{vT0}")
e(f"v_sqrt_f32 v{vT1}, v{vT1}")
e(f"v_add_f32 v{vT0}, 0x358637bd, v{vT0}")
e(f"v_add_f32 v{vT1}, 0x358637bd, v{vT1}")
e(f"v_rcp_f32 v{vT0}, v{vT0}")
e(f"v_rcp_f32 v{vT1}, v{vT1}")
e(f"v_mul_f32 v{vT2}, v{vT0}, v{vTL}")
e(f"v_mul_f32 v{vT4}, v{vT1}, v{vTL}")
scale_pack(QU, 4, vT2, SA+8)
e(f"ds_write_b128 v{vQW}, {vr(SA+8,4)}")
scale_pack(QU+8, 4, vT4, SA+12)
e(f"ds_write_b128 v{vQW}, {vr(SA+12,4)} offset:256")
stamp(3)
c("fast path check: |t| <= 16")
e(f"s_cmp_le_u32 s{sT}, 0x41800000")
e("s_waitcnt vmcnt(0) lgkmcnt(0)")
e("s_barrier")
e(f"ds_read_b128 {vr(QA,4)}, v{vT3}")
e(f"ds_read_b128 {vr(QA+4,4)}, v{vT3} offset:1088")
e("s_cbranch_scc0 L_maxpass")
e("L_start:")
rdK(0)
e(f"ds_read_b128 {vr(QB,4)}, v{vQR}")
e(f"ds_read_b128 {vr(QB+4,4)}, v{vQR} offset:1088")
if not BV: rdV(VF0, 0, 0)
if XFLAG: e(f"v_xor_b32 v{vQW}, 16, v{vXF}")
stamp(5)
e(f"s_waitcnt lgkmcnt({2 if BV else 4})")
for s in qk(SA, QA, CA): e(s)
if BV:
    e("s_barrier")
    rdV(VF0, 0, 0)
e("s_waitcnt lgkmcnt(2)")
e("s_nop 7")
if not BV: e("s_nop 2")
stamp(6)
e(".p2align 6")
e("L_stage:")
for kt in range(4):
    slotA(kt)
    if kt == 3:
        e("s_cbranch_scc1 L_last")
    slotB(kt)
    if kt == BARAT:
        e(f"s_cmp_eq_u32 s{sSTG}, 7")
        if not BAR7: e("s_cbranch_scc1 L_nobar")
        e("s_barrier")
        if not BAR7: setp(2*(BARAT+1), True)
        e("L_nobar:")
e(f"s_add_u32 s{sSTG}, s{sSTG}, 1")
e(f"s_add_u32 s{sSLOT}, s{sSLOT}, 32768")
e(f"s_and_b32 s{sSLOT}, s{sSLOT}, 0x1ffff")
e("s_branch L_stage")
e("L_last:")
if LASTP >= 0: e(f"s_setprio {LASTP}")
c("row-sum exchange addresses (4-byte lane stride); the ring bases are dead now")
e(f"s_lshl_b32 s{sTMP}, s{sWAVE}, 13")
e(f"v_lshl_add_u32 v{vKRl}, v{vLANE}, 2, s{sTMP}")
e(f"v_xor_b32 v{vVRl}, 0x8000, v{vKRl}")
slotB(3, last=True)
if XFLAG:
    e("s_waitcnt lgkmcnt(5)")
    e(f"v_readfirstlane_b32 s{sTMP}, v{vT3}")
    e(pv(OB, VF1, SB+8))
    e(sm(LB, SB+8))
    stamp(16)
    e(f"s_cmp_lg_u32 s{sTMP}, 0")
    e("s_cbranch_scc1 L_xok")
    e("L_xwait:")
    e(f"ds_read_b32 v{vT3}, v{vXF}")
    e("s_waitcnt lgkmcnt(0)")
    e(f"v_readfirstlane_b32 s{sTMP}, v{vT3}")
    e("s_nop 0")
    e(f"s_cmp_eq_u32 s{sTMP}, 0")
    e("s_cbranch_scc1 L_xwait")
    rdX(False)
    e("L_xok:")
    e("s_nop 6")
else:
    e("s_nop 0")
    e("s_waitcnt lgkmcnt(0)")
    e(pv(OB, VF1, SB+8))
    e(sm(LB, SB+8))
    stamp(16)
    e("s_barrier")
    rdX()
    e("s_nop 3")
e("s_waitcnt lgkmcnt(4)")
e(f"v_add_f32 v{LA}, v{LA}, v{LB}")
e(f"v_rcp_f32 v{vT2}, v{LA}")
e("s_nop 0")
e(f"v_mov_b32 v{vT1}, v{vT2}")
PKo = SA
for j in range(4):
    e(f"s_waitcnt lgkmcnt({3-j})")
    for i in range(2):
        r = 4*j + 2*i
        e(f"v_pk_add_f32 {vr(OA+r,2)}, {vr(OA+r,2)}, {vr(OB+r,2)}")
    if j == 0: e(f"v_permlane32_swap_b32 v{vT2}, v{vT1}")
assert not (FULL and XFLAG)
for i in range(8):
    e(f"v_pk_mul_f32 {vr(OA+2*i,2)}, {vr(OA+2*i,2)}, {vr(vT2,2)} op_sel_hi:[1,0]")
for i in range(8):
    e(f"v_cvt_pk_bf16_f32 v{PKo+i}, v{OA+2*i}, v{OA+2*i+1}")
    if i == 5:
        e(f"v_permlane32_swap_b32 v{PKo+0}, v{PKo+2}")
        e(f"v_permlane32_swap_b32 v{PKo+1}, v{PKo+3}")
if FULL:
    e("s_nop 1")
    e(f"v_permlane32_swap_b32 v{PKo+4}, v{PKo+6}")
    e(f"v_permlane32_swap_b32 v{PKo+5}, v{PKo+7}")
    e("s_nop 1")
    for j in range(4): e(f"v_permlane16_swap_b32 v{PKo+j}, v{PKo+4+j}")
    e("s_nop 1")
    e(f"buffer_store_dwordx4 {vr(PKo,4)}, v{vXF}, s[{sO}:{sO+3}], s{sQOFF} offen {STFLAGS}")
    e(f"buffer_store_dwordx4 {vr(PKo+4,4)}, v{vXF}, s[{sO}:{sO+3}], s{sQOFF} offen offset:1024 {STFLAGS}")
else:
    e(f"buffer_store_dwordx4 {vr(PKo,4)}, v{vOUT}, s[{sO}:{sO+3}], s{sQOFF} offen {STFLAGS}")
    e("s_nop 0")
    e(f"v_permlane32_swap_b32 v{PKo+4}, v{PKo+6}")
    e(f"v_permlane32_swap_b32 v{PKo+5}, v{PKo+7}")
    e("s_nop 1")
    e(f"buffer_store_dwordx4 {vr(PKo+4,4)}, v{vOUT}, s[{sO}:{sO+3}], s{sQOFF} offen offset:32 {STFLAGS}")
if STAMP:
    stamp(17)
    e("s_waitcnt vmcnt(0)")
    stamp(18)
    st_flush(sWAVE)
e("L_end:")
e("s_endpgm")

c("===== producer waves 0..3: K tiles 2w,2w+1 and V tiles 2w,2w+1 of every chunk =====")
def pnorm(raw):
    acc = [vT0, vT1, vT4, vT4+1]
    for j in range(16):
        a_ = acc[j & 3]
        e(f"v_dot2_f32_bf16 v{a_}, v{raw+j}, v{raw+j}, " + ("0" if j < 4 else f"v{a_}"))
    unpack(raw, UNP); unpack(raw+8, UNP+16)
    e(f"v_add_f32 v{vT0}, v{vT0}, v{vT1}")
    e(f"v_add_f32 v{vT4}, v{vT4}, v{vT4+1}")
    e(f"v_add_f32 v{vT0}, v{vT0}, v{vT4}")
    e(f"v_sqrt_f32 v{vT0}, v{vT0}"); e("s_nop 0")
    e(f"v_add_f32 v{vT0}, 0x358637bd, v{vT0}")
    e(f"v_rcp_f32 v{vT2}, v{vT0}")
    e("s_nop 5")
    scale_pack(UNP, 16, vT2, PK)
def goff(dst, idx_sgpr=None, add=0):
    e(f"s_add_u32 s{dst}, s{idx_sgpr}, {add}")
    e(f"s_lshl_b32 s{dst}, s{dst}, 14")
    e(f"s_add_u32 s{dst}, s{dst}, s{sC0}")
    e(f"s_and_b32 s{dst}, s{dst}, 0x1ffff")
    e(f"s_add_u32 s{dst}, s{dst}, s{sHEAD}")
def wrK(addr, off=0):
    for j in range(4): e(f"ds_write_b128 v{addr}, {vr(PK+4*j,4)} offset:{off+512*j}")
def setm0(base_sgpr, add): e(f"s_add_u32 m0, s{base_sgpr}, {add}")
def poll():
    e(f"buffer_load_dword v{vFL}, v{vFA}, s[{sWS}:{sWS+3}], s{sFOFF} offen sc1")
    e("s_waitcnt vmcnt(0)")
    e(f"v_cmp_eq_u32 vcc, v{vFL}, v{vTAG}")
    e("s_nop 0")
    e(f"s_lshr_b32 s{sFLG}, vcc_lo, 2")
    e(f"s_lshr_b32 s{sTMP}, vcc_lo, 3")
    e(f"s_and_b32 s{sFLG}, s{sFLG}, s{sTMP}")
def publish():
    pnorm(RAW3)
    e(f"s_lshl_b32 s{sTMP}, s{sPART}, 14")
    e(f"s_add_u32 s{sTMP}, s{sTMP}, s{sWOFF}")
    for j in range(4): e(f"buffer_store_dwordx4 {vr(PK+4*j,4)}, v{vPUB}, s[{sWS}:{sWS+3}], s{sTMP} offen offset:{512*j} sc1")
def raise_flag():
    e(f"s_lshl_b32 s{sTMP}, s{sPART}, 3")
    e(f"s_add_u32 s{sTMP}, s{sTMP}, s{sFOFF}")
    e("s_mov_b64 exec, 1")
    e(f"buffer_store_dwordx2 {vr(vTG2,2)}, v{vFA}, s[{sWS}:{sWS+3}], s{sTMP} offen offset:8 sc1")
    e("s_mov_b64 exec, -1")
e("L_producer:")
st_init()
c("hand-off line of (head, wave): dwords 0,1 = generation G, dwords 2+2p,3+2p = flag of part p")
e(f"s_lshl_b32 s{sFOFF}, s3, 2")
e(f"s_add_u32 s{sFOFF}, s{sFOFF}, s{sWAVE}")
e(f"s_lshl_b32 s{sFOFF}, s{sFOFF}, 7")
e(f"s_add_u32 s{sFOFF}, s{sFOFF}, {WSF}")
e(f"v_min_u32 v{vFA}, 17, v{vLANE}")
e(f"v_lshlrev_b32 v{vFA}, 2, v{vFA}")
e(f"s_add_u32 s{sWOFF}, s{sHEAD}, {WSK}")
c("part p < 6 normalises and publishes chunk p+2: parts 0,1 before the first barrier, part p in iteration p-2")
goff(sPOFF, sPART, 2)
def both(n_first, n_other, extra=""):
    _l[0] += 1; a_, b_ = f"L_wa{_l[0]}", f"L_wb{_l[0]}"
    e(f"s_cmp_ge_u32 s{sPART}, {NFIRST}")
    e(f"s_cbranch_scc1 {a_}")
    e(f"s_waitcnt vmcnt({n_first}){extra}")
    e(f"s_branch {b_}")
    e(f"{a_}:")
    e(f"s_waitcnt vmcnt({n_other}){extra}")
    e(f"{b_}:")
_l = [0]
NFIRST = opt("nfirst", 2)
R3 = opt("r3", 0)
GAT = opt("gat", 0)
NOBAR = opt("nobar", 0)
P0 = opt("p0", 0)
def raw3_first():
    e(f"s_cmp_ge_u32 s{sPART}, {NFIRST}")
    e("s_cbranch_scc1 L_notfirst")
    loadK(RAW3, sPOFF, PUBFL)
    e("L_notfirst:")
if R3 == 0: raw3_first()
ua_consts()
c("K' write address: tile (l>>5)*2048 + key*16 (+ chunk c*512)")
e(f"v_and_b32 v{vT0}, 31, v{vLANE}")
e(f"v_lshlrev_b32 v{vT0}, 4, v{vT0}")
e(f"v_lshrrev_b32 v{vT1}, 5, v{vLANE}")
e(f"v_lshl_add_u32 v{vPUB}, v{vT1}, 11, v{vT0}")
e(f"v_add_u32 v{vKWl}, s{sW}, v{vPUB}")
e(f"s_mov_b32 s{sFLG}, 0")
e(f"s_mov_b32 s{sPEND}, 0")
e(f"s_mov_b32 s{sSTG}, 0")
e(f"s_sub_u32 s{sIP}, s{sPART}, {NFIRST}")
e(f"s_cmp_ge_u32 s{sPART}, 6")
e(f"s_cselect_b32 s{sIP}, 100, s{sIP}")
c("--- stage 0 and stage 1 data")
both(8, 4) if R3 == 0 else e("s_waitcnt vmcnt(4)")
stamp(20)
loadV(sCUR)
if R3 == 1: raw3_first()
g1 = 1 if GAT == 0 else 0
if GAT == 0: e(f"buffer_load_dword v{vFL}, v{vFA}, s[{sWS}:{sWS+3}], s{sFOFF} offen sc1")
pnorm(RAW); wrK(vKWl)
both(8 + g1, 4 + g1, " lgkmcnt(0)")
stamp(21)
pnorm(RAW2); wrK(vKWl, 32768)
def first_pub(n):
    e(f"s_cmp_ge_u32 s{sPART}, {NFIRST}")
    e("s_cbranch_scc1 L_nofirstpub")
    e(f"s_waitcnt vmcnt({n}) lgkmcnt(0)")
    stamp(28)
    publish()
    e("L_nofirstpub:")
if P0 == 0:
    first_pub((4 if R3 == 0 else 0) + g1)
    both(4 + g1, g1, " lgkmcnt(0)")
elif R3 == 0: e(f"s_waitcnt vmcnt({g1}) lgkmcnt(0)")
else: both(4 + g1, g1, " lgkmcnt(0)")
stamp(8)
e("s_barrier")
c("--- iteration -1: V(1), V(2); flags of parts 0,1,6,7; part 2 fetches its raw chunk")
if GAT == 1: e(f"buffer_load_dword v{vFL}, v{vFA}, s[{sWS}:{sWS+3}], s{sFOFF} offen sc1")
if P0 == 1: first_pub(1)
setm0(sM0V, 32768)
goff(sGOFF, sSTG, 2)
loadV(sTMP2)
setm0(sM0V, 65536)
e(f"s_mov_b32 s{sSLOT}, 65536")
loadV(sGOFF)
e("s_waitcnt vmcnt(8)")
c("tag of this launch: T = G + golden ratio (64 bit)")
e(f"v_readlane_b32 s{sTAG}, v{vFL}, 0")
e(f"v_readlane_b32 s{sTAG+1}, v{vFL}, 1")
e(f"v_and_b32 v{vT0}, 1, v{vLANE}")
e(f"s_add_u32 s{sTAG}, s{sTAG}, 0x7f4a7c15")
e(f"s_addc_u32 s{sTAG+1}, s{sTAG+1}, 0x9e3779b9")
e(f"v_cmp_eq_u32 vcc, 1, v{vT0}")
e(f"v_mov_b32 v{vTG2}, s{sTAG}")
e(f"v_mov_b32 v{vTG2+1}, s{sTAG+1}")
e(f"v_cndmask_b32 v{vTAG}, v{vTG2}, v{vTG2+1}, vcc")
e(f"s_cmp_lt_u32 s{sIP}, 6")
e("s_cbranch_scc1 L_i1")
stamp(29)
raise_flag()
e("s_waitcnt vmcnt(5)")
e("s_branch L_i3")
e("L_i1:")
e("s_waitcnt vmcnt(4)")
e(f"s_cmp_lg_u32 s{sIP}, 0")
e("s_cbranch_scc1 L_i3")
loadK(RAW3, sPOFF, PUBFL)
e("L_i3:")
stamp(9)
e("s_barrier")
c("--- iteration i = 0..5 (after barrier B_i): K'(i+2), V(i+3)")
e("L_ploop:")
e("s_waitcnt vmcnt(0)")
e(f"s_cmp_eq_u32 s{sPEND}, 0")
e("s_cbranch_scc1 L_nopend")
raise_flag()
e(f"s_mov_b32 s{sPEND}, 0")
e("L_nopend:")
c("is chunk i+2 published (by part i)?  bounded polling, else normalise locally")
e(f"s_mov_b32 s{sCNT}, {NPOLL}")
e("L_poll:")
e(f"s_lshl_b32 s{sTMP}, s{sSTG}, 1")
e(f"s_bitcmp1_b32 s{sFLG}, s{sTMP}")
e("s_cbranch_scc1 L_ready")
e(f"s_cmp_eq_u32 s{sCNT}, 0")
e("s_cbranch_scc1 L_local")
e(f"s_sub_u32 s{sCNT}, s{sCNT}, 1")
poll()
e("s_branch L_poll")
e("L_local:")
loadK(RAW, sGOFF)
e(f"v_add_u32 v{vKW}, s{sSLOT}, v{vKWl}")
e("s_waitcnt vmcnt(0)")
pnorm(RAW)
wrK(vKW)
e("s_waitcnt lgkmcnt(0)")
e("s_branch L_have")
e("L_ready:")
e(f"s_lshl_b32 s{sTMP}, s{sSTG}, 14")
e(f"s_add_u32 s{sTMP}, s{sTMP}, s{sWOFF}")
setm0(sW, f"s{sSLOT}")
e("s_nop 0")
for j in range(4): e(f"buffer_load_dwordx4 v{vG16}, s[{sWS}:{sWS+3}], s{sTMP} offen offset:{1024*j} sc1 lds")
e("L_have:")
stamp_idx(22)
if STAMP == 1:
    e(f"s_add_u32 s56, s{sSTG}, 42"); e("s_mov_b32 m0, s56"); e(f"v_writelane_b32 v{vST}, s{sCNT}, m0")
e(f"s_cmp_eq_u32 s{sSTG}, 5")
e("s_cbranch_scc1 L_plast")
e(f"s_add_u32 s{sSLOT}, s{sSLOT}, 32768")
e(f"s_and_b32 s{sSLOT}, s{sSLOT}, 0x1ffff")
setm0(sM0V, f"s{sSLOT}")
goff(sGOFF, sSTG, 3)
loadV(sGOFF)
e(f"s_cmp_eq_u32 s{sSTG}, s{sIP}")
e("s_cbranch_scc1 L_pub")
e(f"s_add_u32 s{sSTG}, s{sSTG}, 1")
e(f"s_cmp_eq_u32 s{sSTG}, s{sIP}")
e("s_cbranch_scc1 L_raw")
e("s_waitcnt vmcnt(4)")
e("L_pbar:")
stamp_idx(9)
e("s_barrier")
e("s_branch L_ploop")
e("L_pub:")
publish()
e(f"s_mov_b32 s{sPEND}, 1")
e(f"s_add_u32 s{sSTG}, s{sSTG}, 1")
e("s_waitcnt vmcnt(8)")
e("s_branch L_pbar")
e("L_raw:")
loadK(RAW3, sPOFF, PUBFL)
e("s_waitcnt vmcnt(8)")
e("s_branch L_pbar")
e("L_plast:")
e("s_waitcnt vmcnt(0)")
e("s_barrier")
c("part 0: once every part has raised its flag (so has read G), advance the generation for the next launch")
e(f"s_cmp_lg_u32 s{sPART}, 0")
e("s_cbranch_scc1 L_pend")
e("L_fin:")
e(f"s_and_b32 s{sTMP}, s{sFLG}, 0x5555")
e(f"s_cmp_eq_u32 s{sTMP}, 0x5555")
e("s_cbranch_scc1 L_bump")
poll()
e("s_branch L_fin")
e("L_bump:")
e("s_mov_b64 exec, 1")
e(f"buffer_store_dwordx2 {vr(vTG2,2)}, v{vFA}, s[{sWS}:{sWS+3}], s{sFOFF} offen sc1")
e("s_mov_b64 exec, -1")
e("L_pend:")
if STAMP:
    stamp(18)
    e(f"s_add_u32 s{sTMP}, s{sWAVE}, 8")
    st_flush(sTMP)
e("s_endpgm")

c("|t| large (or NaN): find the true row max of the logits first, then run the main loop with C = -max")
e("L_maxpass:")
e(f"ds_read_b128 {vr(QB,4)}, v{vQR}")
e(f"ds_read_b128 {vr(QB+4,4)}, v{vQR} offset:1088")
c("lane (key=l&31,h=l>>5): frag i = bytes key*64 + i*32 + h*16")
e(f"s_mov_b32 s{sTMP}, s{sHEAD}")
e(f"s_mov_b32 s{sTMP2}, 0")
e(f"v_mov_b32 v{vT3}, 0xff800000")
e(f"v_mov_b32 v{vT4}, 0xff800000")
e("s_waitcnt lgkmcnt(0)")
e("L_maxloop:")
e(f"buffer_load_dwordx4 {vr(SB,4)}, v{vOUT}, s[{sK}:{sK+3}], s{sTMP} offen")
e(f"buffer_load_dwordx4 {vr(SB+4,4)}, v{vOUT}, s[{sK}:{sK+3}], s{sTMP} offen offset:32")
e("s_waitcnt vmcnt(0)")
unpack(SB, OA)
dots(vT0, SB, 8)
e("s_nop 2")
e(f"v_mov_b32 v{vT1}, v{vT0}"); e("s_nop 1")
e(f"v_permlane32_swap_b32 v{vT0}, v{vT1}"); e("s_nop 1")
e(f"v_add_f32 v{vT0}, v{vT0}, v{vT1}")
e(f"v_sqrt_f32 v{vT0}, v{vT0}"); e("s_nop 0")
e(f"v_add_f32 v{vT0}, 0x358637bd, v{vT0}")
e(f"v_rcp_f32 v{vT2}, v{vT0}"); e("s_nop 0")
scale_pack(OA, 8, vT2, OB)
e("s_nop 1")
for S, Q in ((CA, QA), (CB, QB)):
    e(f"v_mfma_f32_32x32x16_bf16 {vr(S,16)}, {vr(OB,4)}, {vr(Q,4)}, 0")
    e(f"v_mfma_f32_32x32x16_bf16 {vr(S,16)}, {vr(OB+4,4)}, {vr(Q+4,4)}, {vr(S,16)}")
e("s_nop 15")
for S, M in ((CA, vT3), (CB, vT4)):
    for j in range(8): e(f"v_max3_f32 v{M}, v{S+2*j}, v{S+2*j+1}, v{M}")
e(f"s_add_u32 s{sTMP}, s{sTMP}, 2048")
e(f"s_add_u32 s{sTMP2}, s{sTMP2}, 1")
e(f"s_cmp_lt_u32 s{sTMP2}, 64")
e("s_cbranch_scc1 L_maxloop")
for C, M in ((CA, vT3), (CB, vT4)):
    e(f"v_mov_b32 v{vT0}, v{M}")
    e("s_nop 1")
    e(f"v_permlane32_swap_b32 v{vT0}, v{M}")
    e("s_nop 1")
    e(f"v_max_f32 v{M}, v{M}, v{vT0}")
    e(f"v_xor_b32 v{C}, 0x80000000, v{M}")
    for j in range(1, 16): e(f"v_mov_b32 v{C+j}, v{C}")
zero(list(range(OA, OA+16)) + list(range(OB, OB+16)))
e("s_branch L_start")

nv = max(136, (NV + 7) // 8 * 8)
src = HEADER + f"; @launch grid=(256,1,1) block=(768,1,1) lds={LDS_TOTAL}\n" + f""".amdgcn_target "amdgcn-amd-amdhsa--gfx950"
.text
.globl {NAME}
.p2align 8
.type {NAME},@function
""" + "\n".join(L) + f"""
.section .rodata,"a"
.p2align 6
.amdhsa_kernel {NAME}
  .amdhsa_next_free_vgpr {nv}
  .amdhsa_next_free_sgpr 64
  .amdhsa_accum_offset {nv}
  .amdhsa_group_segment_fixed_size 0
  .amdhsa_kernarg_size 56
  .amdhsa_user_sgpr_count 2
  .amdhsa_user_sgpr_kernarg_segment_ptr 1
  .amdhsa_system_sgpr_workgroup_id_x 1
.end_amdhsa_kernel
"""
open(sys.argv[1], "w").write(src)
print("vgprs", NV, "->", nv)
```

```python
import sys
OPT = dict(a.split("=") for a in sys.argv[2:] if "=" in a)
def opt(name, default): return type(default)(OPT.get(name, default))
def flags(name, default): return OPT.get(name, default).replace("+", " ").replace("none", "")
STAMP = opt("stamp", 0)
PRIO = OPT.get("prio", "2103")
B1 = opt("b1", 2)
K1AT = opt("k1at", 0)
PPRIO = opt("pprio", 3)
NPOLL = opt("npoll", 8)
CZERO = opt("czero", 0)
STFLAGS = flags("stflags", "nt+sc1"); QFLAGS = flags("qflags", "nt"); PUBFL = flags("pubfl", "none")
KDMA = opt("kdma", 1)
OWNISS = opt("owniss", 1)
OWNAT = opt("ownat", 0)
FULL = opt("full", 1)
XFLAG = opt("xflag", 0)
OWNV = opt("ownv", 1)
V3AT = opt("v3at", 0)
NOPUB = opt("nopub", 0); COMMON = opt("common", 0); PUBST = flags("pubst", "sc1")
BV = opt("bv", 0)
BARAT = opt("barat", 2)
BAR7 = opt("bar7", 1)
LASTP = opt("lastp", 0)

HEADER = open("standalone__qk_norm__prompt.s.ref").read().split("; Override launch")[0]
NAME = "standalone__qk_norm__prompt_kernel"
L = []
def e(s=""): L.append("    " + s.rstrip() if s and not s.endswith(":") else s)
def c(s): L.append("    ; " + s)

class VA:
    def __init__(s, n=1): s.n = n
    def get(s, k=1, al=1):
        s.n = (s.n + al - 1) // al * al
        b = s.n; s.n += k; return b
def vr(b, n): return f"v[{b}:{b+n-1}]"
va = VA()
vLANE = va.get(); vG16 = va.get(); vT0 = va.get(); vT1 = va.get(); vT3 = va.get(); vT2 = va.get(2, 2); vT4 = va.get(2, 2)
vST = va.get(); vST2 = va.get()
UA = va.get(8, 4)
base = va.n
vKR = va.get(); vVR = va.get(); vKRl = va.get(); vVRl = va.get(); vIDX = va.get(); vTL = va.get(); vRED = va.get(); vOUT = va.get()
vQR = va.get(); vQW = va.get(); vXF = va.get(); vRD = va.get()
KF = UA
ONES = va.get(4, 4)
QA = va.get(8, 4); QB = va.get(8, 4)
VF0 = va.get(4, 4); VF1 = va.get(4, 4)
LA = va.get(4, 4); LB = va.get(4, 4)
SA = va.get(16, 4); SB = va.get(16, 4)
OA = va.get(16, 4); OB = va.get(16, 4)
CA = va.get(16, 4); CB = va.get(16, 4)
NV = va.n
vp = VA(base)
vG64 = vp.get(); vKWl = vp.get(); vKW = vp.get(); vFA = vp.get(); vFL = vp.get(); vTAG = vp.get(); vTG2 = vp.get(2, 2); vPUB = vp.get()
RAW = vp.get(16, 4); RAW2 = vp.get(16, 4); RAW3 = vp.get(16, 4); UNP = vp.get(32, 4); PK = vp.get(16, 4)
assert vp.n <= NV and NV <= 168 and B1 == 2 and not BV

sQ, sK, sV, sO, sWS = 16, 20, 24, 28, 12
sHEAD = 32; sPART = 33; sWAVE = 34; sSTG = 35; sT = 36; sGOFF = 37; sSLOT = 38; sCNT = 39
sTMP = 40; sTMP2 = 41; sW = 42; sCH = 43; sM0V = 44; sQOFF = 45; sFLG = 46; sWOFF = 47
sIP = 57; sPEND = 58; sPOFF = 59; sFOFF = 4; sIDX = 5; sC0 = 6; sCUR = 7; sTAG = 8; sTP = 10
LDS_Q = 131072; QSTR = 2176; LDS_XF = LDS_Q + 8 * QSTR; LDS_TOTAL = LDS_XF + 64
WSK = 0x400000; WSF = 0x800000

def st_issue(force=False):
    if STAMP == 1 or (STAMP and force):
        e("s_memtime s[52:53]"); e("s_memrealtime s[54:55]")
def st_put(lane):
    if STAMP == 1 or (STAMP and lane in (0, 18)):
        e(f"v_writelane_b32 v{vST}, s52, {lane}"); e(f"v_writelane_b32 v{vST2}, s54, {lane}")
def stamp(lane):
    if STAMP == 1 or (STAMP and lane == 18):
        st_issue(True); e("s_waitcnt lgkmcnt(0)"); st_put(lane)
def stamp_idx(add):
    if STAMP == 1:
        st_issue(); e("s_waitcnt lgkmcnt(0)"); e(f"s_add_u32 s56, s{sSTG}, {add}"); e("s_mov_b32 m0, s56"); st_put("m0")
def st_init():
    if STAMP:
        e(f"v_mov_b32 v{vST}, 0"); e(f"v_mov_b32 v{vST2}, 0"); st_put(0)
def st_flush(slot_sgpr):
    if STAMP:
        e(f"s_mul_i32 s56, s2, 12"); e(f"s_add_u32 s56, s56, s{slot_sgpr}"); e(f"s_lshl_b32 s56, s56, 9")
        e(f"v_lshlrev_b32 v{vT0}, 2, v{vLANE}")
        e(f"buffer_store_dword v{vST}, v{vT0}, s[{sWS}:{sWS+3}], s56 offen")
        e(f"buffer_store_dword v{vST2}, v{vT0}, s[{sWS}:{sWS+3}], s56 offen offset:256")

def unpack(raw, dst):
    e(f"v_mfma_f32_32x32x16_bf16 {vr(dst,16)}, {vr(UA,4)}, {vr(raw,4)}, 0")
    e(f"v_mfma_f32_32x32x16_bf16 {vr(dst,16)}, {vr(UA+4,4)}, {vr(raw+4,4)}, {vr(dst,16)}")
def dots(acc, raw, n):
    e(f"v_dot2_f32_bf16 v{acc}, v{raw}, v{raw}, 0")
    for j in range(1, n): e(f"v_dot2_f32_bf16 v{acc}, v{raw+j}, v{raw+j}, v{acc}")
def scale_pack(unp, n, sc, pk):
    for j in range(n): e(f"v_pk_mul_f32 {vr(unp+2*j,2)}, {vr(unp+2*j,2)}, {vr(sc,2)} op_sel_hi:[1,0]")
    for j in range(n): e(f"v_cvt_pk_bf16_f32 v{pk+j}, v{unp+2*j}, v{unp+2*j+1}")
def zero(regs):
    for r in list(regs)[::2]: e(f"v_mov_b64 {vr(r,2)}, 0")

def qk(S, Q, C):
    return [f"v_mfma_f32_32x32x16_bf16 {vr(S,16)}, {vr(KF,4)}, {vr(Q,4)}, " + ("0" if CZERO else vr(C,16)),
            f"v_mfma_f32_32x32x16_bf16 {vr(S,16)}, {vr(KF+4,4)}, {vr(Q+4,4)}, {vr(S,16)}"]
def pv(O, VF, S): return f"v_smfmac_f32_32x32x32_bf16 {vr(O,16)}, {vr(VF,4)}, {vr(S,8)}, v{vIDX}"
def sm(Lr, S): return f"v_smfmac_f32_16x16x64_bf16 {vr(Lr,4)}, {vr(ONES,4)}, {vr(S,8)}, v{vIDX}"
def ex(S, a, b):
    for j in range(a, b): e(f"v_exp_f32 v{S+j}, v{S+j}")
def rdK(t):
    e(f"ds_read_b128 {vr(KF,4)}, v{vKR} offset:{t*2048}")
    e(f"ds_read_b128 {vr(KF+4,4)}, v{vKR} offset:{t*2048+1024}")
def rdV(VF, t, half):
    e(f"ds_read_b64_tr_b16 {vr(VF,2)}, v{vVR} offset:{t*2048+half*1024}")
    e(f"ds_read_b64_tr_b16 {vr(VF+2,2)}, v{vVR} offset:{t*2048+half*1024+256}")
def rdX(withflag=True):
    if XFLAG and withflag: e(f"ds_read_b32 v{vT3}, v{vXF}")
    e(f"ds_read_b32 v{LA}, v{vKRl} offset:4096")
    for j in range(4): e(f"ds_read_b128 {vr(OA+4*j,4)}, v{vRD} offset:{1024*j}")

def setp(i, force=False):
    if PRIO == "none": return
    if i == 2*(BARAT+1) and not force and not BAR7: return
    p = PRIO if len(PRIO) == 8 else "".join(x + x for x in PRIO)
    if i == 0 or p[i] != p[i-1]: e(f"s_setprio {p[i]}")
def slotA(kt):
    c(f"--- slot A kt={kt}")
    setp(2*kt)
    q = qk(SB, QB, CB)
    ex(SA, 0, 2); e(pv(OB, VF1, SB+8)); ex(SA, 2, 5); e(sm(LB, SB+8))
    rdV(VF1, kt, 1)
    ex(SA, 5, 7)
    e(q[0]); ex(SA, 7, 10); e(q[1])
    if kt == 3: e(f"v_add_u32 v{vKR}, s{sSLOT}, v{vKRl}")
    rdK((kt + 1) & 3)
    ex(SA, 10, 13)
    e("s_waitcnt lgkmcnt(4)")
    e(pv(OA, VF0, SA)); ex(SA, 13, 16); e(sm(LA, SA))
def slotB(kt, last=False):
    c(f"--- slot B kt={kt}" + (" (last)" if last else ""))
    setp(2*kt+1)
    q = qk(SA, QA, CA)
    ex(SB, 0, 2)
    e("s_waitcnt lgkmcnt(2)")
    if kt == 3: st_issue()
    if STAMP == 3: st_issue(True)
    e(pv(OA, VF1, SA+8)); ex(SB, 2, 5); e(sm(LA, SA+8)); ex(SB, 5, 7)
    if not last or STAMP in (1, 3): e("s_waitcnt lgkmcnt(0)")
    if STAMP == 3:
        e(f"s_lshl2_add_u32 m0, s{sSTG}, {32+kt}")
        e(f"v_writelane_b32 v{vST}, s52, m0"); e(f"v_writelane_b32 v{vST2}, s54, m0")
    if kt == 3 and STAMP == 1:
        e(f"s_add_u32 s56, s{sSTG}, 8"); e(f"s_mov_b32 m0, s56"); st_put("m0")
    if last:
        ex(SB, 7, 10)
        e(pv(OB, VF0, SB))
        ex(SB, 10, 12)
        c("tile A is complete: hand its partial sums to the partner wave")
        for j in range(4): e(f"ds_write_b128 v{vRED}, {vr(OA+4*j,4)} offset:{1024*j}")
        e(f"ds_write_b32 v{vVRl}, v{LA} offset:4096")
        if XFLAG:
            e(f"ds_write_b32 v{vQW}, v{vIDX}")
            rdX()
        ex(SB, 12, 13)
        e(sm(LB, SB))
        ex(SB, 13, 16)
        return
    e(q[0]); ex(SB, 7, 10); e(q[1])
    if kt == 3: e(f"v_add_u32 v{vVR}, s{sSLOT}, v{vVRl}")
    ex(SB, 10, 13)
    e(pv(OB, VF0, SB))
    rdV(VF0, (kt + 1) & 3, 0)
    ex(SB, 13, 16); e(sm(LB, SB))

def ua_consts():
    c("unpack selection matrices: lane (m=l&31,hA=l>>5): A_i has 1.0 at e=(m&3)+4*((m>>3)&1) iff (m>>4)==i and ((m>>2)&1)==hA")
    e(f"v_bfe_u32 v{vT0}, v{vLANE}, 2, 1")
    e(f"v_lshrrev_b32 v{vT1}, 5, v{vLANE}")
    e(f"v_cmp_eq_u32 vcc, v{vT0}, v{vT1}")
    e(f"v_and_b32 v{vT0}, 1, v{vLANE}")
    e(f"v_lshlrev_b32 v{vT0}, 4, v{vT0}")
    e(f"v_mov_b32 v{vT1}, 0x3f80")
    e(f"v_lshlrev_b32 v{vT1}, v{vT0}, v{vT1}")
    e(f"v_cndmask_b32 v{vT1}, 0, v{vT1}, vcc")
    e(f"v_bfe_u32 v{vT0}, v{vLANE}, 1, 1")
    e(f"v_bfe_u32 v{vT2}, v{vLANE}, 3, 2")
    e(f"v_lshl_add_u32 v{vT0}, v{vT2}, 1, v{vT0}")
    for r in range(8):
        e(f"v_cmp_eq_u32 vcc, {r}, v{vT0}")
        e("s_nop 1")
        e(f"v_cndmask_b32 v{UA+r}, 0, v{vT1}, vcc")
def loadK(dst, soff, fl=""):
    for j in range(4): e(f"buffer_load_dwordx4 {vr(dst+4*j,4)}, v{vG64}, s[{sK}:{sK+3}], s{soff} offen offset:{16*j} {fl}")
def loadV(soff):
    for j in range(4): e(f"buffer_load_dwordx4 v{vG16}, s[{sV}:{sV+3}], s{soff} offen offset:{1024*j} lds")

e(f"{NAME}:")
for s, off in ((sQ, 0), (sK, 8), (sV, 16), (sTP, 24), (sO, 32), (sWS, 48)):
    e(f"s_load_dwordx2 s[{s}:{s+1}], s[0:1], {off}")
st_issue(True)
e("s_cmp_ge_u32 s2, 256")
e("s_cbranch_scc1 L_end")
c("head = (wg&7)*4 + ((wg>>3)&3), part = wg>>5")
e(f"v_lshrrev_b32 v{vT0}, 6, v0")
e(f"v_and_b32 v{vLANE}, 63, v0")
e(f"v_readfirstlane_b32 s{sWAVE}, v{vT0}")
e("s_and_b32 s3, s2, 7")
e("s_lshl_b32 s3, s3, 2")
e(f"s_bfe_u32 s{sTMP}, s2, 0x20003")
e(f"s_add_u32 s3, s3, s{sTMP}")
e(f"s_lshl_b32 s{sHEAD}, s3, 17")
e(f"s_lshr_b32 s{sPART}, s2, 5")
e(f"v_lshlrev_b32 v{vG16}, 4, v{vLANE}")
e(f"s_mov_b32 s{sQ+2}, 0x400000")
e(f"s_mov_b32 s{sQ+3}, 0x00020000")
for s in (sK, sV, sO): e(f"s_mov_b64 s[{s+2}:{s+3}], s[{sQ+2}:{sQ+3}]")
e(f"s_mov_b32 s{sWS+2}, 0x804000"); e(f"s_mov_b32 s{sWS+3}, 0x00020000")
e(f"s_cmp_ge_u32 s{sWAVE}, 4")
e("s_cbranch_scc1 L_consumer")
c("producer: first loads K(0) V(0) K(1)")
QFIRST = opt("qfirst", 0)
if not QFIRST: e(f"s_setprio {PPRIO}")
e(f"s_lshl_b32 s{sW}, s{sWAVE}, 12")
e(f"s_add_u32 s{sHEAD}, s{sHEAD}, s{sW}")
e(f"s_and_b32 s{sC0}, s3, 7"); e(f"s_lshl_b32 s{sC0}, s{sC0}, 14")
e(f"s_add_u32 s{sGOFF}, s{sHEAD}, s{sC0}")
e(f"s_add_u32 s{sM0V}, s{sW}, 16384")
e(f"v_lshlrev_b32 v{vG64}, 6, v{vLANE}")
e(f"s_mov_b32 m0, s{sM0V}")
e(f"s_add_u32 s{sTMP2}, s{sC0}, 16384")
e(f"s_and_b32 s{sTMP2}, s{sTMP2}, 0x1ffff")
e(f"s_add_u32 s{sTMP2}, s{sTMP2}, s{sHEAD}")
c("parts 0,1 publish chunks 2,3 ahead of their own K(1)")
e(f"s_add_u32 s{sPOFF}, s{sPART}, 2")
e(f"s_lshl_b32 s{sPOFF}, s{sPOFF}, 14")
e(f"s_add_u32 s{sPOFF}, s{sPOFF}, s{sC0}")
e(f"s_and_b32 s{sPOFF}, s{sPOFF}, 0x1ffff")
e(f"s_add_u32 s{sPOFF}, s{sPOFF}, s{sHEAD}")
e(f"s_cmp_lt_u32 s{sPART}, 2")
e(f"s_cselect_b32 s{sTMP}, s{sPOFF}, s{sTMP2}")
e("s_waitcnt lgkmcnt(0)")
loadK(RAW, sGOFF)
e(f"s_mov_b32 s{sCUR}, s{sGOFF}")
if B1 in (0, 1): loadV(sGOFF)
loadK(RAW2, sTMP)
if B1 == 4: loadV(sGOFF)
if QFIRST: e(f"s_setprio {PPRIO}")
e("s_branch L_producer")

c("===== consumer waves 4..11 =====")
e("L_consumer:")
if QFIRST: e("s_setprio 2")
e(f"s_sub_u32 s{sWAVE}, s{sWAVE}, 4")
e(f"s_lshl_b32 s{sW}, s{sWAVE}, 11")
e(f"s_lshl_b32 s{sTMP}, s{sPART}, 14")
e(f"s_add_u32 s{sQOFF}, s{sHEAD}, s{sTMP}")
e(f"s_add_u32 s{sQOFF}, s{sQOFF}, s{sW}")
e(f"s_lshr_b32 s{sTMP2}, s3, 1")
e(f"s_lshl_b32 s{sTMP2}, s{sTMP2}, 2")
e("s_waitcnt lgkmcnt(0)")
e(f"buffer_load_dwordx4 {vr(SA,4)}, v{vG16}, s[{sQ}:{sQ+3}], s{sQOFF} offen {QFLAGS}")
e(f"buffer_load_dwordx4 {vr(SA+4,4)}, v{vG16}, s[{sQ}:{sQ+3}], s{sQOFF} offen offset:1024 {QFLAGS}")
e(f"s_load_dword s{sT}, s[{sTP}:{sTP+1}], s{sTMP2}")
if B1 == 5:
    c("V tile w of the first chunk, queued behind Q")
    e(f"s_add_u32 m0, s{sW}, 16384")
    e(f"s_and_b32 s{sTMP}, s3, 7"); e(f"s_lshl_b32 s{sTMP}, s{sTMP}, 14")
    e(f"s_add_u32 s{sTMP}, s{sTMP}, s{sHEAD}"); e(f"s_add_u32 s{sTMP}, s{sTMP}, s{sW}")
    e(f"buffer_load_dwordx4 v{vG16}, s[{sV}:{sV+3}], s{sTMP} offen lds")
    e(f"buffer_load_dwordx4 v{vG16}, s[{sV}:{sV+3}], s{sTMP} offen offset:1024 lds")
st_init()
ua_consts()
c("K' read: group*8192 + lane*16")
e(f"s_and_b32 s{sTMP}, s{sWAVE}, 4")
e(f"s_lshl_b32 s{sTMP}, s{sTMP}, 11")
e(f"v_add_u32 v{vKRl}, s{sTMP}, v{vG16}")
c("V read: (8*hA + (i>>2))*64 + dhalf*32 + (i&3)*8 + 16384 + group*8192")
e(f"v_lshrrev_b32 v{vT0}, 5, v{vLANE}")
e(f"v_lshlrev_b32 v{vT0}, 9, v{vT0}")
e(f"v_bfe_u32 v{vT1}, v{vLANE}, 2, 2")
e(f"v_lshl_add_u32 v{vT0}, v{vT1}, 6, v{vT0}")
e(f"v_bfe_u32 v{vT1}, v{vLANE}, 4, 1")
e(f"v_lshl_add_u32 v{vT0}, v{vT1}, 5, v{vT0}")
e(f"v_and_b32 v{vT1}, 3, v{vLANE}")
e(f"v_lshl_add_u32 v{vT0}, v{vT1}, 3, v{vT0}")
e(f"s_add_u32 s{sTMP}, s{sTMP}, 16384")
e(f"v_add_u32 v{vVRl}, s{sTMP}, v{vT0}")
e(f"v_mov_b32 v{vKR}, v{vKRl}")
e(f"v_mov_b32 v{vVR}, v{vVRl}")
e(f"v_mov_b32 v{vIDX}, 0xdddddddd")
c("Q' write: LDS_Q + w*QSTR + (l&3)*544 + (l>>2)*16 ; read: LDS_Q + tile*QSTR + (l>>5)*544 + (l&31)*16")
e(f"s_mul_i32 s{sTMP}, s{sWAVE}, {QSTR}")
e(f"s_add_u32 s{sTMP}, s{sTMP}, {LDS_Q}")
e(f"v_mul_u32_u24 v{vT0}, 544, v{vT1}")
e(f"v_lshrrev_b32 v{vT1}, 2, v{vLANE}")
e(f"v_lshl_add_u32 v{vT0}, v{vT1}, 4, v{vT0}")
e(f"v_add_u32 v{vQW}, s{sTMP}, v{vT0}")
e(f"v_lshrrev_b32 v{vT1}, 5, v{vLANE}")
e(f"v_lshl_add_u32 v{vT0}, v{vT1}, 5, v{vG16}")
e(f"s_and_b32 s{sTMP2}, s{sWAVE}, 3")
e(f"s_mul_i32 s{sTMP2}, s{sTMP2}, {QSTR}")
e(f"s_add_u32 s{sTMP2}, s{sTMP2}, {LDS_Q}")
e(f"v_add_u32 v{vT3}, s{sTMP2}, v{vT0}")
e(f"v_add_u32 v{vQR}, {4*QSTR}, v{vT3}")
c("row-sum selector: only rows 0 (q 0..15) and 4 (q 16..31) carry ones")
e(f"v_and_b32 v{vT0}, 15, v{vLANE}")
e(f"v_mov_b32 v{vT1}, 0x3f803f80")
e(f"v_cmp_eq_u32 vcc, 0, v{vT0}")
e("s_nop 1")
e(f"v_cndmask_b32 v{ONES}, 0, v{vT1}, vcc")
e(f"v_cmp_eq_u32 vcc, 4, v{vT0}")
e(f"v_mov_b32 v{ONES+1}, v{ONES}")
e("s_nop 0")
e(f"v_cndmask_b32 v{ONES+2}, 0, v{vT1}, vcc")
e(f"v_mov_b32 v{ONES+3}, v{ONES+2}")
c("epilogue addresses")
e(f"s_and_b32 s{sTMP}, s{sWAVE}, 3")
e(f"s_lshl_b32 s{sTMP}, s{sTMP}, 13")
e(f"v_add_u32 v{vRED}, s{sTMP}, v{vG16}")
e(f"v_lshl_add_u32 v{vRD}, v{vLANE}, 2, s{sTMP}")
e(f"v_and_b32 v{vT0}, 31, v{vLANE}")
e(f"v_lshlrev_b32 v{vT0}, 6, v{vT0}")
e(f"v_lshrrev_b32 v{vT1}, 5, v{vLANE}")
e(f"v_lshl_add_u32 v{vOUT}, v{vT1}, 4, v{vT0}")
if FULL:
    c("output store: lane -> (row l&15, 16-byte chunk 2*((l>>4)&1) + (l>>5))")
    e(f"v_and_b32 v{vT0}, 15, v{vLANE}")
    e(f"v_lshlrev_b32 v{vT0}, 6, v{vT0}")
    e(f"v_lshl_add_u32 v{vT0}, v{vT1}, 4, v{vT0}")
    e(f"v_bfe_u32 v{vT1}, v{vLANE}, 4, 1")
    e(f"v_lshl_add_u32 v{vXF}, v{vT1}, 5, v{vT0}")
zero(list(range(OA, OA+16)) + list(range(OB, OB+16)) + list(range(LA, LA+4)) + list(range(LB, LB+4)) + list(range(VF1, VF1+4)))
if XFLAG:
    e(f"s_lshl_b32 s{sTMP}, s{sWAVE}, 2")
    e(f"s_add_u32 s{sTMP}, s{sTMP}, {LDS_XF}")
    e(f"v_mov_b32 v{vXF}, s{sTMP}")
e("s_waitcnt lgkmcnt(0)")
if XFLAG: e(f"ds_write_b32 v{vXF}, v{OA}")
e(f"s_lshl_b32 s{sTMP}, s{sT}, 16")
e(f"s_and_b32 s{sTMP2}, s{sT}, 0xffff0000")
e("s_bitcmp1_b32 s3, 0")
e(f"s_cselect_b32 s{sT}, s{sTMP2}, s{sTMP}")
e(f"v_mov_b32 v{vTL}, 0x3fb8aa3b")
e(f"v_mul_f32 v{vTL}, s{sT}, v{vTL}")
e(f"v_or_b32 v{CA}, 0x80000000, v{vTL}")
e(f"v_mov_b32 v{CA+1}, v{CA}")
for j in range(2, 32, 2): e(f"v_mov_b64 {vr(CA+j,2)}, {vr(CA,2)}")
zero(range(SB+8, SB+16))
e(f"s_mov_b32 s{sSTG}, 0")
e(f"s_mov_b32 s{sSLOT}, 32768")
e(f"s_and_b32 s{sT}, s{sT}, 0x7fffffff")
stamp(1)
c("Q tile: rows 16j + (l>>2), 8 elements per lane and j")
QU = QA
e(f"s_waitcnt vmcnt({2 if B1 == 5 else 0})")
stamp(2)
for j in range(4):
    e(f"v_dot2_f32_bf16 v{vT0}, v{SA+j}, v{SA+j}, " + ("0" if j == 0 else f"v{vT0}"))
    e(f"v_dot2_f32_bf16 v{vT1}, v{SA+4+j}, v{SA+4+j}, " + ("0" if j == 0 else f"v{vT1}"))
unpack(SA, QU)
for qp in ("[1,0,3,2]", "[2,3,0,1]"):
    e("s_nop 0")
    e(f"v_add_f32_dpp v{vT0}, v{vT0}, v{vT0} quad_perm:{qp} row_mask:0xf bank_mask:0xf")
    e(f"v_add_f32_dpp v{vT1}, v{vT1}, v{vT1} quad_perm:{qp} row_mask:0xf bank_mask:0xf")
e(f"v_sqrt_f32 v{vT0}, v{vT0}")
e(f"v_sqrt_f32 v{vT1}, v{vT1}")
e(f"v_add_f32 v{vT0}, 0x358637bd, v{vT0}")
e(f"v_add_f32 v{vT1}, 0x358637bd, v{vT1}")
e(f"v_rcp_f32 v{vT0}, v{vT0}")
e(f"v_rcp_f32 v{vT1}, v{vT1}")
e(f"v_mul_f32 v{vT2}, v{vT0}, v{vTL}")
e(f"v_mul_f32 v{vT4}, v{vT1}, v{vTL}")
scale_pack(QU, 4, vT2, SA+8)
e(f"ds_write_b128 v{vQW}, {vr(SA+8,4)}")
scale_pack(QU+8, 4, vT4, SA+12)
e(f"ds_write_b128 v{vQW}, {vr(SA+12,4)} offset:256")
stamp(3)
c("fast path check: |t| <= 16")
e(f"s_cmp_le_u32 s{sT}, 0x41800000")
e("s_waitcnt vmcnt(0) lgkmcnt(0)")
e("s_barrier")
e(f"ds_read_b128 {vr(QA,4)}, v{vT3}")
e(f"ds_read_b128 {vr(QA+4,4)}, v{vT3} offset:1088")
e("s_cbranch_scc0 L_maxpass")
e("L_start:")
rdK(0)
e(f"ds_read_b128 {vr(QB,4)}, v{vQR}")
e(f"ds_read_b128 {vr(QB+4,4)}, v{vQR} offset:1088")
if not BV: rdV(VF0, 0, 0)
if XFLAG: e(f"v_xor_b32 v{vQW}, 16, v{vXF}")
stamp(5)
e(f"s_waitcnt lgkmcnt({2 if BV else 4})")
for s in qk(SA, QA, CA): e(s)
if BV:
    e("s_barrier")
    rdV(VF0, 0, 0)
e("s_waitcnt lgkmcnt(2)")
e("s_nop 7")
if not BV: e("s_nop 2")
stamp(6)
e(".p2align 6")
e("L_stage:")
for kt in range(4):
    slotA(kt)
    slotB(kt)
    if kt == BARAT: e("s_barrier")
e(f"s_add_u32 s{sSTG}, s{sSTG}, 1")
e(f"s_add_u32 s{sSLOT}, s{sSLOT}, 32768")
e(f"s_and_b32 s{sSLOT}, s{sSLOT}, 0x1ffff")
e(f"s_cmp_lg_u32 s{sSTG}, 7")
e("s_cbranch_scc1 L_stage")

class Lds:
    def __init__(s, q, kf, v0, v1): s.q = list(q); s.kf = kf; s.v0 = v0; s.v1 = v1
    def copy(s): return Lds(s.q, s.kf, s.v0, s.v1)
    def add(s, tag, n): s.q += [tag] * n
    def need(s, tag):
        if tag in s.q:
            last = len(s.q) - 1 - s.q[::-1].index(tag)
            e(f"s_waitcnt lgkmcnt({len(s.q) - 1 - last})")
            s.q = s.q[last + 1:]
T = [("A", 0), ("A", 1), ("A", 2), ("A", 3), ("B", 0), ("B", 1), ("B", 2), ("B", 3)]
ACC = {"A": (OA, LA, QA, CA), "B": (OB, LB, QB, CB)}
def gslot(i, st, hooks={}):
    c(f"--- last stage slot {i}: {T[i]}")
    cur, oth = (SA, SB) if i % 2 == 0 else (SB, SA)
    P = T[i-1] if i else ("B", None); Tc = T[i]; N = T[i+1] if i < 7 else None
    h = lambda k: hooks[k](st) if k in hooks else None
    if N and st.kf != N[1]:
        rdK(N[1]); st.add("k", 2); st.kf = N[1]
    h("start")
    ex(cur, 0, 2)
    st.need("v1")
    e(pv(ACC[P[0]][0], VF1, oth+8)); ex(cur, 2, 5); e(sm(ACC[P[0]][1], oth+8))
    if st.v1 != Tc[1]:
        rdV(VF1, Tc[1], 1); st.add("v1", 2); st.v1 = Tc[1]
    ex(cur, 5, 7)
    if N:
        q = qk(oth, ACC[N[0]][2], ACC[N[0]][3])
        st.need("k")
        e(q[0]); ex(cur, 7, 10); e(q[1])
        if i < 6 and st.kf != T[i+2][1]:
            rdK(T[i+2][1]); st.add("k", 2); st.kf = T[i+2][1]
    else:
        ex(cur, 7, 10)
    h("mid")
    ex(cur, 10, 13)
    st.need("v0")
    e(pv(ACC[Tc[0]][0], VF0, cur))
    if N and st.v0 != N[1]:
        rdV(VF0, N[1], 0); st.add("v0", 2); st.v0 = N[1]
    h("late")
    ex(cur, 13, 16); e(sm(ACC[Tc[0]][1], cur))
def send(O, Lr, off):
    def f(st):
        for j in range(4): e(f"ds_write_b128 v{vRED}, {vr(O+4*j,4)} offset:{off+1024*j}")
        e(f"ds_write_b32 v{vRD}, v{Lr} offset:{off+4096}")
        st.add("w", 5)
    return f
def recv(R, Lr, off, st):
    e(f"ds_read_b32 v{Lr}, v{vRD} offset:{off+4096}"); st.add("xl", 1)
    for j in range(4):
        e(f"ds_read_b128 {vr(R+4*j,4)}, v{vRED} offset:{off+1024*j}"); st.add(f"x{j}", 1)
def finalize(O, R, Lo, Lr, PKo, soff, st):
    st.need("xl")
    e(f"v_add_f32 v{Lr}, v{Lr}, v{Lo}")
    e(f"v_rcp_f32 v{vT2}, v{Lr}")
    e("s_nop 0")
    e(f"v_mov_b32 v{vT1}, v{vT2}")
    for j in range(4):
        st.need(f"x{j}")
        for i in range(2):
            r = 4*j + 2*i
            e(f"v_pk_add_f32 {vr(R+r,2)}, {vr(R+r,2)}, {vr(O+r,2)}")
        if j == 0: e(f"v_permlane32_swap_b32 v{vT2}, v{vT1}")
    for i in range(8):
        e(f"v_pk_mul_f32 {vr(R+2*i,2)}, {vr(R+2*i,2)}, {vr(vT2,2)} op_sel_hi:[1,0]")
    for i in range(8):
        e(f"v_cvt_pk_bf16_f32 v{PKo+i}, v{R+2*i}, v{R+2*i+1}")
        if i == 5:
            e(f"v_permlane32_swap_b32 v{PKo+0}, v{PKo+2}")
            e(f"v_permlane32_swap_b32 v{PKo+1}, v{PKo+3}")
    e("s_nop 1")
    e(f"v_permlane32_swap_b32 v{PKo+4}, v{PKo+6}")
    e(f"v_permlane32_swap_b32 v{PKo+5}, v{PKo+7}")
    e("s_nop 1")
    for j in range(4): e(f"v_permlane16_swap_b32 v{PKo+j}, v{PKo+4+j}")
    e("s_nop 1")
    e(f"buffer_store_dwordx4 {vr(PKo,4)}, v{vXF}, s[{sO}:{sO+3}], s{soff} offen {STFLAGS}")
    e(f"buffer_store_dwordx4 {vr(PKo+4,4)}, v{vXF}, s[{sO}:{sO+3}], s{soff} offen offset:1024 {STFLAGS}")
LP = OPT.get("lp", "22110")
G0P = opt("g0p", 2); G1P = opt("g1p", 1)
def cstamp(lane):
    if STAMP == 3:
        st_issue(True); e("s_waitcnt lgkmcnt(0)")
        e(f"v_writelane_b32 v{vST}, s52, {lane}"); e(f"v_writelane_b32 v{vST2}, s54, {lane}")
st = Lds(["v0", "v0"], 0, 0, None)
for i in range(4):
    if i == 0 or LP[i] != LP[i-1]: e(f"s_setprio {LP[i]}")
    gslot(i, st)
    if i in (1, 3): cstamp(60 + i // 2)
if LP[4] != LP[3]: e(f"s_setprio {LP[4]}")
e(f"s_cmp_ge_u32 s{sWAVE}, 4")
e("s_cbranch_scc1 L_g1")
c("===== waves 0..3 of the consumers: hand both partial sums to the partner wave")
s0 = st.copy()
gslot(4, s0, {"mid": send(OA, LA, 0)})
s0.need("w")
e("s_barrier")
e(f"s_setprio {G0P}")
gslot(5, s0); cstamp(62); gslot(6, s0); gslot(7, s0); cstamp(63)
s0.need("v1")
e("s_nop 0")
e(pv(OB, VF1, SB+8))
e(sm(LB, SB+8))
e("s_nop 7"); e("s_nop 2")
send(OB, LB, 32768)(s0)
e("s_waitcnt lgkmcnt(0)")
e("s_barrier")
e("s_branch L_fini")
c("===== waves 4..7 of the consumers: reduce, normalise and store both tiles")
e("L_g1:")
s1 = st.copy()
gslot(4, s1)
e(f"s_sub_u32 s{sTMP}, s{sQOFF}, 8192")
e("s_barrier")
e("s_setprio 3")
recv(CA, LA+1, 0, s1)
finalize(OA, CA, LA, LA+1, QA, sTMP, s1)
e(f"s_setprio {G1P}")
gslot(5, s1); cstamp(62); gslot(6, s1)
def late(st_):
    e("s_barrier"); recv(OA, LA, 32768, st_)
XB = OPT.get("xb", "late")
gslot(7, s1, {XB: late} if XB != "end" else {})
cstamp(63)
s1.need("v1")
e("s_nop 0")
e(pv(OB, VF1, SB+8))
e(sm(LB, SB+8))
if XB == "end": late(s1)
e("s_nop 7")
finalize(OB, OA, LB, LA, QB, sQOFF, s1)
e("L_fini:")
if STAMP:
    stamp(17)
    e("s_waitcnt vmcnt(0)")
    stamp(18)
    st_flush(sWAVE)
e("L_end:")
e("s_endpgm")

c("===== producer waves 0..3: K tiles 2w,2w+1 and V tiles 2w,2w+1 of every chunk =====")
def pnorm(raw):
    acc = [vT0, vT1, vT4, vT4+1]
    for j in range(16):
        a_ = acc[j & 3]
        e(f"v_dot2_f32_bf16 v{a_}, v{raw+j}, v{raw+j}, " + ("0" if j < 4 else f"v{a_}"))
    unpack(raw, UNP); unpack(raw+8, UNP+16)
    e(f"v_add_f32 v{vT0}, v{vT0}, v{vT1}")
    e(f"v_add_f32 v{vT4}, v{vT4}, v{vT4+1}")
    e(f"v_add_f32 v{vT0}, v{vT0}, v{vT4}")
    e(f"v_sqrt_f32 v{vT0}, v{vT0}"); e("s_nop 0")
    e(f"v_add_f32 v{vT0}, 0x358637bd, v{vT0}")
    e(f"v_rcp_f32 v{vT2}, v{vT0}")
    e("s_nop 5")
    scale_pack(UNP, 16, vT2, PK)
def goff(dst, idx_sgpr=None, add=0):
    e(f"s_add_u32 s{dst}, s{idx_sgpr}, {add}")
    e(f"s_lshl_b32 s{dst}, s{dst}, 14")
    e(f"s_add_u32 s{dst}, s{dst}, s{sC0}")
    e(f"s_and_b32 s{dst}, s{dst}, 0x1ffff")
    e(f"s_add_u32 s{dst}, s{dst}, s{sHEAD}")
def wrK(addr, off=0):
    for j in range(4): e(f"ds_write_b128 v{addr}, {vr(PK+4*j,4)} offset:{off+512*j}")
def setm0(base_sgpr, add): e(f"s_add_u32 m0, s{base_sgpr}, {add}")
def poll():
    e(f"buffer_load_dword v{vFL}, v{vFA}, s[{sWS}:{sWS+3}], s{sFOFF} offen sc1")
    e("s_waitcnt vmcnt(0)")
    e(f"v_cmp_eq_u32 vcc, v{vFL}, v{vTAG}")
    e("s_nop 0")
    e(f"s_lshr_b32 s{sFLG}, vcc_lo, 2")
    e(f"s_lshr_b32 s{sTMP}, vcc_lo, 3")
    e(f"s_and_b32 s{sFLG}, s{sFLG}, s{sTMP}")
def publish(norm=True):
    if norm: pnorm(RAW3)
    e(f"s_lshl_b32 s{sTMP}, s{sPART}, 14")
    e(f"s_add_u32 s{sTMP}, s{sTMP}, s{sWOFF}")
    for j in range(4): e(f"buffer_store_dwordx4 {vr(PK+4*j,4)}, v{vPUB}, s[{sWS}:{sWS+3}], s{sTMP} offen offset:{512*j} sc1")
def raise_flag():
    e(f"s_lshl_b32 s{sTMP}, s{sPART}, 3")
    e(f"s_add_u32 s{sTMP}, s{sTMP}, s{sFOFF}")
    e("s_mov_b64 exec, 1")
    e(f"buffer_store_dwordx2 {vr(vTG2,2)}, v{vFA}, s[{sWS}:{sWS+3}], s{sTMP} offen offset:8 sc1")
    e("s_mov_b64 exec, -1")
e("L_producer:")
st_init()
c("hand-off line of (head, wave): dwords 0,1 = generation G, dwords 2+2p,3+2p = flag of part p")
e(f"s_lshl_b32 s{sFOFF}, s3, 2")
e(f"s_add_u32 s{sFOFF}, s{sFOFF}, s{sWAVE}")
e(f"s_lshl_b32 s{sFOFF}, s{sFOFF}, 7")
e(f"s_add_u32 s{sFOFF}, s{sFOFF}, {WSF}")
e(f"v_min_u32 v{vFA}, 17, v{vLANE}")
e(f"v_lshlrev_b32 v{vFA}, 2, v{vFA}")
e(f"s_add_u32 s{sWOFF}, s{sHEAD}, {WSK}")
c("part p < 6 normalises and publishes chunk p+2: parts 0,1 before the first barrier, part p in iteration p-2")
def both(n_first, n_other, extra=""):
    _l[0] += 1; a_, b_ = f"L_wa{_l[0]}", f"L_wb{_l[0]}"
    e(f"s_cmp_ge_u32 s{sPART}, {NFIRST}")
    e(f"s_cbranch_scc1 {a_}")
    e(f"s_waitcnt vmcnt({n_first}){extra}")
    e(f"s_branch {b_}")
    e(f"{a_}:")
    e(f"s_waitcnt vmcnt({n_other}){extra}")
    e(f"{b_}:")
_l = [0]
NFIRST = opt("nfirst", 2)
ua_consts()
c("K' write address: tile (l>>5)*2048 + key*16 (+ chunk c*512)")
e(f"v_and_b32 v{vT0}, 31, v{vLANE}")
e(f"v_lshlrev_b32 v{vT0}, 4, v{vT0}")
e(f"v_lshrrev_b32 v{vT1}, 5, v{vLANE}")
e(f"v_lshl_add_u32 v{vPUB}, v{vT1}, 11, v{vT0}")
e(f"v_add_u32 v{vKWl}, s{sW}, v{vPUB}")
e(f"s_mov_b32 s{sFLG}, 0")
e(f"s_mov_b32 s{sPEND}, 0")
e(f"s_mov_b32 s{sSTG}, 0")
e(f"s_sub_u32 s{sIP}, s{sPART}, 2")
e(f"s_cmp_ge_u32 s{sPART}, 6")
e(f"s_cselect_b32 s{sIP}, 100, s{sIP}")
c("--- K(0), then K(1) (or the chunk to publish)")
e("s_waitcnt vmcnt(4)")
stamp(20)
loadV(sCUR)
e(f"buffer_load_dword v{vFL}, v{vFA}, s[{sWS}:{sWS+3}], s{sFOFF} offen sc1")
pnorm(RAW); wrK(vKWl)
e("s_waitcnt vmcnt(5) lgkmcnt(0)")
stamp(21)
pnorm(RAW2)
e(f"s_cmp_ge_u32 s{sPART}, 2")
e("s_cbranch_scc1 L_k1")
publish(False)
loadK(RAW, sTMP2)
e("s_waitcnt vmcnt(9)")
e("s_branch L_k1d")
e("L_k1:")
wrK(vKWl, 32768)
e("s_waitcnt vmcnt(1) lgkmcnt(0)")
e("L_k1d:")
stamp(8)
e("s_barrier")
c("--- iteration -1: V(1), V(2); flags of parts 0,1,6,7; K(1) of parts 0,1; part 2 fetches its raw chunk")
setm0(sM0V, 32768)
goff(sGOFF, sSTG, 2)
loadV(sTMP2)
setm0(sM0V, 65536)
e(f"s_mov_b32 s{sSLOT}, 65536")
loadV(sGOFF)
e("s_waitcnt vmcnt(8)")
c("tag of this launch: T = G + golden ratio (64 bit)")
e(f"v_readlane_b32 s{sTAG}, v{vFL}, 0")
e(f"v_readlane_b32 s{sTAG+1}, v{vFL}, 1")
e(f"v_and_b32 v{vT0}, 1, v{vLANE}")
e(f"s_add_u32 s{sTAG}, s{sTAG}, 0x7f4a7c15")
e(f"s_addc_u32 s{sTAG+1}, s{sTAG+1}, 0x9e3779b9")
e(f"v_cmp_eq_u32 vcc, 1, v{vT0}")
e(f"v_mov_b32 v{vTG2}, s{sTAG}")
e(f"v_mov_b32 v{vTG2+1}, s{sTAG+1}")
e(f"v_cndmask_b32 v{vTAG}, v{vTG2}, v{vTG2+1}, vcc")
e(f"s_cmp_lt_u32 s{sIP}, 6")
e("s_cbranch_scc1 L_i1")
stamp(29)
raise_flag()
e(f"s_cmp_ge_u32 s{sPART}, 2")
e("s_cbranch_scc1 L_i2")
pnorm(RAW); wrK(vKWl, 32768)
e("L_i2:")
e("s_waitcnt vmcnt(5) lgkmcnt(0)")
e("s_branch L_i3")
e("L_i1:")
e("s_waitcnt vmcnt(4)")
e(f"s_cmp_lg_u32 s{sIP}, 0")
e("s_cbranch_scc1 L_i3")
loadK(RAW3, sPOFF, PUBFL)
e("L_i3:")
stamp(9)
e("s_barrier")
c("--- iteration i = 0..5 (after barrier B_i): K'(i+2), V(i+3)")
e("L_ploop:")
e("s_waitcnt vmcnt(0)")
e(f"s_cmp_eq_u32 s{sPEND}, 0")
e("s_cbranch_scc1 L_nopend")
raise_flag()
e(f"s_mov_b32 s{sPEND}, 0")
e("L_nopend:")
c("is chunk i+2 published (by part i)?  bounded polling, else normalise locally")
e(f"s_mov_b32 s{sCNT}, {NPOLL}")
e("L_poll:")
e(f"s_lshl_b32 s{sTMP}, s{sSTG}, 1")
e(f"s_bitcmp1_b32 s{sFLG}, s{sTMP}")
e("s_cbranch_scc1 L_ready")
e(f"s_cmp_eq_u32 s{sCNT}, 0")
e("s_cbranch_scc1 L_local")
e(f"s_sub_u32 s{sCNT}, s{sCNT}, 1")
poll()
e("s_branch L_poll")
e("L_local:")
loadK(RAW, sGOFF)
e(f"v_add_u32 v{vKW}, s{sSLOT}, v{vKWl}")
e("s_waitcnt vmcnt(0)")
pnorm(RAW)
wrK(vKW)
e("s_waitcnt lgkmcnt(0)")
e("s_branch L_have")
e("L_ready:")
e(f"s_lshl_b32 s{sTMP}, s{sSTG}, 14")
e(f"s_add_u32 s{sTMP}, s{sTMP}, s{sWOFF}")
setm0(sW, f"s{sSLOT}")
e("s_nop 0")
for j in range(4): e(f"buffer_load_dwordx4 v{vG16}, s[{sWS}:{sWS+3}], s{sTMP} offen offset:{1024*j} sc1 lds")
e("L_have:")
stamp_idx(22)
if STAMP == 1:
    e(f"s_add_u32 s56, s{sSTG}, 42"); e("s_mov_b32 m0, s56"); e(f"v_writelane_b32 v{vST}, s{sCNT}, m0")
e(f"s_cmp_eq_u32 s{sSTG}, 5")
e("s_cbranch_scc1 L_plast")
e(f"s_add_u32 s{sSLOT}, s{sSLOT}, 32768")
e(f"s_and_b32 s{sSLOT}, s{sSLOT}, 0x1ffff")
setm0(sM0V, f"s{sSLOT}")
goff(sGOFF, sSTG, 3)
loadV(sGOFF)
e(f"s_cmp_eq_u32 s{sSTG}, s{sIP}")
e("s_cbranch_scc1 L_pub")
e(f"s_add_u32 s{sSTG}, s{sSTG}, 1")
e(f"s_cmp_eq_u32 s{sSTG}, s{sIP}")
e("s_cbranch_scc1 L_raw")
e("s_waitcnt vmcnt(4)")
e("L_pbar:")
stamp_idx(9)
e("s_barrier")
e("s_branch L_ploop")
e("L_pub:")
publish()
e(f"s_mov_b32 s{sPEND}, 1")
e(f"s_add_u32 s{sSTG}, s{sSTG}, 1")
e("s_waitcnt vmcnt(8)")
e("s_branch L_pbar")
e("L_raw:")
loadK(RAW3, sPOFF, PUBFL)
e("s_waitcnt vmcnt(8)")
e("s_branch L_pbar")
e("L_plast:")
e("s_waitcnt vmcnt(0)")
e("s_barrier")
c("part 0: once every part has raised its flag (so has read G), advance the generation for the next launch")
e(f"s_cmp_lg_u32 s{sPART}, 0")
e("s_cbranch_scc1 L_pend")
e("L_fin:")
e(f"s_and_b32 s{sTMP}, s{sFLG}, 0x5555")
e(f"s_cmp_eq_u32 s{sTMP}, 0x5555")
e("s_cbranch_scc1 L_bump")
poll()
e("s_branch L_fin")
e("L_bump:")
e("s_mov_b64 exec, 1")
e(f"buffer_store_dwordx2 {vr(vTG2,2)}, v{vFA}, s[{sWS}:{sWS+3}], s{sFOFF} offen sc1")
e("s_mov_b64 exec, -1")
e("L_pend:")
if STAMP:
    stamp(18)
    e(f"s_add_u32 s{sTMP}, s{sWAVE}, 8")
    st_flush(sTMP)
e("s_endpgm")

c("|t| large (or NaN): find the true row max of the logits first, then run the main loop with C = -max")
e("L_maxpass:")
e(f"ds_read_b128 {vr(QB,4)}, v{vQR}")
e(f"ds_read_b128 {vr(QB+4,4)}, v{vQR} offset:1088")
c("lane (key=l&31,h=l>>5): frag i = bytes key*64 + i*32 + h*16")
e(f"s_mov_b32 s{sTMP}, s{sHEAD}")
e(f"s_mov_b32 s{sTMP2}, 0")
e(f"v_mov_b32 v{vT3}, 0xff800000")
e(f"v_mov_b32 v{vT4}, 0xff800000")
e("s_waitcnt lgkmcnt(0)")
e("L_maxloop:")
e(f"buffer_load_dwordx4 {vr(SB,4)}, v{vOUT}, s[{sK}:{sK+3}], s{sTMP} offen")
e(f"buffer_load_dwordx4 {vr(SB+4,4)}, v{vOUT}, s[{sK}:{sK+3}], s{sTMP} offen offset:32")
e("s_waitcnt vmcnt(0)")
unpack(SB, OA)
dots(vT0, SB, 8)
e("s_nop 2")
e(f"v_mov_b32 v{vT1}, v{vT0}"); e("s_nop 1")
e(f"v_permlane32_swap_b32 v{vT0}, v{vT1}"); e("s_nop 1")
e(f"v_add_f32 v{vT0}, v{vT0}, v{vT1}")
e(f"v_sqrt_f32 v{vT0}, v{vT0}"); e("s_nop 0")
e(f"v_add_f32 v{vT0}, 0x358637bd, v{vT0}")
e(f"v_rcp_f32 v{vT2}, v{vT0}"); e("s_nop 0")
scale_pack(OA, 8, vT2, OB)
e("s_nop 1")
for S, Q in ((CA, QA), (CB, QB)):
    e(f"v_mfma_f32_32x32x16_bf16 {vr(S,16)}, {vr(OB,4)}, {vr(Q,4)}, 0")
    e(f"v_mfma_f32_32x32x16_bf16 {vr(S,16)}, {vr(OB+4,4)}, {vr(Q+4,4)}, {vr(S,16)}")
e("s_nop 15")
for S, M in ((CA, vT3), (CB, vT4)):
    for j in range(8): e(f"v_max3_f32 v{M}, v{S+2*j}, v{S+2*j+1}, v{M}")
e(f"s_add_u32 s{sTMP}, s{sTMP}, 2048")
e(f"s_add_u32 s{sTMP2}, s{sTMP2}, 1")
e(f"s_cmp_lt_u32 s{sTMP2}, 64")
e("s_cbranch_scc1 L_maxloop")
for C, M in ((CA, vT3), (CB, vT4)):
    e(f"v_mov_b32 v{vT0}, v{M}")
    e("s_nop 1")
    e(f"v_permlane32_swap_b32 v{vT0}, v{M}")
    e("s_nop 1")
    e(f"v_max_f32 v{M}, v{M}, v{vT0}")
    e(f"v_xor_b32 v{C}, 0x80000000, v{M}")
    for j in range(1, 16): e(f"v_mov_b32 v{C+j}, v{C}")
zero(list(range(OA, OA+16)) + list(range(OB, OB+16)))
e("s_branch L_start")

nv = max(136, (NV + 7) // 8 * 8)
src = HEADER + f"; @launch grid=(256,1,1) block=(768,1,1) lds={LDS_TOTAL}\n" + f""".amdgcn_target "amdgcn-amd-amdhsa--gfx950"
.text
.globl {NAME}
.p2align 8
.type {NAME},@function
""" + "\n".join(L) + f"""
.section .rodata,"a"
.p2align 6
.amdhsa_kernel {NAME}
  .amdhsa_next_free_vgpr {nv}
  .amdhsa_next_free_sgpr 64
  .amdhsa_accum_offset {nv}
  .amdhsa_group_segment_fixed_size 0
  .amdhsa_kernarg_size 56
  .amdhsa_user_sgpr_count 2
  .amdhsa_user_sgpr_kernarg_segment_ptr 1
  .amdhsa_system_sgpr_workgroup_id_x 1
.end_amdhsa_kernel
"""
open(sys.argv[1], "w").write(src)
print("vgprs", NV, "->", nv)
```

```python
import sys
OPT = dict(a.split("=") for a in sys.argv[2:] if "=" in a)
def opt(name, default): return type(default)(OPT.get(name, default))
STAMP = opt("stamp", 0)
NPOLL = opt("npoll", 8)
PRIO = OPT.get("prio", "2103")
STFLAGS = "nt sc1"; QFLAGS = "nt"

HEADER = open("standalone__qk_norm__prompt.s.ref").read().split("; Override launch")[0]
NAME = "standalone__qk_norm__prompt_kernel"
DOC = """;
;
"""
L = []
def e(s=""): L.append("    " + s.rstrip() if s and not s.endswith(":") else s)
def c(s): L.append("    ; " + s)

class VA:
    def __init__(s, n=1): s.n = n
    def get(s, k=1, al=1):
        s.n = (s.n + al - 1) // al * al
        b = s.n; s.n += k; return b
def vr(b, n): return f"v[{b}:{b+n-1}]"
va = VA()
vLANE = va.get(); vG16 = va.get(); vT0 = va.get(); vT1 = va.get(); vT3 = va.get(); vT2 = va.get(2, 2); vT4 = va.get(2, 2)
vST = va.get(); vST2 = va.get()
UA = va.get(8, 4)
base = va.n
vKR = va.get(); vVR = va.get(); vKRl = va.get(); vVRl = va.get(); vIDX = va.get(); vTL = va.get(); vRED = va.get(); vROW = va.get()
vQR = va.get(); vQW = va.get(); vOUT = va.get(); vRD = va.get()
KF = UA
ONES = va.get(4, 4)
QA = va.get(8, 4); QB = va.get(8, 4)
VF0 = va.get(4, 4); VF1 = va.get(4, 4)
LA = va.get(4, 4); LB = va.get(4, 4)
SA = va.get(16, 4); SB = va.get(16, 4)
OA = va.get(16, 4); OB = va.get(16, 4)
CA = va.get(16, 4); CB = va.get(16, 4)
NV = va.n
vp = VA(base)
vG64 = vp.get(); vKWl = vp.get(); vKW = vp.get(); vFA = vp.get(); vFL = vp.get(); vTAG = vp.get(); vTG2 = vp.get(2, 2); vPUB = vp.get()
RAW = vp.get(16, 4); RAW2 = vp.get(16, 4); RAW3 = vp.get(16, 4); UNP = vp.get(32, 4); PK = vp.get(16, 4)
assert vp.n <= NV and NV <= 168

sQ, sK, sV, sO, sWS = 16, 20, 24, 28, 12
sHEAD = 32; sPART = 33; sWAVE = 34; sSTG = 35; sT = 36; sGOFF = 37; sSLOT = 38; sCNT = 39
sTMP = 40; sTMP2 = 41; sW = 42; sM0V = 44; sQOFF = 45; sFLG = 46; sWOFF = 47
sIP = 48; sPEND = 49; sPOFF = 50; sFOFF = 4; sC0 = 6; sCUR = 7; sTAG = 8; sTP = 10
LDS_Q = 131072; QSTR = 2176; LDS_TOTAL = LDS_Q + 8 * QSTR
WSK = 0x400000; WSF = 0x800000

def st_issue():
    e("s_memtime s[52:53]"); e("s_memrealtime s[54:55]")
def st_put(lane):
    e(f"v_writelane_b32 v{vST}, s52, {lane}"); e(f"v_writelane_b32 v{vST2}, s54, {lane}")
def st_init():
    if STAMP:
        e(f"v_mov_b32 v{vST}, 0"); e(f"v_mov_b32 v{vST2}, 0"); st_put(0)
def st_flush(slot_sgpr):
    if STAMP:
        e("s_waitcnt vmcnt(0)")
        st_issue(); e("s_waitcnt lgkmcnt(0)"); st_put(18)
        e(f"s_mul_i32 s56, s2, 12"); e(f"s_add_u32 s56, s56, s{slot_sgpr}"); e(f"s_lshl_b32 s56, s56, 9")
        e(f"v_lshlrev_b32 v{vT0}, 2, v{vLANE}")
        e(f"buffer_store_dword v{vST}, v{vT0}, s[{sWS}:{sWS+3}], s56 offen")
        e(f"buffer_store_dword v{vST2}, v{vT0}, s[{sWS}:{sWS+3}], s56 offen offset:256")

def unpack(raw, dst):
    e(f"v_mfma_f32_32x32x16_bf16 {vr(dst,16)}, {vr(UA,4)}, {vr(raw,4)}, 0")
    e(f"v_mfma_f32_32x32x16_bf16 {vr(dst,16)}, {vr(UA+4,4)}, {vr(raw+4,4)}, {vr(dst,16)}")
def scale_pack(unp, n, sc, pk):
    for j in range(n): e(f"v_pk_mul_f32 {vr(unp+2*j,2)}, {vr(unp+2*j,2)}, {vr(sc,2)} op_sel_hi:[1,0]")
    for j in range(n): e(f"v_cvt_pk_bf16_f32 v{pk+j}, v{unp+2*j}, v{unp+2*j+1}")
def zero(regs):
    for r in list(regs)[::2]: e(f"v_mov_b64 {vr(r,2)}, 0")
def qk(S, Q, C):
    return [f"v_mfma_f32_32x32x16_bf16 {vr(S,16)}, {vr(KF,4)}, {vr(Q,4)}, {vr(C,16)}",
            f"v_mfma_f32_32x32x16_bf16 {vr(S,16)}, {vr(KF+4,4)}, {vr(Q+4,4)}, {vr(S,16)}"]
def pv(O, VF, S): return f"v_smfmac_f32_32x32x32_bf16 {vr(O,16)}, {vr(VF,4)}, {vr(S,8)}, v{vIDX}"
def sm(Lr, S): return f"v_smfmac_f32_16x16x64_bf16 {vr(Lr,4)}, {vr(ONES,4)}, {vr(S,8)}, v{vIDX}"
def ex(S, a, b):
    for j in range(a, b): e(f"v_exp_f32 v{S+j}, v{S+j}")
def rdK(t):
    e(f"ds_read_b128 {vr(KF,4)}, v{vKR} offset:{t*2048}")
    e(f"ds_read_b128 {vr(KF+4,4)}, v{vKR} offset:{t*2048+1024}")
def rdV(VF, t, half):
    e(f"ds_read_b64_tr_b16 {vr(VF,2)}, v{vVR} offset:{t*2048+half*1024}")
    e(f"ds_read_b64_tr_b16 {vr(VF+2,2)}, v{vVR} offset:{t*2048+half*1024+256}")
def kt_stamp(kt):
    if STAMP == 3:
        e(f"s_lshl2_add_u32 m0, s{sSTG}, {32+kt}"); st_put("m0")

def slotA(kt):
    c(f"--- key tile {kt}, q tile A: exp(A), finish PV(B) of the previous tile, QK(B)")
    e(f"s_setprio {PRIO[kt]}")
    q = qk(SB, QB, CB)
    ex(SA, 0, 2); e(pv(OB, VF1, SB+8)); ex(SA, 2, 5); e(sm(LB, SB+8))
    rdV(VF1, kt, 1)
    ex(SA, 5, 7)
    e(q[0]); ex(SA, 7, 10); e(q[1])
    if kt == 3: e(f"v_add_u32 v{vKR}, s{sSLOT}, v{vKRl}")
    rdK((kt + 1) & 3)
    ex(SA, 10, 13)
    e("s_waitcnt lgkmcnt(4)")
    e(pv(OA, VF0, SA)); ex(SA, 13, 16); e(sm(LA, SA))
def slotB(kt, last=False):
    c(f"--- key tile {kt}, q tile B: exp(B), finish PV(A)" + (" (last tile)" if last else ", QK(A) of the next tile"))
    q = qk(SA, QA, CA)
    ex(SB, 0, 2)
    e("s_waitcnt lgkmcnt(2)")
    if STAMP == 3: st_issue()
    e(pv(OA, VF1, SA+8)); ex(SB, 2, 5); e(sm(LA, SA+8)); ex(SB, 5, 7)
    if not last or STAMP == 3: e("s_waitcnt lgkmcnt(0)")
    kt_stamp(kt)
    if last:
        ex(SB, 7, 10)
        e(pv(OB, VF0, SB))
        ex(SB, 10, 12)
        c("tile A is complete: hand its partial sums to the partner wave")
        for j in range(4): e(f"ds_write_b128 v{vRED}, {vr(OA+4*j,4)} offset:{1024*j}")
        e(f"ds_write_b32 v{vVRl}, v{LA} offset:4096")
        ex(SB, 12, 13)
        e(sm(LB, SB))
        ex(SB, 13, 16)
        return
    e(q[0]); ex(SB, 7, 10); e(q[1])
    if kt == 3: e(f"v_add_u32 v{vVR}, s{sSLOT}, v{vVRl}")
    ex(SB, 10, 13)
    e(pv(OB, VF0, SB))
    rdV(VF0, (kt + 1) & 3, 0)
    ex(SB, 13, 16); e(sm(LB, SB))

def ua_consts():
    c("bf16 -> f32 unpack on the matrix pipe: lane (m=l&31,h=l>>5) of A_i holds 1.0 at e=(m&3)+4*((m>>3)&1)")
    c("iff (m>>4)==i and ((m>>2)&1)==h, so D register 8i+e of a lane = element e of its own B operand i")
    e(f"v_bfe_u32 v{vT0}, v{vLANE}, 2, 1")
    e(f"v_lshrrev_b32 v{vT1}, 5, v{vLANE}")
    e(f"v_cmp_eq_u32 vcc, v{vT0}, v{vT1}")
    e(f"v_and_b32 v{vT0}, 1, v{vLANE}")
    e(f"v_lshlrev_b32 v{vT0}, 4, v{vT0}")
    e(f"v_mov_b32 v{vT1}, 0x3f80")
    e(f"v_lshlrev_b32 v{vT1}, v{vT0}, v{vT1}")
    e(f"v_cndmask_b32 v{vT1}, 0, v{vT1}, vcc")
    e(f"v_bfe_u32 v{vT0}, v{vLANE}, 1, 1")
    e(f"v_bfe_u32 v{vT2}, v{vLANE}, 3, 2")
    e(f"v_lshl_add_u32 v{vT0}, v{vT2}, 1, v{vT0}")
    for r in range(8):
        e(f"v_cmp_eq_u32 vcc, {r}, v{vT0}")
        e("s_nop 1")
        e(f"v_cndmask_b32 v{UA+r}, 0, v{vT1}, vcc")
def loadK(dst, soff):
    for j in range(4): e(f"buffer_load_dwordx4 {vr(dst+4*j,4)}, v{vG64}, s[{sK}:{sK+3}], s{soff} offen offset:{16*j}")
def loadV(soff):
    for j in range(4): e(f"buffer_load_dwordx4 v{vG16}, s[{sV}:{sV+3}], s{soff} offen offset:{1024*j} lds")
def goff(dst, idx_sgpr, add):
    e(f"s_add_u32 s{dst}, s{idx_sgpr}, {add}")
    e(f"s_lshl_b32 s{dst}, s{dst}, 14")
    e(f"s_add_u32 s{dst}, s{dst}, s{sC0}")
    e(f"s_and_b32 s{dst}, s{dst}, 0x1ffff")
    e(f"s_add_u32 s{dst}, s{dst}, s{sHEAD}")

e(f"{NAME}:")
for s, off in ((sQ, 0), (sK, 8), (sV, 16), (sTP, 24), (sO, 32), (sWS, 48)):
    e(f"s_load_dwordx2 s[{s}:{s+1}], s[0:1], {off}")
if STAMP: st_issue()
e("s_cmp_ge_u32 s2, 256")
e("s_cbranch_scc1 L_end")
c("head = (wg&7)*4 + ((wg>>3)&3), part = wg>>5 (the 8 parts of a head usually share an L2; speed only)")
e(f"v_lshrrev_b32 v{vT0}, 6, v0")
e(f"v_and_b32 v{vLANE}, 63, v0")
e(f"v_readfirstlane_b32 s{sWAVE}, v{vT0}")
e("s_and_b32 s3, s2, 7")
e("s_lshl_b32 s3, s3, 2")
e(f"s_bfe_u32 s{sTMP}, s2, 0x20003")
e(f"s_add_u32 s3, s3, s{sTMP}")
e(f"s_lshl_b32 s{sHEAD}, s3, 17")
e(f"s_lshr_b32 s{sPART}, s2, 5")
e(f"v_lshlrev_b32 v{vG16}, 4, v{vLANE}")
e(f"s_mov_b32 s{sQ+2}, 0x400000")
e(f"s_mov_b32 s{sQ+3}, 0x00020000")
for s in (sK, sV, sO): e(f"s_mov_b64 s[{s+2}:{s+3}], s[{sQ+2}:{sQ+3}]")
e(f"s_mov_b32 s{sWS+2}, 0x804000"); e(f"s_mov_b32 s{sWS+3}, 0x00020000")
e(f"s_cmp_ge_u32 s{sWAVE}, 4")
e("s_cbranch_scc1 L_consumer")
c("producer: first loads K(0) and K(1); parts 0,1 take the chunk they publish (2,3) ahead of their own K(1)")
e("s_setprio 3")
if opt("pf", 0):
    c("pull this kernel's code into L2 while the kernel arguments are still on their way")
    e(f"s_cmp_lg_u32 s{sWAVE}, 3")
    e("s_cbranch_scc1 L_nopf")
    e("s_getpc_b64 s[60:61]")
    e(f"v_min_u32 v{vT0}, 52, v{vLANE}")
    e(f"v_lshlrev_b32 v{vT0}, 7, v{vT0}")
    e(f"v_mov_b32 v{vTG2+1}, s61")
    e(f"v_add_co_u32 v{vTG2}, vcc, s60, v{vT0}")
    e("s_nop 1")
    e(f"v_addc_co_u32 v{vTG2+1}, vcc, 0, v{vTG2+1}, vcc")
    e(f"global_load_dword v{vFL}, {vr(vTG2,2)}, off offset:128")
    e("L_nopf:")
e(f"s_lshl_b32 s{sW}, s{sWAVE}, 12")
e(f"s_add_u32 s{sHEAD}, s{sHEAD}, s{sW}")
e(f"s_and_b32 s{sC0}, s3, 7"); e(f"s_lshl_b32 s{sC0}, s{sC0}, 14")
e(f"s_add_u32 s{sCUR}, s{sHEAD}, s{sC0}")
e(f"s_add_u32 s{sM0V}, s{sW}, 16384")
e(f"v_lshlrev_b32 v{vG64}, 6, v{vLANE}")
e(f"s_mov_b32 m0, s{sM0V}")
e(f"s_add_u32 s{sTMP2}, s{sC0}, 16384")
e(f"s_and_b32 s{sTMP2}, s{sTMP2}, 0x1ffff")
e(f"s_add_u32 s{sTMP2}, s{sTMP2}, s{sHEAD}")
goff(sPOFF, sPART, 2)
e(f"s_cmp_lt_u32 s{sPART}, 2")
e(f"s_cselect_b32 s{sTMP}, s{sPOFF}, s{sTMP2}")
e("s_waitcnt lgkmcnt(0)")
loadK(RAW, sCUR); loadK(RAW2, sTMP)
e("s_branch L_producer")

c("===== consumer waves 4..11 =====")
e("L_consumer:")
e(f"s_sub_u32 s{sWAVE}, s{sWAVE}, 4")
e(f"s_lshl_b32 s{sW}, s{sWAVE}, 11")
e(f"s_lshl_b32 s{sTMP}, s{sPART}, 14")
e(f"s_add_u32 s{sQOFF}, s{sHEAD}, s{sTMP}")
e(f"s_add_u32 s{sQOFF}, s{sQOFF}, s{sW}")
e(f"s_lshr_b32 s{sTMP2}, s3, 1")
e(f"s_lshl_b32 s{sTMP2}, s{sTMP2}, 2")
e("s_waitcnt lgkmcnt(0)")
e(f"buffer_load_dwordx4 {vr(SA,4)}, v{vG16}, s[{sQ}:{sQ+3}], s{sQOFF} offen {QFLAGS}")
e(f"buffer_load_dwordx4 {vr(SA+4,4)}, v{vG16}, s[{sQ}:{sQ+3}], s{sQOFF} offen offset:1024 {QFLAGS}")
e(f"s_load_dword s{sT}, s[{sTP}:{sTP+1}], s{sTMP2}")
st_init()
ua_consts()
c("K' read: group*8192 + lane*16")
e(f"s_and_b32 s{sTMP}, s{sWAVE}, 4")
e(f"s_lshl_b32 s{sTMP}, s{sTMP}, 11")
e(f"v_add_u32 v{vKRl}, s{sTMP}, v{vG16}")
c("V transposed read: (8*(l>>5) + ((l>>2)&3))*64 + ((l>>4)&1)*32 + (l&3)*8 + 16384 + group*8192")
e(f"v_lshrrev_b32 v{vT0}, 5, v{vLANE}")
e(f"v_lshlrev_b32 v{vT0}, 9, v{vT0}")
e(f"v_bfe_u32 v{vT1}, v{vLANE}, 2, 2")
e(f"v_lshl_add_u32 v{vT0}, v{vT1}, 6, v{vT0}")
e(f"v_bfe_u32 v{vT1}, v{vLANE}, 4, 1")
e(f"v_lshl_add_u32 v{vT0}, v{vT1}, 5, v{vT0}")
e(f"v_and_b32 v{vT1}, 3, v{vLANE}")
e(f"v_lshl_add_u32 v{vT0}, v{vT1}, 3, v{vT0}")
e(f"s_add_u32 s{sTMP}, s{sTMP}, 16384")
e(f"v_add_u32 v{vVRl}, s{sTMP}, v{vT0}")
e(f"v_mov_b32 v{vKR}, v{vKRl}")
e(f"v_mov_b32 v{vVR}, v{vVRl}")
c("sparse index: elements 1 and 3 of every group of four = the high halves of two f32 registers")
e(f"v_mov_b32 v{vIDX}, 0xdddddddd")
c("Q' write: LDS_Q + w*QSTR + (l&3)*544 + (l>>2)*16 ; read: LDS_Q + tile*QSTR + (l>>5)*544 + (l&31)*16")
e(f"s_mul_i32 s{sTMP}, s{sWAVE}, {QSTR}")
e(f"s_add_u32 s{sTMP}, s{sTMP}, {LDS_Q}")
e(f"v_mul_u32_u24 v{vT0}, 544, v{vT1}")
e(f"v_lshrrev_b32 v{vT1}, 2, v{vLANE}")
e(f"v_lshl_add_u32 v{vT0}, v{vT1}, 4, v{vT0}")
e(f"v_add_u32 v{vQW}, s{sTMP}, v{vT0}")
e(f"v_lshrrev_b32 v{vT1}, 5, v{vLANE}")
e(f"v_lshl_add_u32 v{vT0}, v{vT1}, 5, v{vG16}")
c("q tile B = own tile w, q tile A = the partner's tile w^4")
e(f"v_add_u32 v{vQR}, s{sTMP}, v{vT0}")
e(f"s_xor_b32 s{sTMP2}, s{sWAVE}, 4")
e(f"s_mul_i32 s{sTMP2}, s{sTMP2}, {QSTR}")
e(f"s_add_u32 s{sTMP2}, s{sTMP2}, {LDS_Q}")
e(f"v_add_u32 v{vT3}, s{sTMP2}, v{vT0}")
c("row-sum selector: row 0 sums queries 0..15, row 4 queries 16..31 (result in lanes 0..31)")
e(f"v_and_b32 v{vT0}, 15, v{vLANE}")
e(f"v_mov_b32 v{vT1}, 0x3f803f80")
e(f"v_cmp_eq_u32 vcc, 0, v{vT0}")
e("s_nop 1")
e(f"v_cndmask_b32 v{ONES}, 0, v{vT1}, vcc")
e(f"v_cmp_eq_u32 vcc, 4, v{vT0}")
e(f"v_mov_b32 v{ONES+1}, v{ONES}")
e("s_nop 0")
e(f"v_cndmask_b32 v{ONES+2}, 0, v{vT1}, vcc")
e(f"v_mov_b32 v{ONES+3}, v{ONES+2}")
c("exchange and output addresses")
e(f"s_lshl_b32 s{sTMP}, s{sWAVE}, 13")
e(f"v_add_u32 v{vRD}, s{sTMP}, v{vG16}")
e(f"v_xor_b32 v{vRED}, 0x8000, v{vRD}")
e(f"v_and_b32 v{vT0}, 31, v{vLANE}")
e(f"v_lshlrev_b32 v{vT0}, 6, v{vT0}")
e(f"v_lshrrev_b32 v{vT1}, 5, v{vLANE}")
e(f"v_lshl_add_u32 v{vROW}, v{vT1}, 4, v{vT0}")
c("output store: lane -> (row l&15, 16-byte chunk 2*((l>>4)&1) + (l>>5))")
e(f"v_and_b32 v{vT0}, 15, v{vLANE}")
e(f"v_lshlrev_b32 v{vT0}, 6, v{vT0}")
e(f"v_lshl_add_u32 v{vT0}, v{vT1}, 4, v{vT0}")
e(f"v_bfe_u32 v{vT1}, v{vLANE}, 4, 1")
e(f"v_lshl_add_u32 v{vOUT}, v{vT1}, 5, v{vT0}")
zero(list(range(OA, OA+16)) + list(range(OB, OB+16)) + list(range(LA, LA+4)) + list(range(LB, LB+4)) + list(range(VF1, VF1+4)))
e("s_waitcnt lgkmcnt(0)")
c("t[head] (bf16) -> f32; C = -|t|*log2e")
e(f"s_lshl_b32 s{sTMP}, s{sT}, 16")
e(f"s_and_b32 s{sTMP2}, s{sT}, 0xffff0000")
e("s_bitcmp1_b32 s3, 0")
e(f"s_cselect_b32 s{sT}, s{sTMP2}, s{sTMP}")
e(f"v_mov_b32 v{vTL}, 0x3fb8aa3b")
e(f"v_mul_f32 v{vTL}, s{sT}, v{vTL}")
e(f"v_or_b32 v{CA}, 0x80000000, v{vTL}")
e(f"v_mov_b32 v{CA+1}, v{CA}")
for j in range(2, 32, 2): e(f"v_mov_b64 {vr(CA+j,2)}, {vr(CA,2)}")
zero(range(SB+8, SB+16))
e(f"s_mov_b32 s{sSTG}, 0")
e(f"s_mov_b32 s{sSLOT}, 32768")
e(f"s_and_b32 s{sT}, s{sT}, 0x7fffffff")
c("Q' = q * t*log2e / (|q| + 1e-6): rows 16j + (l>>2), 8 elements per lane and j")
QU = QA
e("s_waitcnt vmcnt(0)")
for j in range(4):
    e(f"v_dot2_f32_bf16 v{vT0}, v{SA+j}, v{SA+j}, " + ("0" if j == 0 else f"v{vT0}"))
    e(f"v_dot2_f32_bf16 v{vT1}, v{SA+4+j}, v{SA+4+j}, " + ("0" if j == 0 else f"v{vT1}"))
unpack(SA, QU)
for qp in ("[1,0,3,2]", "[2,3,0,1]"):
    e("s_nop 0")
    e(f"v_add_f32_dpp v{vT0}, v{vT0}, v{vT0} quad_perm:{qp} row_mask:0xf bank_mask:0xf")
    e(f"v_add_f32_dpp v{vT1}, v{vT1}, v{vT1} quad_perm:{qp} row_mask:0xf bank_mask:0xf")
e(f"v_sqrt_f32 v{vT0}, v{vT0}")
e(f"v_sqrt_f32 v{vT1}, v{vT1}")
e(f"v_add_f32 v{vT0}, 0x358637bd, v{vT0}")
e(f"v_add_f32 v{vT1}, 0x358637bd, v{vT1}")
e(f"v_rcp_f32 v{vT0}, v{vT0}")
e(f"v_rcp_f32 v{vT1}, v{vT1}")
e(f"v_mul_f32 v{vT2}, v{vT0}, v{vTL}")
e(f"v_mul_f32 v{vT4}, v{vT1}, v{vTL}")
scale_pack(QU, 4, vT2, SA+8)
e(f"ds_write_b128 v{vQW}, {vr(SA+8,4)}")
scale_pack(QU+8, 4, vT4, SA+12)
e(f"ds_write_b128 v{vQW}, {vr(SA+12,4)} offset:256")
c("the bound |t|*log2e may stand in for the row maximum only while |t| <= 16 (NaN fails the test too)")
e(f"s_cmp_le_u32 s{sT}, 0x41800000")
e("s_waitcnt lgkmcnt(0)")
e("s_barrier")
e(f"ds_read_b128 {vr(QA,4)}, v{vT3}")
e(f"ds_read_b128 {vr(QA+4,4)}, v{vT3} offset:1088")
e("s_cbranch_scc0 L_maxpass")
e("L_start:")
rdK(0)
e(f"ds_read_b128 {vr(QB,4)}, v{vQR}")
e(f"ds_read_b128 {vr(QB+4,4)}, v{vQR} offset:1088")
rdV(VF0, 0, 0)
e("s_waitcnt lgkmcnt(4)")
for s in qk(SA, QA, CA): e(s)
e("s_waitcnt lgkmcnt(2)")
e("s_nop 7")
e("s_nop 2")
e(".p2align 6")
e("L_stage:")
for kt in range(4):
    slotA(kt)
    if kt == 3: e("s_cbranch_scc1 L_last")
    slotB(kt)
    if kt == 2:
        c("the next ring slot is complete once the producers are here")
        e(f"s_cmp_eq_u32 s{sSTG}, 7")
        e("s_barrier")
e(f"s_add_u32 s{sSTG}, s{sSTG}, 1")
e(f"s_add_u32 s{sSLOT}, s{sSLOT}, 32768")
e(f"s_and_b32 s{sSLOT}, s{sSLOT}, 0x1ffff")
e("s_branch L_stage")
e("L_last:")
e("s_setprio 0")
c("row-sum exchange addresses (4-byte lane stride); the ring bases are dead now")
e(f"s_lshl_b32 s{sTMP}, s{sWAVE}, 13")
e(f"v_lshl_add_u32 v{vKRl}, v{vLANE}, 2, s{sTMP}")
e(f"v_xor_b32 v{vVRl}, 0x8000, v{vKRl}")
slotB(3, last=True)
e("s_nop 0")
e("s_waitcnt lgkmcnt(0)")
e(pv(OB, VF1, SB+8))
e(sm(LB, SB+8))
e("s_barrier")
e(f"ds_read_b32 v{LA}, v{vKRl} offset:4096")
for j in range(4): e(f"ds_read_b128 {vr(OA+4*j,4)}, v{vRD} offset:{1024*j}")
e("s_nop 3")
e("s_waitcnt lgkmcnt(4)")
e(f"v_add_f32 v{LA}, v{LA}, v{LB}")
e(f"v_rcp_f32 v{vT2}, v{LA}")
e("s_nop 0")
e(f"v_mov_b32 v{vT1}, v{vT2}")
PKo = SA
for j in range(4):
    e(f"s_waitcnt lgkmcnt({3-j})")
    for i in range(2):
        r = 4*j + 2*i
        e(f"v_pk_add_f32 {vr(OA+r,2)}, {vr(OA+r,2)}, {vr(OB+r,2)}")
    if j == 0: e(f"v_permlane32_swap_b32 v{vT2}, v{vT1}")
for i in range(8):
    e(f"v_pk_mul_f32 {vr(OA+2*i,2)}, {vr(OA+2*i,2)}, {vr(vT2,2)} op_sel_hi:[1,0]")
for i in range(8):
    e(f"v_cvt_pk_bf16_f32 v{PKo+i}, v{OA+2*i}, v{OA+2*i+1}")
    if i == 5:
        e(f"v_permlane32_swap_b32 v{PKo+0}, v{PKo+2}")
        e(f"v_permlane32_swap_b32 v{PKo+1}, v{PKo+3}")
e("s_nop 1")
e(f"v_permlane32_swap_b32 v{PKo+4}, v{PKo+6}")
e(f"v_permlane32_swap_b32 v{PKo+5}, v{PKo+7}")
e("s_nop 1")
for j in range(4): e(f"v_permlane16_swap_b32 v{PKo+j}, v{PKo+4+j}")
e("s_nop 1")
e(f"buffer_store_dwordx4 {vr(PKo,4)}, v{vOUT}, s[{sO}:{sO+3}], s{sQOFF} offen {STFLAGS}")
e(f"buffer_store_dwordx4 {vr(PKo+4,4)}, v{vOUT}, s[{sO}:{sO+3}], s{sQOFF} offen offset:1024 {STFLAGS}")
st_flush(sWAVE)
e("L_end:")
e("s_endpgm")

c("===== producer waves 0..3: K tiles 2w,2w+1 and V tiles 2w,2w+1 of every chunk (lane = key row) =====")
def pnorm(raw):
    acc = [vT0, vT4, vT1, vT4+1]
    for i in range(4):
        for ch in range(4):
            j = 4*ch + i
            e(f"v_dot2_f32_bf16 v{acc[ch]}, v{raw+j}, v{raw+j}, " + ("0" if i == 0 else f"v{acc[ch]}"))
    unpack(raw, UNP); unpack(raw+8, UNP+16)
    e(f"v_add_f32 v{vT0}, v{vT0}, v{vT1}")
    e(f"v_add_f32 v{vT4}, v{vT4}, v{vT4+1}")
    e(f"v_add_f32 v{vT0}, v{vT0}, v{vT4}")
    e(f"v_sqrt_f32 v{vT0}, v{vT0}"); e("s_nop 0")
    e(f"v_add_f32 v{vT0}, 0x358637bd, v{vT0}")
    e(f"v_rcp_f32 v{vT2}, v{vT0}")
    e("s_nop 5")
    scale_pack(UNP, 16, vT2, PK)
def wrK(addr, off=0):
    for j in range(4): e(f"ds_write_b128 v{addr}, {vr(PK+4*j,4)} offset:{off+512*j}")
def setm0(base_sgpr, add): e(f"s_add_u32 m0, s{base_sgpr}, {add}")
def poll():
    e(f"buffer_load_dword v{vFL}, v{vFA}, s[{sWS}:{sWS+3}], s{sFOFF} offen sc1")
    e("s_waitcnt vmcnt(0)")
    e(f"v_cmp_eq_u32 vcc, v{vFL}, v{vTAG}")
    e("s_nop 0")
    e(f"s_lshr_b32 s{sFLG}, vcc_lo, 2")
    e(f"s_lshr_b32 s{sTMP}, vcc_lo, 3")
    e(f"s_and_b32 s{sFLG}, s{sFLG}, s{sTMP}")
def publish():
    e(f"s_lshl_b32 s{sTMP}, s{sPART}, 14")
    e(f"s_add_u32 s{sTMP}, s{sTMP}, s{sWOFF}")
    for j in range(4): e(f"buffer_store_dwordx4 {vr(PK+4*j,4)}, v{vPUB}, s[{sWS}:{sWS+3}], s{sTMP} offen offset:{512*j} sc1")
def raise_flag():
    e(f"s_lshl_b32 s{sTMP}, s{sPART}, 3")
    e(f"s_add_u32 s{sTMP}, s{sTMP}, s{sFOFF}")
    e("s_mov_b64 exec, 1")
    e(f"buffer_store_dwordx2 {vr(vTG2,2)}, v{vFA}, s[{sWS}:{sWS+3}], s{sTMP} offen offset:8 sc1")
    e("s_mov_b64 exec, -1")
e("L_producer:")
st_init()
c("hand-off line of (head, wave): dwords 0,1 = generation G, dwords 2+2p,3+2p = flag of part p")
e(f"s_lshl_b32 s{sFOFF}, s3, 2")
e(f"s_add_u32 s{sFOFF}, s{sFOFF}, s{sWAVE}")
e(f"s_lshl_b32 s{sFOFF}, s{sFOFF}, 7")
e(f"s_add_u32 s{sFOFF}, s{sFOFF}, {WSF}")
e(f"v_min_u32 v{vFA}, 17, v{vLANE}")
e(f"v_lshlrev_b32 v{vFA}, 2, v{vFA}")
e(f"s_add_u32 s{sWOFF}, s{sHEAD}, {WSK}")
ua_consts()
c("K' fragment address: tile (l>>5)*2048 + key*16 (+ 16-byte chunk c*512)")
e(f"v_and_b32 v{vT0}, 31, v{vLANE}")
e(f"v_lshlrev_b32 v{vT0}, 4, v{vT0}")
e(f"v_lshrrev_b32 v{vT1}, 5, v{vLANE}")
e(f"v_lshl_add_u32 v{vPUB}, v{vT1}, 11, v{vT0}")
e(f"v_add_u32 v{vKWl}, s{sW}, v{vPUB}")
e(f"s_mov_b32 s{sFLG}, 0")
e(f"s_mov_b32 s{sPEND}, 0")
e(f"s_mov_b32 s{sSTG}, 0")
c("parts 2..5 publish chunk part+2 in iteration part-2")
e(f"s_sub_u32 s{sIP}, s{sPART}, 2")
e(f"s_cmp_ge_u32 s{sPART}, 6")
e(f"s_cselect_b32 s{sIP}, 100, s{sIP}")
c("--- K(0), then K(1) (or the chunk to publish)")
e("s_waitcnt vmcnt(4)")
loadV(sCUR)
e(f"buffer_load_dword v{vFL}, v{vFA}, s[{sWS}:{sWS+3}], s{sFOFF} offen sc1")
pnorm(RAW); wrK(vKWl)
e("s_waitcnt vmcnt(5) lgkmcnt(0)")
pnorm(RAW2)
e(f"s_cmp_ge_u32 s{sPART}, 2")
e("s_cbranch_scc1 L_k1")
publish()
loadK(RAW, sTMP2)
e("s_waitcnt vmcnt(9)")
e("s_branch L_k1d")
e("L_k1:")
wrK(vKWl, 32768)
e("s_waitcnt vmcnt(1) lgkmcnt(0)")
e("L_k1d:")
e("s_barrier")
c("--- V(1), V(2); flags of parts 0,1,6,7; K(1) of parts 0,1; part 2 fetches its raw chunk")
setm0(sM0V, 32768)
goff(sGOFF, sSTG, 2)
loadV(sTMP2)
setm0(sM0V, 65536)
e(f"s_mov_b32 s{sSLOT}, 65536")
loadV(sGOFF)
e("s_waitcnt vmcnt(8)")
c("tag of this launch: T = G + 0x9e3779b97f4a7c15")
e(f"v_readlane_b32 s{sTAG}, v{vFL}, 0")
e(f"v_readlane_b32 s{sTAG+1}, v{vFL}, 1")
e(f"v_and_b32 v{vT0}, 1, v{vLANE}")
e(f"s_add_u32 s{sTAG}, s{sTAG}, 0x7f4a7c15")
e(f"s_addc_u32 s{sTAG+1}, s{sTAG+1}, 0x9e3779b9")
e(f"v_cmp_eq_u32 vcc, 1, v{vT0}")
e(f"v_mov_b32 v{vTG2}, s{sTAG}")
e(f"v_mov_b32 v{vTG2+1}, s{sTAG+1}")
e(f"v_cndmask_b32 v{vTAG}, v{vTG2}, v{vTG2+1}, vcc")
e(f"s_cmp_lt_u32 s{sIP}, 6")
e("s_cbranch_scc1 L_i1")
raise_flag()
e(f"s_cmp_ge_u32 s{sPART}, 2")
e("s_cbranch_scc1 L_i2")
pnorm(RAW); wrK(vKWl, 32768)
e("L_i2:")
e("s_waitcnt vmcnt(5) lgkmcnt(0)")
e("s_branch L_i3")
e("L_i1:")
e("s_waitcnt vmcnt(4)")
e(f"s_cmp_lg_u32 s{sIP}, 0")
e("s_cbranch_scc1 L_i3")
loadK(RAW3, sPOFF)
e("L_i3:")
e("s_barrier")
c("--- iteration i = 0..5: K'(i+2), V(i+3)")
e("L_ploop:")
e("s_waitcnt vmcnt(0)")
e(f"s_cmp_eq_u32 s{sPEND}, 0")
e("s_cbranch_scc1 L_nopend")
c("the stores of the published chunk are acknowledged: raise this wave's flag")
raise_flag()
e(f"s_mov_b32 s{sPEND}, 0")
e("L_nopend:")
c("is chunk i+2 published (by part i)?  bounded polling, else normalise locally")
e(f"s_mov_b32 s{sCNT}, {NPOLL}")
e("L_poll:")
e(f"s_lshl_b32 s{sTMP}, s{sSTG}, 1")
e(f"s_bitcmp1_b32 s{sFLG}, s{sTMP}")
e("s_cbranch_scc1 L_ready")
e(f"s_cmp_eq_u32 s{sCNT}, 0")
e("s_cbranch_scc1 L_local")
e(f"s_sub_u32 s{sCNT}, s{sCNT}, 1")
poll()
e("s_branch L_poll")
e("L_local:")
loadK(RAW, sGOFF)
e(f"v_add_u32 v{vKW}, s{sSLOT}, v{vKWl}")
e("s_waitcnt vmcnt(0)")
pnorm(RAW)
wrK(vKW)
e("s_waitcnt lgkmcnt(0)")
e("s_branch L_have")
e("L_ready:")
e(f"s_lshl_b32 s{sTMP}, s{sSTG}, 14")
e(f"s_add_u32 s{sTMP}, s{sTMP}, s{sWOFF}")
setm0(sW, f"s{sSLOT}")
e("s_nop 0")
for j in range(4): e(f"buffer_load_dwordx4 v{vG16}, s[{sWS}:{sWS+3}], s{sTMP} offen offset:{1024*j} sc1 lds")
e("L_have:")
e(f"s_cmp_eq_u32 s{sSTG}, 5")
e("s_cbranch_scc1 L_plast")
e(f"s_add_u32 s{sSLOT}, s{sSLOT}, 32768")
e(f"s_and_b32 s{sSLOT}, s{sSLOT}, 0x1ffff")
setm0(sM0V, f"s{sSLOT}")
goff(sGOFF, sSTG, 3)
loadV(sGOFF)
e(f"s_cmp_eq_u32 s{sSTG}, s{sIP}")
e("s_cbranch_scc1 L_pub")
e(f"s_add_u32 s{sSTG}, s{sSTG}, 1")
e(f"s_cmp_eq_u32 s{sSTG}, s{sIP}")
e("s_cbranch_scc1 L_raw")
e("s_waitcnt vmcnt(4)")
e("L_pbar:")
e("s_barrier")
e("s_branch L_ploop")
e("L_pub:")
pnorm(RAW3); publish()
e(f"s_mov_b32 s{sPEND}, 1")
e(f"s_add_u32 s{sSTG}, s{sSTG}, 1")
e("s_waitcnt vmcnt(8)")
e("s_branch L_pbar")
e("L_raw:")
loadK(RAW3, sPOFF)
e("s_waitcnt vmcnt(8)")
e("s_branch L_pbar")
e("L_plast:")
e("s_waitcnt vmcnt(0)")
e("s_barrier")
c("part 7: once every part has raised its flag (so has read G), advance the generation for the next launch")
e(f"s_cmp_lg_u32 s{sPART}, 7")
e("s_cbranch_scc1 L_pend")
e("L_fin:")
e(f"s_and_b32 s{sTMP}, s{sFLG}, 0x5555")
e(f"s_cmp_eq_u32 s{sTMP}, 0x5555")
e("s_cbranch_scc1 L_bump")
poll()
e("s_branch L_fin")
e("L_bump:")
e("s_mov_b64 exec, 1")
e(f"buffer_store_dwordx2 {vr(vTG2,2)}, v{vFA}, s[{sWS}:{sWS+3}], s{sFOFF} offen sc1")
e("s_mov_b64 exec, -1")
e("L_pend:")
if STAMP:
    e(f"s_add_u32 s{sTMP}, s{sWAVE}, 8")
    st_flush(sTMP)
e("s_endpgm")

c("===== |t| > 16 (or NaN): true row maximum of the logits over all 2048 keys, then the main loop with C = -max =====")
e("L_maxpass:")
e(f"ds_read_b128 {vr(QB,4)}, v{vQR}")
e(f"ds_read_b128 {vr(QB+4,4)}, v{vQR} offset:1088")
c("lane (key=l&31,h=l>>5): fragment i = bytes key*64 + i*32 + h*16")
e(f"s_mov_b32 s{sTMP}, s{sHEAD}")
e(f"s_mov_b32 s{sTMP2}, 0")
e(f"v_mov_b32 v{vT3}, 0xff800000")
e(f"v_mov_b32 v{vT4}, 0xff800000")
e("s_waitcnt lgkmcnt(0)")
e("L_maxloop:")
e(f"buffer_load_dwordx4 {vr(SB,4)}, v{vROW}, s[{sK}:{sK+3}], s{sTMP} offen")
e(f"buffer_load_dwordx4 {vr(SB+4,4)}, v{vROW}, s[{sK}:{sK+3}], s{sTMP} offen offset:32")
e("s_waitcnt vmcnt(0)")
unpack(SB, OA)
for j in range(4):
    e(f"v_dot2_f32_bf16 v{vT0}, v{SB+j}, v{SB+j}, " + ("0" if j == 0 else f"v{vT0}"))
    e(f"v_dot2_f32_bf16 v{vT1}, v{SB+4+j}, v{SB+4+j}, " + ("0" if j == 0 else f"v{vT1}"))
e("s_nop 2")
e(f"v_add_f32 v{vT0}, v{vT0}, v{vT1}")
e(f"v_mov_b32 v{vT1}, v{vT0}"); e("s_nop 1")
e(f"v_permlane32_swap_b32 v{vT0}, v{vT1}"); e("s_nop 1")
e(f"v_add_f32 v{vT0}, v{vT0}, v{vT1}")
e(f"v_sqrt_f32 v{vT0}, v{vT0}"); e("s_nop 0")
e(f"v_add_f32 v{vT0}, 0x358637bd, v{vT0}")
e(f"v_rcp_f32 v{vT2}, v{vT0}"); e("s_nop 0")
scale_pack(OA, 8, vT2, OB)
e("s_nop 1")
for S, Q in ((CA, QA), (CB, QB)):
    e(f"v_mfma_f32_32x32x16_bf16 {vr(S,16)}, {vr(OB,4)}, {vr(Q,4)}, 0")
    e(f"v_mfma_f32_32x32x16_bf16 {vr(S,16)}, {vr(OB+4,4)}, {vr(Q+4,4)}, {vr(S,16)}")
e("s_nop 15")
for S, M in ((CA, vT3), (CB, vT4)):
    for j in range(8): e(f"v_max3_f32 v{M}, v{S+2*j}, v{S+2*j+1}, v{M}")
e(f"s_add_u32 s{sTMP}, s{sTMP}, 2048")
e(f"s_add_u32 s{sTMP2}, s{sTMP2}, 1")
e(f"s_cmp_lt_u32 s{sTMP2}, 64")
e("s_cbranch_scc1 L_maxloop")
for C, M in ((CA, vT3), (CB, vT4)):
    e(f"v_mov_b32 v{vT0}, v{M}")
    e("s_nop 1")
    e(f"v_permlane32_swap_b32 v{vT0}, v{M}")
    e("s_nop 1")
    e(f"v_max_f32 v{M}, v{M}, v{vT0}")
    e(f"v_xor_b32 v{C}, 0x80000000, v{M}")
    for j in range(1, 16): e(f"v_mov_b32 v{C+j}, v{C}")
zero(list(range(OA, OA+16)) + list(range(OB, OB+16)))
e("s_branch L_start")

nv = max(136, (NV + 7) // 8 * 8)
src = HEADER + f"; @launch grid=(256,1,1) block=(768,1,1) lds={LDS_TOTAL}\n" + DOC + f""".amdgcn_target "amdgcn-amd-amdhsa--gfx950"
.text
.globl {NAME}
.p2align 8
.type {NAME},@function
""" + "\n".join(L) + f"""
.section .rodata,"a"
.p2align 6
.amdhsa_kernel {NAME}
  .amdhsa_next_free_vgpr {nv}
  .amdhsa_next_free_sgpr 64
  .amdhsa_accum_offset {nv}
  .amdhsa_group_segment_fixed_size 0
  .amdhsa_kernarg_size 56
  .amdhsa_user_sgpr_count 2
  .amdhsa_user_sgpr_kernarg_segment_ptr 1
  .amdhsa_system_sgpr_workgroup_id_x 1
.end_amdhsa_kernel
"""
open(sys.argv[1], "w").write(src)
print("vgprs", NV, "->", nv)
```

```python
import sys
OPT = dict(a.split("=") for a in sys.argv[2:] if "=" in a)
def opt(name, default): return type(default)(OPT.get(name, default))
STAMP = opt("stamp", 0)
NPOLL = opt("npoll", 8)
PRIO = OPT.get("prio", "2103")
STFLAGS = "nt sc1"; QFLAGS = OPT.get("qfl", "nt").replace("none", "")
DEFER = opt("defer", 0)
V0AT = opt("v0at", 0)

HEADER = open("standalone__qk_norm__prompt.s.ref").read().split("; Override launch")[0]
NAME = "standalone__qk_norm__prompt_kernel"
DOC = """;
;
"""
L = []
def e(s=""): L.append("    " + s.rstrip() if s and not s.endswith(":") else s)
def c(s): L.append("    ; " + s)

class VA:
    def __init__(s, n=1): s.n = n
    def get(s, k=1, al=1):
        s.n = (s.n + al - 1) // al * al
        b = s.n; s.n += k; return b
def vr(b, n): return f"v[{b}:{b+n-1}]"
va = VA()
vLANE = va.get(); vG16 = va.get(); vT0 = va.get(); vT1 = va.get(); vT3 = va.get(); vT2 = va.get(2, 2); vT4 = va.get(2, 2)
vST = va.get(); vST2 = va.get()
UA = va.get(8, 4)
base = va.n
vKR = va.get(); vVR = va.get(); vKRl = va.get(); vVRl = va.get(); vIDX = va.get(); vTL = va.get(); vRED = va.get(); vROW = va.get()
vQR = va.get(); vQW = va.get(); vOUT = va.get(); vRD = va.get()
KF = UA
ONES = va.get(4, 4)
QA = va.get(8, 4); QB = va.get(8, 4)
VF0 = va.get(4, 4); VF1 = va.get(4, 4)
LA = va.get(4, 4); LB = va.get(4, 4)
SA = va.get(16, 4); SB = va.get(16, 4)
OA = va.get(16, 4); OB = va.get(16, 4)
CA = va.get(16, 4); CB = va.get(16, 4)
NV = va.n
vp = VA(base)
vG64 = vp.get(); vKWl = vp.get(); vKW = vp.get(); vFA = vp.get(); vFL = vp.get(); vTAG = vp.get(); vTG2 = vp.get(2, 2); vPUB = vp.get()
RAW = vp.get(16, 4); RAW2 = vp.get(16, 4); RAW3 = vp.get(16, 4); UNP = vp.get(32, 4); PK = vp.get(16, 4)
assert vp.n <= NV and NV <= 168

sQ, sK, sV, sO, sWS = 16, 20, 24, 28, 12
sHEAD = 32; sPART = 33; sWAVE = 34; sSTG = 35; sT = 36; sGOFF = 37; sSLOT = 38; sCNT = 39
sTMP = 40; sTMP2 = 41; sW = 42; sM0V = 44; sQOFF = 45; sFLG = 46; sWOFF = 47
sIP = 48; sPEND = 49; sPOFF = 50; sFOFF = 4; sC0 = 6; sCUR = 7; sTAG = 8; sTP = 10
LDS_Q = 131072; QSTR = 2176; LDS_TOTAL = LDS_Q + 8 * QSTR
WSK = 0x400000; WSF = 0x800000

def st_issue():
    e("s_memtime s[52:53]"); e("s_memrealtime s[54:55]")
def st_put(lane):
    e(f"v_writelane_b32 v{vST}, s52, {lane}"); e(f"v_writelane_b32 v{vST2}, s54, {lane}")
def st_init():
    if STAMP:
        e(f"v_mov_b32 v{vST}, 0"); e(f"v_mov_b32 v{vST2}, 0"); st_put(0)
def st_flush(slot_sgpr):
    if STAMP:
        e("s_waitcnt vmcnt(0)")
        st_issue(); e("s_waitcnt lgkmcnt(0)"); st_put(18)
        e(f"s_mul_i32 s56, s2, 12"); e(f"s_add_u32 s56, s56, s{slot_sgpr}"); e(f"s_lshl_b32 s56, s56, 9")
        e(f"v_lshlrev_b32 v{vT0}, 2, v{vLANE}")
        e(f"buffer_store_dword v{vST}, v{vT0}, s[{sWS}:{sWS+3}], s56 offen")
        e(f"buffer_store_dword v{vST2}, v{vT0}, s[{sWS}:{sWS+3}], s56 offen offset:256")

def mark(p):
    if opt("marks", 0): c(f"@amp {p}")
def unpack(raw, dst):
    e(f"v_mfma_f32_32x32x16_bf16 {vr(dst,16)}, {vr(UA,4)}, {vr(raw,4)}, 0")
    e(f"v_mfma_f32_32x32x16_bf16 {vr(dst,16)}, {vr(UA+4,4)}, {vr(raw+4,4)}, {vr(dst,16)}")
def scale_pack(unp, n, sc, pk):
    for j in range(n): e(f"v_pk_mul_f32 {vr(unp+2*j,2)}, {vr(unp+2*j,2)}, {vr(sc,2)} op_sel_hi:[1,0]")
    for j in range(n): e(f"v_cvt_pk_bf16_f32 v{pk+j}, v{unp+2*j}, v{unp+2*j+1}")
def zero(regs):
    for r in list(regs)[::2]: e(f"v_mov_b64 {vr(r,2)}, 0")
def qk(S, Q, C):
    return [f"v_mfma_f32_32x32x16_bf16 {vr(S,16)}, {vr(KF,4)}, {vr(Q,4)}, {vr(C,16)}",
            f"v_mfma_f32_32x32x16_bf16 {vr(S,16)}, {vr(KF+4,4)}, {vr(Q+4,4)}, {vr(S,16)}"]
def pv(O, VF, S): return f"v_smfmac_f32_32x32x32_bf16 {vr(O,16)}, {vr(VF,4)}, {vr(S,8)}, v{vIDX}"
def sm(Lr, S): return f"v_smfmac_f32_16x16x64_bf16 {vr(Lr,4)}, {vr(ONES,4)}, {vr(S,8)}, v{vIDX}"
def ex(S, a, b):
    for j in range(a, b): e(f"v_exp_f32 v{S+j}, v{S+j}")
def rdK(t):
    e(f"ds_read_b128 {vr(KF,4)}, v{vKR} offset:{t*2048}")
    e(f"ds_read_b128 {vr(KF+4,4)}, v{vKR} offset:{t*2048+1024}")
def rdV(VF, t, half):
    e(f"ds_read_b64_tr_b16 {vr(VF,2)}, v{vVR} offset:{t*2048+half*1024}")
    e(f"ds_read_b64_tr_b16 {vr(VF+2,2)}, v{vVR} offset:{t*2048+half*1024+256}")
def kt_stamp(kt):
    if STAMP == 3:
        e(f"s_lshl2_add_u32 m0, s{sSTG}, {32+kt}"); st_put("m0")

def slotA(kt):
    c(f"--- key tile {kt}, q tile A: exp(A), finish PV(B) of the previous tile, QK(B)")
    e(f"s_setprio {PRIO[kt]}")
    q = qk(SB, QB, CB)
    ex(SA, 0, 2); e(pv(OB, VF1, SB+8)); ex(SA, 2, 5); e(sm(LB, SB+8))
    rdV(VF1, kt, 1)
    ex(SA, 5, 7)
    e(q[0]); ex(SA, 7, 10); e(q[1])
    if kt == 3: e(f"v_add_u32 v{vKR}, s{sSLOT}, v{vKRl}")
    rdK((kt + 1) & 3)
    ex(SA, 10, 13)
    e("s_waitcnt lgkmcnt(4)")
    e(pv(OA, VF0, SA)); ex(SA, 13, 16); e(sm(LA, SA))
def slotB(kt, last=False):
    c(f"--- key tile {kt}, q tile B: exp(B), finish PV(A)" + (" (last tile)" if last else ", QK(A) of the next tile"))
    q = qk(SA, QA, CA)
    ex(SB, 0, 2)
    e("s_waitcnt lgkmcnt(2)")
    if STAMP == 3: st_issue()
    e(pv(OA, VF1, SA+8)); ex(SB, 2, 5); e(sm(LA, SA+8)); ex(SB, 5, 7)
    if not last or STAMP == 3: e("s_waitcnt lgkmcnt(0)")
    kt_stamp(kt)
    if last:
        ex(SB, 7, 10)
        e(pv(OB, VF0, SB))
        ex(SB, 10, 12)
        c("tile A is complete: hand its partial sums to the partner wave")
        for j in range(4): e(f"ds_write_b128 v{vRED}, {vr(OA+4*j,4)} offset:{1024*j}")
        e(f"ds_write_b32 v{vVRl}, v{LA} offset:4096")
        ex(SB, 12, 13)
        e(sm(LB, SB))
        ex(SB, 13, 16)
        return
    e(q[0]); ex(SB, 7, 10); e(q[1])
    if kt == 3: e(f"v_add_u32 v{vVR}, s{sSLOT}, v{vVRl}")
    ex(SB, 10, 13)
    e(pv(OB, VF0, SB))
    rdV(VF0, (kt + 1) & 3, 0)
    ex(SB, 13, 16); e(sm(LB, SB))

def ua_consts():
    c("bf16 -> f32 unpack on the matrix pipe: lane (m=l&31,h=l>>5) of A_i holds 1.0 at e=(m&3)+4*((m>>3)&1)")
    c("iff (m>>4)==i and ((m>>2)&1)==h, so D register 8i+e of a lane = element e of its own B operand i")
    e(f"v_bfe_u32 v{vT0}, v{vLANE}, 2, 1")
    e(f"v_lshrrev_b32 v{vT1}, 5, v{vLANE}")
    e(f"v_cmp_eq_u32 vcc, v{vT0}, v{vT1}")
    e(f"v_and_b32 v{vT0}, 1, v{vLANE}")
    e(f"v_lshlrev_b32 v{vT0}, 4, v{vT0}")
    e(f"v_mov_b32 v{vT1}, 0x3f80")
    e(f"v_lshlrev_b32 v{vT1}, v{vT0}, v{vT1}")
    e(f"v_cndmask_b32 v{vT1}, 0, v{vT1}, vcc")
    e(f"v_bfe_u32 v{vT0}, v{vLANE}, 1, 1")
    e(f"v_bfe_u32 v{vT2}, v{vLANE}, 3, 2")
    e(f"v_lshl_add_u32 v{vT0}, v{vT2}, 1, v{vT0}")
    for r in range(8):
        e(f"v_cmp_eq_u32 vcc, {r}, v{vT0}")
        e("s_nop 1")
        e(f"v_cndmask_b32 v{UA+r}, 0, v{vT1}, vcc")
def loadK(dst, soff):
    for j in range(4): e(f"buffer_load_dwordx4 {vr(dst+4*j,4)}, v{vG64}, s[{sK}:{sK+3}], s{soff} offen offset:{16*j}")
def loadV(soff):
    for j in range(4): e(f"buffer_load_dwordx4 v{vG16}, s[{sV}:{sV+3}], s{soff} offen offset:{1024*j} lds")
def goff(dst, idx_sgpr, add):
    e(f"s_add_u32 s{dst}, s{idx_sgpr}, {add}")
    e(f"s_lshl_b32 s{dst}, s{dst}, 14")
    e(f"s_add_u32 s{dst}, s{dst}, s{sC0}")
    e(f"s_and_b32 s{dst}, s{dst}, 0x1ffff")
    e(f"s_add_u32 s{dst}, s{dst}, s{sHEAD}")

e(f"{NAME}:")
for s, off in ((sQ, 0), (sK, 8), (sV, 16), (sTP, 24), (sO, 32), (sWS, 48)):
    e(f"s_load_dwordx2 s[{s}:{s+1}], s[0:1], {off}")
if STAMP: st_issue()
e("s_cmp_ge_u32 s2, 256")
e("s_cbranch_scc1 L_end")
c("head = (wg&7)*4 + ((wg>>3)&3), part = wg>>5 (the 8 parts of a head usually share an L2; speed only)")
e(f"v_lshrrev_b32 v{vT0}, 6, v0")
e(f"v_and_b32 v{vLANE}, 63, v0")
e(f"v_readfirstlane_b32 s{sWAVE}, v{vT0}")
e("s_and_b32 s3, s2, 7")
e("s_lshl_b32 s3, s3, 2")
e(f"s_bfe_u32 s{sTMP}, s2, 0x20003")
e(f"s_add_u32 s3, s3, s{sTMP}")
e(f"s_lshl_b32 s{sHEAD}, s3, 17")
e(f"s_lshr_b32 s{sPART}, s2, 5")
e(f"v_lshlrev_b32 v{vG16}, 4, v{vLANE}")
e(f"s_mov_b32 s{sQ+2}, 0x400000")
e(f"s_mov_b32 s{sQ+3}, 0x00020000")
for s in (sK, sV, sO): e(f"s_mov_b64 s[{s+2}:{s+3}], s[{sQ+2}:{sQ+3}]")
e(f"s_mov_b32 s{sWS+2}, 0x804000"); e(f"s_mov_b32 s{sWS+3}, 0x00020000")
e(f"s_cmp_ge_u32 s{sWAVE}, 4")
e("s_cbranch_scc1 L_consumer")
c("producer: first loads K(0) and K(1); parts 0,1 take the chunk they publish (2,3) ahead of their own K(1)")
e("s_setprio 3")
if opt("pf", 0):
    c("pull this kernel's code into L2 while the kernel arguments are still on their way")
    e(f"s_cmp_lg_u32 s{sWAVE}, 3")
    e("s_cbranch_scc1 L_nopf")
    e("s_getpc_b64 s[60:61]")
    e(f"v_min_u32 v{vT0}, 52, v{vLANE}")
    e(f"v_lshlrev_b32 v{vT0}, 7, v{vT0}")
    e(f"v_mov_b32 v{vTG2+1}, s61")
    e(f"v_add_co_u32 v{vTG2}, vcc, s60, v{vT0}")
    e("s_nop 1")
    e(f"v_addc_co_u32 v{vTG2+1}, vcc, 0, v{vTG2+1}, vcc")
    e(f"global_load_dword v{vFL}, {vr(vTG2,2)}, off offset:128")
    e("L_nopf:")
e(f"s_lshl_b32 s{sW}, s{sWAVE}, 12")
e(f"s_add_u32 s{sHEAD}, s{sHEAD}, s{sW}")
e(f"s_and_b32 s{sC0}, s3, 7"); e(f"s_lshl_b32 s{sC0}, s{sC0}, 14")
e(f"s_add_u32 s{sCUR}, s{sHEAD}, s{sC0}")
e(f"s_add_u32 s{sM0V}, s{sW}, 16384")
e(f"v_lshlrev_b32 v{vG64}, 6, v{vLANE}")
e(f"s_mov_b32 m0, s{sM0V}")
e(f"s_add_u32 s{sTMP2}, s{sC0}, 16384")
e(f"s_and_b32 s{sTMP2}, s{sTMP2}, 0x1ffff")
e(f"s_add_u32 s{sTMP2}, s{sTMP2}, s{sHEAD}")
goff(sPOFF, sPART, 2)
e(f"s_cmp_lt_u32 s{sPART}, 2")
e(f"s_cselect_b32 s{sTMP}, s{sPOFF}, s{sTMP2}")
e("s_waitcnt lgkmcnt(0)")
loadK(RAW, sCUR)
if V0AT == 3: loadV(sCUR)
if not DEFER: loadK(RAW2, sTMP)
else: e(f"s_mov_b32 s{sGOFF}, s{sTMP}")
if V0AT == 1: loadV(sCUR)
e("s_branch L_producer")

c("===== consumer waves 4..11 =====")
e("L_consumer:")
e(f"s_sub_u32 s{sWAVE}, s{sWAVE}, 4")
e(f"s_lshl_b32 s{sW}, s{sWAVE}, 11")
e(f"s_lshl_b32 s{sTMP}, s{sPART}, 14")
e(f"s_add_u32 s{sQOFF}, s{sHEAD}, s{sTMP}")
e(f"s_add_u32 s{sQOFF}, s{sQOFF}, s{sW}")
e(f"s_lshr_b32 s{sTMP2}, s3, 1")
e(f"s_lshl_b32 s{sTMP2}, s{sTMP2}, 2")
e("s_waitcnt lgkmcnt(0)")
e(f"buffer_load_dwordx4 {vr(SA,4)}, v{vG16}, s[{sQ}:{sQ+3}], s{sQOFF} offen {QFLAGS}")
e(f"buffer_load_dwordx4 {vr(SA+4,4)}, v{vG16}, s[{sQ}:{sQ+3}], s{sQOFF} offen offset:1024 {QFLAGS}")
e(f"s_load_dword s{sT}, s[{sTP}:{sTP+1}], s{sTMP2}")
if V0AT == 2:
    c("V tile w of the first chunk, queued behind Q")
    e(f"s_add_u32 m0, s{sW}, 16384")
    e(f"s_and_b32 s{sTMP}, s3, 7"); e(f"s_lshl_b32 s{sTMP}, s{sTMP}, 14")
    e(f"s_add_u32 s{sTMP}, s{sTMP}, s{sHEAD}"); e(f"s_add_u32 s{sTMP}, s{sTMP}, s{sW}")
    e(f"buffer_load_dwordx4 v{vG16}, s[{sV}:{sV+3}], s{sTMP} offen lds")
    e(f"buffer_load_dwordx4 v{vG16}, s[{sV}:{sV+3}], s{sTMP} offen offset:1024 lds")
st_init()
ua_consts()
c("K' read: group*8192 + lane*16")
e(f"s_and_b32 s{sTMP}, s{sWAVE}, 4")
e(f"s_lshl_b32 s{sTMP}, s{sTMP}, 11")
e(f"v_add_u32 v{vKRl}, s{sTMP}, v{vG16}")
c("V transposed read: (8*(l>>5) + ((l>>2)&3))*64 + ((l>>4)&1)*32 + (l&3)*8 + 16384 + group*8192")
e(f"v_lshrrev_b32 v{vT0}, 5, v{vLANE}")
e(f"v_lshlrev_b32 v{vT0}, 9, v{vT0}")
e(f"v_bfe_u32 v{vT1}, v{vLANE}, 2, 2")
e(f"v_lshl_add_u32 v{vT0}, v{vT1}, 6, v{vT0}")
e(f"v_bfe_u32 v{vT1}, v{vLANE}, 4, 1")
e(f"v_lshl_add_u32 v{vT0}, v{vT1}, 5, v{vT0}")
e(f"v_and_b32 v{vT1}, 3, v{vLANE}")
e(f"v_lshl_add_u32 v{vT0}, v{vT1}, 3, v{vT0}")
e(f"s_add_u32 s{sTMP}, s{sTMP}, 16384")
e(f"v_add_u32 v{vVRl}, s{sTMP}, v{vT0}")
e(f"v_mov_b32 v{vKR}, v{vKRl}")
e(f"v_mov_b32 v{vVR}, v{vVRl}")
c("sparse index: elements 1 and 3 of every group of four = the high halves of two f32 registers")
e(f"v_mov_b32 v{vIDX}, 0xdddddddd")
c("Q' write: LDS_Q + w*QSTR + (l&3)*544 + (l>>2)*16 ; read: LDS_Q + tile*QSTR + (l>>5)*544 + (l&31)*16")
e(f"s_mul_i32 s{sTMP}, s{sWAVE}, {QSTR}")
e(f"s_add_u32 s{sTMP}, s{sTMP}, {LDS_Q}")
e(f"v_mul_u32_u24 v{vT0}, 544, v{vT1}")
e(f"v_lshrrev_b32 v{vT1}, 2, v{vLANE}")
e(f"v_lshl_add_u32 v{vT0}, v{vT1}, 4, v{vT0}")
e(f"v_add_u32 v{vQW}, s{sTMP}, v{vT0}")
e(f"v_lshrrev_b32 v{vT1}, 5, v{vLANE}")
e(f"v_lshl_add_u32 v{vT0}, v{vT1}, 5, v{vG16}")
c("q tile B = own tile w, q tile A = the partner's tile w^4")
e(f"v_add_u32 v{vQR}, s{sTMP}, v{vT0}")
e(f"s_xor_b32 s{sTMP2}, s{sWAVE}, 4")
e(f"s_mul_i32 s{sTMP2}, s{sTMP2}, {QSTR}")
e(f"s_add_u32 s{sTMP2}, s{sTMP2}, {LDS_Q}")
e(f"v_add_u32 v{vT3}, s{sTMP2}, v{vT0}")
c("row-sum selector: row 0 sums queries 0..15, row 4 queries 16..31 (result in lanes 0..31)")
e(f"v_and_b32 v{vT0}, 15, v{vLANE}")
e(f"v_mov_b32 v{vT1}, 0x3f803f80")
e(f"v_cmp_eq_u32 vcc, 0, v{vT0}")
e("s_nop 1")
e(f"v_cndmask_b32 v{ONES}, 0, v{vT1}, vcc")
e(f"v_cmp_eq_u32 vcc, 4, v{vT0}")
e(f"v_mov_b32 v{ONES+1}, v{ONES}")
e("s_nop 0")
e(f"v_cndmask_b32 v{ONES+2}, 0, v{vT1}, vcc")
e(f"v_mov_b32 v{ONES+3}, v{ONES+2}")
c("exchange and output addresses")
e(f"s_lshl_b32 s{sTMP}, s{sWAVE}, 13")
e(f"v_add_u32 v{vRD}, s{sTMP}, v{vG16}")
e(f"v_xor_b32 v{vRED}, 0x8000, v{vRD}")
e(f"v_and_b32 v{vT0}, 31, v{vLANE}")
e(f"v_lshlrev_b32 v{vT0}, 6, v{vT0}")
e(f"v_lshrrev_b32 v{vT1}, 5, v{vLANE}")
e(f"v_lshl_add_u32 v{vROW}, v{vT1}, 4, v{vT0}")
c("output store: lane -> (row l&15, 16-byte chunk 2*((l>>4)&1) + (l>>5))")
e(f"v_and_b32 v{vT0}, 15, v{vLANE}")
e(f"v_lshlrev_b32 v{vT0}, 6, v{vT0}")
e(f"v_lshl_add_u32 v{vT0}, v{vT1}, 4, v{vT0}")
e(f"v_bfe_u32 v{vT1}, v{vLANE}, 4, 1")
e(f"v_lshl_add_u32 v{vOUT}, v{vT1}, 5, v{vT0}")
zero(list(range(OA, OA+16)) + list(range(OB, OB+16)) + list(range(LA, LA+4)) + list(range(LB, LB+4)) + list(range(VF1, VF1+4)))
e("s_waitcnt lgkmcnt(0)")
c("t[head] (bf16) -> f32; C = -|t|*log2e")
e(f"s_lshl_b32 s{sTMP}, s{sT}, 16")
e(f"s_and_b32 s{sTMP2}, s{sT}, 0xffff0000")
e("s_bitcmp1_b32 s3, 0")
e(f"s_cselect_b32 s{sT}, s{sTMP2}, s{sTMP}")
e(f"v_mov_b32 v{vTL}, 0x3fb8aa3b")
e(f"v_mul_f32 v{vTL}, s{sT}, v{vTL}")
e(f"v_or_b32 v{CA}, 0x80000000, v{vTL}")
e(f"v_mov_b32 v{CA+1}, v{CA}")
for j in range(2, 32, 2): e(f"v_mov_b64 {vr(CA+j,2)}, {vr(CA,2)}")
zero(range(SB+8, SB+16))
e(f"s_mov_b32 s{sSTG}, 0")
e(f"s_mov_b32 s{sSLOT}, 32768")
e(f"s_and_b32 s{sT}, s{sT}, 0x7fffffff")
c("Q' = q * t*log2e / (|q| + 1e-6): rows 16j + (l>>2), 8 elements per lane and j")
QU = QA
mark("cpre")
e(f"s_waitcnt vmcnt({2 if V0AT == 2 else 0})")
mark("cq")
for j in range(4):
    e(f"v_dot2_f32_bf16 v{vT0}, v{SA+j}, v{SA+j}, " + ("0" if j == 0 else f"v{vT0}"))
    e(f"v_dot2_f32_bf16 v{vT1}, v{SA+4+j}, v{SA+4+j}, " + ("0" if j == 0 else f"v{vT1}"))
unpack(SA, QU)
for qp in ("[1,0,3,2]", "[2,3,0,1]"):
    e("s_nop 0")
    e(f"v_add_f32_dpp v{vT0}, v{vT0}, v{vT0} quad_perm:{qp} row_mask:0xf bank_mask:0xf")
    e(f"v_add_f32_dpp v{vT1}, v{vT1}, v{vT1} quad_perm:{qp} row_mask:0xf bank_mask:0xf")
e(f"v_sqrt_f32 v{vT0}, v{vT0}")
e(f"v_sqrt_f32 v{vT1}, v{vT1}")
e(f"v_add_f32 v{vT0}, 0x358637bd, v{vT0}")
e(f"v_add_f32 v{vT1}, 0x358637bd, v{vT1}")
e(f"v_rcp_f32 v{vT0}, v{vT0}")
e(f"v_rcp_f32 v{vT1}, v{vT1}")
e(f"v_mul_f32 v{vT2}, v{vT0}, v{vTL}")
e(f"v_mul_f32 v{vT4}, v{vT1}, v{vTL}")
scale_pack(QU, 4, vT2, SA+8)
e(f"ds_write_b128 v{vQW}, {vr(SA+8,4)}")
scale_pack(QU+8, 4, vT4, SA+12)
e(f"ds_write_b128 v{vQW}, {vr(SA+12,4)} offset:256")
mark("cqn")
c("the bound |t|*log2e may stand in for the row maximum only while |t| <= 16 (NaN fails the test too)")
e(f"s_cmp_le_u32 s{sT}, 0x41800000")
e("s_waitcnt vmcnt(0) lgkmcnt(0)" if V0AT == 2 else "s_waitcnt lgkmcnt(0)")
e("s_barrier")
e(f"ds_read_b128 {vr(QA,4)}, v{vT3}")
e(f"ds_read_b128 {vr(QA+4,4)}, v{vT3} offset:1088")
e("s_cbranch_scc0 L_maxpass")
e("L_start:")
mark("cbar")
rdK(0)
e(f"ds_read_b128 {vr(QB,4)}, v{vQR}")
e(f"ds_read_b128 {vr(QB+4,4)}, v{vQR} offset:1088")
rdV(VF0, 0, 0)
e("s_waitcnt lgkmcnt(4)")
for s in qk(SA, QA, CA): e(s)
e("s_waitcnt lgkmcnt(2)")
e("s_nop 7")
e("s_nop 2")
mark("cloop")
e(".p2align 6")
e("L_stage:")
for kt in range(4):
    slotA(kt)
    if kt == 3: e("s_cbranch_scc1 L_last")
    slotB(kt)
    if kt == 2:
        c("the next ring slot is complete once the producers are here")
        e(f"s_cmp_eq_u32 s{sSTG}, 7")
        e("s_barrier")
e(f"s_add_u32 s{sSTG}, s{sSTG}, 1")
e(f"s_add_u32 s{sSLOT}, s{sSLOT}, 32768")
e(f"s_and_b32 s{sSLOT}, s{sSLOT}, 0x1ffff")
e("s_branch L_stage")
e("L_last:")
mark("clast")
e("s_setprio 0")
c("row-sum exchange addresses (4-byte lane stride); the ring bases are dead now")
e(f"s_lshl_b32 s{sTMP}, s{sWAVE}, 13")
e(f"v_lshl_add_u32 v{vKRl}, v{vLANE}, 2, s{sTMP}")
e(f"v_xor_b32 v{vVRl}, 0x8000, v{vKRl}")
slotB(3, last=True)
e("s_nop 0")
e("s_waitcnt lgkmcnt(0)")
e(pv(OB, VF1, SB+8))
e(sm(LB, SB+8))
e("s_barrier")
e(f"ds_read_b32 v{LA}, v{vKRl} offset:4096")
for j in range(4): e(f"ds_read_b128 {vr(OA+4*j,4)}, v{vRD} offset:{1024*j}")
e("s_nop 3")
e("s_waitcnt lgkmcnt(4)")
e(f"v_add_f32 v{LA}, v{LA}, v{LB}")
e(f"v_rcp_f32 v{vT2}, v{LA}")
e("s_nop 0")
e(f"v_mov_b32 v{vT1}, v{vT2}")
PKo = SA
for j in range(4):
    e(f"s_waitcnt lgkmcnt({3-j})")
    for i in range(2):
        r = 4*j + 2*i
        e(f"v_pk_add_f32 {vr(OA+r,2)}, {vr(OA+r,2)}, {vr(OB+r,2)}")
    if j == 0: e(f"v_permlane32_swap_b32 v{vT2}, v{vT1}")
for i in range(8):
    e(f"v_pk_mul_f32 {vr(OA+2*i,2)}, {vr(OA+2*i,2)}, {vr(vT2,2)} op_sel_hi:[1,0]")
for i in range(8):
    e(f"v_cvt_pk_bf16_f32 v{PKo+i}, v{OA+2*i}, v{OA+2*i+1}")
    if i == 5:
        e(f"v_permlane32_swap_b32 v{PKo+0}, v{PKo+2}")
        e(f"v_permlane32_swap_b32 v{PKo+1}, v{PKo+3}")
e("s_nop 1")
e(f"v_permlane32_swap_b32 v{PKo+4}, v{PKo+6}")
e(f"v_permlane32_swap_b32 v{PKo+5}, v{PKo+7}")
e("s_nop 1")
for j in range(4): e(f"v_permlane16_swap_b32 v{PKo+j}, v{PKo+4+j}")
e("s_nop 1")
e(f"buffer_store_dwordx4 {vr(PKo,4)}, v{vOUT}, s[{sO}:{sO+3}], s{sQOFF} offen {STFLAGS}")
e(f"buffer_store_dwordx4 {vr(PKo+4,4)}, v{vOUT}, s[{sO}:{sO+3}], s{sQOFF} offen offset:1024 {STFLAGS}")
st_flush(sWAVE)
e("L_end:")
e("s_endpgm")

c("===== producer waves 0..3: K tiles 2w,2w+1 and V tiles 2w,2w+1 of every chunk (lane = key row) =====")
def pnorm(raw):
    acc = [vT0, vT4, vT1, vT4+1]
    for i in range(4):
        for ch in range(4):
            j = 4*ch + i
            e(f"v_dot2_f32_bf16 v{acc[ch]}, v{raw+j}, v{raw+j}, " + ("0" if i == 0 else f"v{acc[ch]}"))
    unpack(raw, UNP); unpack(raw+8, UNP+16)
    e(f"v_add_f32 v{vT0}, v{vT0}, v{vT1}")
    e(f"v_add_f32 v{vT4}, v{vT4}, v{vT4+1}")
    e(f"v_add_f32 v{vT0}, v{vT0}, v{vT4}")
    e(f"v_sqrt_f32 v{vT0}, v{vT0}"); e("s_nop 0")
    e(f"v_add_f32 v{vT0}, 0x358637bd, v{vT0}")
    e(f"v_rcp_f32 v{vT2}, v{vT0}")
    e("s_nop 5")
    scale_pack(UNP, 16, vT2, PK)
def wrK(addr, off=0):
    for j in range(4): e(f"ds_write_b128 v{addr}, {vr(PK+4*j,4)} offset:{off+512*j}")
def setm0(base_sgpr, add): e(f"s_add_u32 m0, s{base_sgpr}, {add}")
def poll():
    e(f"buffer_load_dword v{vFL}, v{vFA}, s[{sWS}:{sWS+3}], s{sFOFF} offen sc1")
    e("s_waitcnt vmcnt(0)")
    e(f"v_cmp_eq_u32 vcc, v{vFL}, v{vTAG}")
    e("s_nop 0")
    e(f"s_lshr_b32 s{sFLG}, vcc_lo, 2")
    e(f"s_lshr_b32 s{sTMP}, vcc_lo, 3")
    e(f"s_and_b32 s{sFLG}, s{sFLG}, s{sTMP}")
def publish():
    e(f"s_lshl_b32 s{sTMP}, s{sPART}, 14")
    e(f"s_add_u32 s{sTMP}, s{sTMP}, s{sWOFF}")
    for j in range(4): e(f"buffer_store_dwordx4 {vr(PK+4*j,4)}, v{vPUB}, s[{sWS}:{sWS+3}], s{sTMP} offen offset:{512*j} sc1")
def raise_flag():
    e(f"s_lshl_b32 s{sTMP}, s{sPART}, 3")
    e(f"s_add_u32 s{sTMP}, s{sTMP}, s{sFOFF}")
    e("s_mov_b64 exec, 1")
    e(f"buffer_store_dwordx2 {vr(vTG2,2)}, v{vFA}, s[{sWS}:{sWS+3}], s{sTMP} offen offset:8 sc1")
    e("s_mov_b64 exec, -1")
e("L_producer:")
st_init()
c("hand-off line of (head, wave): dwords 0,1 = generation G, dwords 2+2p,3+2p = flag of part p")
e(f"s_lshl_b32 s{sFOFF}, s3, 2")
e(f"s_add_u32 s{sFOFF}, s{sFOFF}, s{sWAVE}")
e(f"s_lshl_b32 s{sFOFF}, s{sFOFF}, 7")
e(f"s_add_u32 s{sFOFF}, s{sFOFF}, {WSF}")
e(f"v_min_u32 v{vFA}, 17, v{vLANE}")
e(f"v_lshlrev_b32 v{vFA}, 2, v{vFA}")
e(f"s_add_u32 s{sWOFF}, s{sHEAD}, {WSK}")
if opt("ge", 0): e(f"buffer_load_dword v{vFL}, v{vFA}, s[{sWS}:{sWS+3}], s{sFOFF} offen sc1")
ua_consts()
c("K' fragment address: tile (l>>5)*2048 + key*16 (+ 16-byte chunk c*512)")
e(f"v_and_b32 v{vT0}, 31, v{vLANE}")
e(f"v_lshlrev_b32 v{vT0}, 4, v{vT0}")
e(f"v_lshrrev_b32 v{vT1}, 5, v{vLANE}")
e(f"v_lshl_add_u32 v{vPUB}, v{vT1}, 11, v{vT0}")
e(f"v_add_u32 v{vKWl}, s{sW}, v{vPUB}")
e(f"s_mov_b32 s{sFLG}, 0")
e(f"s_mov_b32 s{sPEND}, 0")
e(f"s_mov_b32 s{sSTG}, 0")
c("parts 2..5 publish chunk part+2 in iteration part-2")
e(f"s_sub_u32 s{sIP}, s{sPART}, 2")
e(f"s_cmp_ge_u32 s{sPART}, 6")
e(f"s_cselect_b32 s{sIP}, 100, s{sIP}")
c("--- K(0), then K(1) (or the chunk to publish)")
GE = opt("ge", 0)
def loadG(): e(f"buffer_load_dword v{vFL}, v{vFA}, s[{sWS}:{sWS+3}], s{sFOFF} offen sc1")
if DEFER:
    assert V0AT == 2 and not GE
    loadK(RAW2, sGOFF)
mark("ppre")
e(f"s_waitcnt vmcnt({ {0: 4, 1: 8, 2: 4, 3: 8}[V0AT] + GE })")
mark("pk0")
if V0AT == 0: loadV(sCUR)
if not GE: loadG()
pnorm(RAW); wrK(vKWl)
if DEFER:
    e("s_waitcnt lgkmcnt(0)"); e("s_barrier")
e(f"s_waitcnt vmcnt({ {0: 5, 1: 5, 2: 1, 3: 1}[V0AT] }) lgkmcnt(0)")
mark("pk1")
pnorm(RAW2)
mark("pk1n")
e(f"s_cmp_ge_u32 s{sPART}, 2")
e("s_cbranch_scc1 L_k1")
publish()
loadK(RAW, sTMP2)
g_ = 0 if (GE and V0AT == 0) else 1
e(f"s_waitcnt vmcnt({8 + g_})")
e("s_branch L_k1d")
e("L_k1:")
wrK(vKWl, 32768)
e(f"s_waitcnt vmcnt({g_}) lgkmcnt(0)")
e("L_k1d:")
mark("pv0")
if not DEFER: e("s_barrier")
c("--- V(1), V(2); flags of parts 0,1,6,7; K(1) of parts 0,1; part 2 fetches its raw chunk")
setm0(sM0V, 32768)
goff(sGOFF, sSTG, 2)
loadV(sTMP2)
setm0(sM0V, 65536)
e(f"s_mov_b32 s{sSLOT}, 65536")
loadV(sGOFF)
e("s_waitcnt vmcnt(8)")
c("tag of this launch: T = G + 0x9e3779b97f4a7c15")
e(f"v_readlane_b32 s{sTAG}, v{vFL}, 0")
e(f"v_readlane_b32 s{sTAG+1}, v{vFL}, 1")
e(f"v_and_b32 v{vT0}, 1, v{vLANE}")
e(f"s_add_u32 s{sTAG}, s{sTAG}, 0x7f4a7c15")
e(f"s_addc_u32 s{sTAG+1}, s{sTAG+1}, 0x9e3779b9")
e(f"v_cmp_eq_u32 vcc, 1, v{vT0}")
e(f"v_mov_b32 v{vTG2}, s{sTAG}")
e(f"v_mov_b32 v{vTG2+1}, s{sTAG+1}")
e(f"v_cndmask_b32 v{vTAG}, v{vTG2}, v{vTG2+1}, vcc")
e(f"s_cmp_lt_u32 s{sIP}, 6")
e("s_cbranch_scc1 L_i1")
raise_flag()
e(f"s_cmp_ge_u32 s{sPART}, 2")
e("s_cbranch_scc1 L_i2")
pnorm(RAW); wrK(vKWl, 32768)
e("L_i2:")
e("s_waitcnt vmcnt(5) lgkmcnt(0)")
e("s_branch L_i3")
e("L_i1:")
e("s_waitcnt vmcnt(4)")
e(f"s_cmp_lg_u32 s{sIP}, 0")
e("s_cbranch_scc1 L_i3")
loadK(RAW3, sPOFF)
e("L_i3:")
e("s_barrier")
c("--- iteration i = 0..5: K'(i+2), V(i+3)")
e("L_ploop:")
e("s_waitcnt vmcnt(0)")
e(f"s_cmp_eq_u32 s{sPEND}, 0")
e("s_cbranch_scc1 L_nopend")
c("the stores of the published chunk are acknowledged: raise this wave's flag")
raise_flag()
e(f"s_mov_b32 s{sPEND}, 0")
e("L_nopend:")
c("is chunk i+2 published (by part i)?  bounded polling, else normalise locally")
e(f"s_mov_b32 s{sCNT}, {NPOLL}")
e("L_poll:")
e(f"s_lshl_b32 s{sTMP}, s{sSTG}, 1")
e(f"s_bitcmp1_b32 s{sFLG}, s{sTMP}")
e("s_cbranch_scc1 L_ready")
e(f"s_cmp_eq_u32 s{sCNT}, 0")
e("s_cbranch_scc1 L_local")
e(f"s_sub_u32 s{sCNT}, s{sCNT}, 1")
poll()
e("s_branch L_poll")
e("L_local:")
loadK(RAW, sGOFF)
e(f"v_add_u32 v{vKW}, s{sSLOT}, v{vKWl}")
e("s_waitcnt vmcnt(0)")
pnorm(RAW)
wrK(vKW)
e("s_waitcnt lgkmcnt(0)")
e("s_branch L_have")
e("L_ready:")
e(f"s_lshl_b32 s{sTMP}, s{sSTG}, 14")
e(f"s_add_u32 s{sTMP}, s{sTMP}, s{sWOFF}")
setm0(sW, f"s{sSLOT}")
e("s_nop 0")
for j in range(4): e(f"buffer_load_dwordx4 v{vG16}, s[{sWS}:{sWS+3}], s{sTMP} offen offset:{1024*j} sc1 lds")
e("L_have:")
e(f"s_cmp_eq_u32 s{sSTG}, 5")
e("s_cbranch_scc1 L_plast")
e(f"s_add_u32 s{sSLOT}, s{sSLOT}, 32768")
e(f"s_and_b32 s{sSLOT}, s{sSLOT}, 0x1ffff")
setm0(sM0V, f"s{sSLOT}")
goff(sGOFF, sSTG, 3)
loadV(sGOFF)
e(f"s_cmp_eq_u32 s{sSTG}, s{sIP}")
e("s_cbranch_scc1 L_pub")
e(f"s_add_u32 s{sSTG}, s{sSTG}, 1")
e(f"s_cmp_eq_u32 s{sSTG}, s{sIP}")
e("s_cbranch_scc1 L_raw")
e("s_waitcnt vmcnt(4)")
e("L_pbar:")
e("s_barrier")
e("s_branch L_ploop")
e("L_pub:")
pnorm(RAW3); publish()
e(f"s_mov_b32 s{sPEND}, 1")
e(f"s_add_u32 s{sSTG}, s{sSTG}, 1")
e("s_waitcnt vmcnt(8)")
e("s_branch L_pbar")
e("L_raw:")
loadK(RAW3, sPOFF)
e("s_waitcnt vmcnt(8)")
e("s_branch L_pbar")
e("L_plast:")
if opt("touch", 0):
    c("fetch the address translation of this workgroup's output rows ahead of the stores (the value is not used)")
    e(f"s_lshl_b32 s{sTMP}, s{sPART}, 14")
    e(f"s_add_u32 s{sTMP}, s{sTMP}, s{sHEAD}")
    e("s_mov_b64 exec, 1")
    e(f"buffer_load_dword v{RAW}, v{vFA}, s[{sO}:{sO+3}], s{sTMP} offen nt")
    e("s_mov_b64 exec, -1")
e("s_waitcnt vmcnt(0)")
e("s_barrier")
c("part 7: once every part has raised its flag (so has read G), advance the generation for the next launch")
e(f"s_cmp_lg_u32 s{sPART}, 7")
e("s_cbranch_scc1 L_pend")
e("L_fin:")
e(f"s_and_b32 s{sTMP}, s{sFLG}, 0x5555")
e(f"s_cmp_eq_u32 s{sTMP}, 0x5555")
e("s_cbranch_scc1 L_bump")
poll()
e("s_branch L_fin")
e("L_bump:")
e("s_mov_b64 exec, 1")
e(f"buffer_store_dwordx2 {vr(vTG2,2)}, v{vFA}, s[{sWS}:{sWS+3}], s{sFOFF} offen sc1")
e("s_mov_b64 exec, -1")
e("L_pend:")
if STAMP:
    e(f"s_add_u32 s{sTMP}, s{sWAVE}, 8")
    st_flush(sTMP)
e("s_endpgm")

c("===== |t| > 16 (or NaN): true row maximum of the logits over all 2048 keys, then the main loop with C = -max =====")
e("L_maxpass:")
e(f"ds_read_b128 {vr(QB,4)}, v{vQR}")
e(f"ds_read_b128 {vr(QB+4,4)}, v{vQR} offset:1088")
c("lane (key=l&31,h=l>>5): fragment i = bytes key*64 + i*32 + h*16")
e(f"s_mov_b32 s{sTMP}, s{sHEAD}")
e(f"s_mov_b32 s{sTMP2}, 0")
e(f"v_mov_b32 v{vT3}, 0xff800000")
e(f"v_mov_b32 v{vT4}, 0xff800000")
e("s_waitcnt lgkmcnt(0)")
e("L_maxloop:")
e(f"buffer_load_dwordx4 {vr(SB,4)}, v{vROW}, s[{sK}:{sK+3}], s{sTMP} offen")
e(f"buffer_load_dwordx4 {vr(SB+4,4)}, v{vROW}, s[{sK}:{sK+3}], s{sTMP} offen offset:32")
e("s_waitcnt vmcnt(0)")
unpack(SB, OA)
for j in range(4):
    e(f"v_dot2_f32_bf16 v{vT0}, v{SB+j}, v{SB+j}, " + ("0" if j == 0 else f"v{vT0}"))
    e(f"v_dot2_f32_bf16 v{vT1}, v{SB+4+j}, v{SB+4+j}, " + ("0" if j == 0 else f"v{vT1}"))
e("s_nop 2")
e(f"v_add_f32 v{vT0}, v{vT0}, v{vT1}")
e(f"v_mov_b32 v{vT1}, v{vT0}"); e("s_nop 1")
e(f"v_permlane32_swap_b32 v{vT0}, v{vT1}"); e("s_nop 1")
e(f"v_add_f32 v{vT0}, v{vT0}, v{vT1}")
e(f"v_sqrt_f32 v{vT0}, v{vT0}"); e("s_nop 0")
e(f"v_add_f32 v{vT0}, 0x358637bd, v{vT0}")
e(f"v_rcp_f32 v{vT2}, v{vT0}"); e("s_nop 0")
scale_pack(OA, 8, vT2, OB)
e("s_nop 1")
for S, Q in ((CA, QA), (CB, QB)):
    e(f"v_mfma_f32_32x32x16_bf16 {vr(S,16)}, {vr(OB,4)}, {vr(Q,4)}, 0")
    e(f"v_mfma_f32_32x32x16_bf16 {vr(S,16)}, {vr(OB+4,4)}, {vr(Q+4,4)}, {vr(S,16)}")
e("s_nop 15")
for S, M in ((CA, vT3), (CB, vT4)):
    for j in range(8): e(f"v_max3_f32 v{M}, v{S+2*j}, v{S+2*j+1}, v{M}")
e(f"s_add_u32 s{sTMP}, s{sTMP}, 2048")
e(f"s_add_u32 s{sTMP2}, s{sTMP2}, 1")
e(f"s_cmp_lt_u32 s{sTMP2}, 64")
e("s_cbranch_scc1 L_maxloop")
for C, M in ((CA, vT3), (CB, vT4)):
    e(f"v_mov_b32 v{vT0}, v{M}")
    e("s_nop 1")
    e(f"v_permlane32_swap_b32 v{vT0}, v{M}")
    e("s_nop 1")
    e(f"v_max_f32 v{M}, v{M}, v{vT0}")
    e(f"v_xor_b32 v{C}, 0x80000000, v{M}")
    for j in range(1, 16): e(f"v_mov_b32 v{C+j}, v{C}")
zero(list(range(OA, OA+16)) + list(range(OB, OB+16)))
e("s_branch L_start")

nv = max(136, (NV + 7) // 8 * 8)
src = HEADER + f"; @launch grid=(256,1,1) block=(768,1,1) lds={LDS_TOTAL}\n" + DOC + f""".amdgcn_target "amdgcn-amd-amdhsa--gfx950"
.text
.globl {NAME}
.p2align 8
.type {NAME},@function
""" + "\n".join(L) + f"""
.section .rodata,"a"
.p2align 6
.amdhsa_kernel {NAME}
  .amdhsa_next_free_vgpr {nv}
  .amdhsa_next_free_sgpr 64
  .amdhsa_accum_offset {nv}
  .amdhsa_group_segment_fixed_size 0
  .amdhsa_kernarg_size 56
  .amdhsa_user_sgpr_count 2
  .amdhsa_user_sgpr_kernarg_segment_ptr 1
  .amdhsa_system_sgpr_workgroup_id_x 1
.end_amdhsa_kernel
"""
open(sys.argv[1], "w").write(src)
print("vgprs", NV, "->", nv)
```

```python
import sys
OPT = dict(a.split("=") for a in sys.argv[2:] if "=" in a)
def opt(name, default): return type(default)(OPT.get(name, default))
STAMP = opt("stamp", 0)
NPOLL = opt("npoll", 8)
PRIO = OPT.get("prio", "2103")
STFLAGS = "nt sc1"; QFLAGS = OPT.get("qfl", "nt").replace("none", "")
KD = opt("kd", 0)
BV = opt("bv", 0)
DEFER = opt("defer", 0)
V0AT = opt("v0at", 0)

HEADER = open("standalone__qk_norm__prompt.s.ref").read().split("; Override launch")[0]
NAME = "standalone__qk_norm__prompt_kernel"
DOC = """;
;
"""
L = []
def e(s=""): L.append("    " + s.rstrip() if s and not s.endswith(":") else s)
def c(s): L.append("    ; " + s)

class VA:
    def __init__(s, n=1): s.n = n
    def get(s, k=1, al=1):
        s.n = (s.n + al - 1) // al * al
        b = s.n; s.n += k; return b
def vr(b, n): return f"v[{b}:{b+n-1}]"
va = VA()
vLANE = va.get(); vG16 = va.get(); vT0 = va.get(); vT1 = va.get(); vT3 = va.get(); vT2 = va.get(2, 2); vT4 = va.get(2, 2)
vST = va.get(); vST2 = va.get()
UA = va.get(8, 4)
base = va.n
vKR = va.get(); vVR = va.get(); vKRl = va.get(); vVRl = va.get(); vIDX = va.get(); vTL = va.get(); vRED = va.get(); vROW = va.get()
vQR = va.get(); vQW = va.get(); vOUT = va.get(); vRD = va.get()
KF = UA
ONES = va.get(4, 4)
QA = va.get(8, 4); QB = va.get(8, 4)
VF0 = va.get(4, 4); VF1 = va.get(4, 4)
LA = va.get(4, 4); LB = va.get(4, 4)
SA = va.get(16, 4); SB = va.get(16, 4)
OA = va.get(16, 4); OB = va.get(16, 4)
CA = va.get(16, 4); CB = va.get(16, 4)
NV = va.n
vp = VA(base)
vG64 = vp.get(); vKWl = vp.get(); vKW = vp.get(); vFA = vp.get(); vFL = vp.get(); vTAG = vp.get(); vTG2 = vp.get(2, 2); vPUB = vp.get()
RAW = vp.get(16, 4); RAW2 = vp.get(16, 4); RAW3 = vp.get(16, 4); UNP = vp.get(32, 4); PK = vp.get(16, 4)
assert vp.n <= NV and NV <= 168

sQ, sK, sV, sO, sWS = 16, 20, 24, 28, 12
sHEAD = 32; sPART = 33; sWAVE = 34; sSTG = 35; sT = 36; sGOFF = 37; sSLOT = 38; sCNT = 39
sTMP = 40; sTMP2 = 41; sW = 42; sM0V = 44; sQOFF = 45; sFLG = 46; sWOFF = 47
sIP = 48; sPEND = 49; sPOFF = 50; sFOFF = 4; sC0 = 6; sCUR = 7; sTAG = 8; sTP = 10
LDS_Q = 131072; QSTR = 2176; LDS_TOTAL = LDS_Q + 8 * QSTR
WSK = 0x400000; WSF = 0x800000

def st_issue():
    e("s_memtime s[52:53]"); e("s_memrealtime s[54:55]")
def st_put(lane):
    e(f"v_writelane_b32 v{vST}, s52, {lane}"); e(f"v_writelane_b32 v{vST2}, s54, {lane}")
def st_init():
    if STAMP:
        e(f"v_mov_b32 v{vST}, 0"); e(f"v_mov_b32 v{vST2}, 0"); st_put(0)
def st_flush(slot_sgpr):
    if STAMP:
        e("s_waitcnt vmcnt(0)")
        st_issue(); e("s_waitcnt lgkmcnt(0)"); st_put(18)
        e(f"s_mul_i32 s56, s2, 12"); e(f"s_add_u32 s56, s56, s{slot_sgpr}"); e(f"s_lshl_b32 s56, s56, 9")
        e(f"v_lshlrev_b32 v{vT0}, 2, v{vLANE}")
        e(f"buffer_store_dword v{vST}, v{vT0}, s[{sWS}:{sWS+3}], s56 offen")
        e(f"buffer_store_dword v{vST2}, v{vT0}, s[{sWS}:{sWS+3}], s56 offen offset:256")

def mark(p):
    if opt("marks", 0): c(f"@amp {p}")
def unpack(raw, dst):
    e(f"v_mfma_f32_32x32x16_bf16 {vr(dst,16)}, {vr(UA,4)}, {vr(raw,4)}, 0")
    e(f"v_mfma_f32_32x32x16_bf16 {vr(dst,16)}, {vr(UA+4,4)}, {vr(raw+4,4)}, {vr(dst,16)}")
def scale_pack(unp, n, sc, pk):
    for j in range(n): e(f"v_pk_mul_f32 {vr(unp+2*j,2)}, {vr(unp+2*j,2)}, {vr(sc,2)} op_sel_hi:[1,0]")
    for j in range(n): e(f"v_cvt_pk_bf16_f32 v{pk+j}, v{unp+2*j}, v{unp+2*j+1}")
def zero(regs):
    for r in list(regs)[::2]: e(f"v_mov_b64 {vr(r,2)}, 0")
def qk(S, Q, C):
    return [f"v_mfma_f32_32x32x16_bf16 {vr(S,16)}, {vr(KF,4)}, {vr(Q,4)}, {vr(C,16)}",
            f"v_mfma_f32_32x32x16_bf16 {vr(S,16)}, {vr(KF+4,4)}, {vr(Q+4,4)}, {vr(S,16)}"]
def pv(O, VF, S): return f"v_smfmac_f32_32x32x32_bf16 {vr(O,16)}, {vr(VF,4)}, {vr(S,8)}, v{vIDX}"
def sm(Lr, S): return f"v_smfmac_f32_16x16x64_bf16 {vr(Lr,4)}, {vr(ONES,4)}, {vr(S,8)}, v{vIDX}"
def ex(S, a, b):
    for j in range(a, b): e(f"v_exp_f32 v{S+j}, v{S+j}")
def rdK(t):
    e(f"ds_read_b128 {vr(KF,4)}, v{vKR} offset:{t*2048}")
    e(f"ds_read_b128 {vr(KF+4,4)}, v{vKR} offset:{t*2048+1024}")
def rdV(VF, t, half):
    e(f"ds_read_b64_tr_b16 {vr(VF,2)}, v{vVR} offset:{t*2048+half*1024}")
    e(f"ds_read_b64_tr_b16 {vr(VF+2,2)}, v{vVR} offset:{t*2048+half*1024+256}")
def kt_stamp(kt):
    if STAMP == 3:
        e(f"s_lshl2_add_u32 m0, s{sSTG}, {32+kt}"); st_put("m0")

def slotA(kt):
    c(f"--- key tile {kt}, q tile A: exp(A), finish PV(B) of the previous tile, QK(B)")
    e(f"s_setprio {PRIO[kt]}")
    q = qk(SB, QB, CB)
    ex(SA, 0, 2); e(pv(OB, VF1, SB+8)); ex(SA, 2, 5); e(sm(LB, SB+8))
    rdV(VF1, kt, 1)
    ex(SA, 5, 6)
    e(q[0]); ex(SA, 6, 9); e(q[1])
    if kt == 3: e(f"v_add_u32 v{vKR}, s{sSLOT}, v{vKRl}")
    rdK((kt + 1) & 3)
    ex(SA, 9, 12)
    e("s_waitcnt lgkmcnt(4)")
    e(pv(OA, VF0, SA)); ex(SA, 12, 15); e(sm(LA, SA)); ex(SA, 15, 16)
def slotB(kt, last=False):
    c(f"--- key tile {kt}, q tile B: exp(B), finish PV(A)" + (" (last tile)" if last else ", QK(A) of the next tile"))
    q = qk(SA, QA, CA)
    ex(SB, 0, 2)
    e("s_waitcnt lgkmcnt(2)")
    if STAMP == 3: st_issue()
    e(pv(OA, VF1, SA+8)); ex(SB, 2, 5); e(sm(LA, SA+8)); ex(SB, 5, 6)
    if not last or STAMP == 3: e("s_waitcnt lgkmcnt(0)")
    kt_stamp(kt)
    if last:
        ex(SB, 6, 10)
        e(pv(OB, VF0, SB))
        ex(SB, 10, 12)
        c("tile A is complete: hand its partial sums to the partner wave")
        for j in range(4): e(f"ds_write_b128 v{vRED}, {vr(OA+4*j,4)} offset:{1024*j}")
        e(f"ds_write_b32 v{vVRl}, v{LA} offset:4096")
        ex(SB, 12, 13)
        e(sm(LB, SB))
        ex(SB, 13, 16)
        return
    e(q[0]); ex(SB, 6, 9); e(q[1])
    if kt == 3: e(f"v_add_u32 v{vVR}, s{sSLOT}, v{vVRl}")
    ex(SB, 9, 12)
    e(pv(OB, VF0, SB))
    rdV(VF0, (kt + 1) & 3, 0)
    ex(SB, 12, 15); e(sm(LB, SB)); ex(SB, 15, 16)

def ua_consts():
    c("bf16 -> f32 unpack on the matrix pipe: lane (m=l&31,h=l>>5) of A_i holds 1.0 at e=(m&3)+4*((m>>3)&1)")
    c("iff (m>>4)==i and ((m>>2)&1)==h, so D register 8i+e of a lane = element e of its own B operand i")
    e(f"v_bfe_u32 v{vT0}, v{vLANE}, 2, 1")
    e(f"v_lshrrev_b32 v{vT1}, 5, v{vLANE}")
    e(f"v_cmp_eq_u32 vcc, v{vT0}, v{vT1}")
    e(f"v_and_b32 v{vT0}, 1, v{vLANE}")
    e(f"v_lshlrev_b32 v{vT0}, 4, v{vT0}")
    e(f"v_mov_b32 v{vT1}, 0x3f80")
    e(f"v_lshlrev_b32 v{vT1}, v{vT0}, v{vT1}")
    e(f"v_cndmask_b32 v{vT1}, 0, v{vT1}, vcc")
    e(f"v_bfe_u32 v{vT0}, v{vLANE}, 1, 1")
    e(f"v_bfe_u32 v{vT2}, v{vLANE}, 3, 2")
    e(f"v_lshl_add_u32 v{vT0}, v{vT2}, 1, v{vT0}")
    for r in range(8):
        e(f"v_cmp_eq_u32 vcc, {r}, v{vT0}")
        e("s_nop 1")
        e(f"v_cndmask_b32 v{UA+r}, 0, v{vT1}, vcc")
def loadK(dst, soff):
    for j in range(4): e(f"buffer_load_dwordx4 {vr(dst+4*j,4)}, v{vG64}, s[{sK}:{sK+3}], s{soff} offen offset:{16*j}")
def loadV(soff):
    for j in range(4): e(f"buffer_load_dwordx4 v{vG16}, s[{sV}:{sV+3}], s{soff} offen offset:{1024*j} lds")
def goff(dst, idx_sgpr, add):
    e(f"s_add_u32 s{dst}, s{idx_sgpr}, {add}")
    e(f"s_lshl_b32 s{dst}, s{dst}, 14")
    e(f"s_add_u32 s{dst}, s{dst}, s{sC0}")
    e(f"s_and_b32 s{dst}, s{dst}, 0x1ffff")
    e(f"s_add_u32 s{dst}, s{dst}, s{sHEAD}")

e(f"{NAME}:")
for s, off in ((sQ, 0), (sK, 8), (sV, 16), (sTP, 24), (sO, 32), (sWS, 48)):
    e(f"s_load_dwordx2 s[{s}:{s+1}], s[0:1], {off}")
if STAMP: st_issue()
e("s_cmp_ge_u32 s2, 256")
e("s_cbranch_scc1 L_end")
c("head = (wg&7)*4 + ((wg>>3)&3), part = wg>>5 (the 8 parts of a head usually share an L2; speed only)")
e(f"v_lshrrev_b32 v{vT0}, 6, v0")
e(f"v_and_b32 v{vLANE}, 63, v0")
e(f"v_readfirstlane_b32 s{sWAVE}, v{vT0}")
e("s_and_b32 s3, s2, 7")
e("s_lshl_b32 s3, s3, 2")
e(f"s_bfe_u32 s{sTMP}, s2, 0x20003")
e(f"s_add_u32 s3, s3, s{sTMP}")
e(f"s_lshl_b32 s{sHEAD}, s3, 17")
e(f"s_lshr_b32 s{sPART}, s2, 5")
e(f"v_lshlrev_b32 v{vG16}, 4, v{vLANE}")
e(f"s_mov_b32 s{sQ+2}, 0x400000")
e(f"s_mov_b32 s{sQ+3}, 0x00020000")
for s in (sK, sV, sO): e(f"s_mov_b64 s[{s+2}:{s+3}], s[{sQ+2}:{sQ+3}]")
e(f"s_mov_b32 s{sWS+2}, 0x804000"); e(f"s_mov_b32 s{sWS+3}, 0x00020000")
e(f"s_cmp_ge_u32 s{sWAVE}, 4")
e("s_cbranch_scc1 L_consumer")
c("producer: first loads K(0) and K(1); parts 0,1 take the chunk they publish (2,3) ahead of their own K(1)")
e("s_setprio 3")
if opt("pf", 0):
    c("pull this kernel's code into L2 while the kernel arguments are still on their way")
    e(f"s_cmp_lg_u32 s{sWAVE}, 3")
    e("s_cbranch_scc1 L_nopf")
    e("s_getpc_b64 s[60:61]")
    e(f"v_min_u32 v{vT0}, 52, v{vLANE}")
    e(f"v_lshlrev_b32 v{vT0}, 7, v{vT0}")
    e(f"v_mov_b32 v{vTG2+1}, s61")
    e(f"v_add_co_u32 v{vTG2}, vcc, s60, v{vT0}")
    e("s_nop 1")
    e(f"v_addc_co_u32 v{vTG2+1}, vcc, 0, v{vTG2+1}, vcc")
    e(f"global_load_dword v{vFL}, {vr(vTG2,2)}, off offset:128")
    e("L_nopf:")
e(f"s_lshl_b32 s{sW}, s{sWAVE}, 12")
e(f"s_add_u32 s{sHEAD}, s{sHEAD}, s{sW}")
e(f"s_and_b32 s{sC0}, s3, 7"); e(f"s_lshl_b32 s{sC0}, s{sC0}, 14")
e(f"s_add_u32 s{sCUR}, s{sHEAD}, s{sC0}")
e(f"s_add_u32 s{sM0V}, s{sW}, 16384")
e(f"v_lshlrev_b32 v{vG64}, 6, v{vLANE}")
e(f"s_mov_b32 m0, s{sM0V}")
e(f"s_add_u32 s{sTMP2}, s{sC0}, 16384")
e(f"s_and_b32 s{sTMP2}, s{sTMP2}, 0x1ffff")
e(f"s_add_u32 s{sTMP2}, s{sTMP2}, s{sHEAD}")
goff(sPOFF, sPART, 2)
e(f"s_cmp_lt_u32 s{sPART}, 2")
e(f"s_cselect_b32 s{sTMP}, s{sPOFF}, s{sTMP2}")
e("s_waitcnt lgkmcnt(0)")
def dmaK(soff, ldsoff):
    e(f"s_add_u32 m0, s{sW}, {ldsoff}"); e("s_nop 0")
    for j in range(4): e(f"buffer_load_dwordx4 v{vG16}, s[{sK}:{sK+3}], s{soff} offen offset:{1024*j} lds")
def v0():
    if KD: e(f"s_mov_b32 m0, s{sM0V}"); e("s_nop 0")
    loadV(sCUR)
dmaK(sCUR, 0) if KD else loadK(RAW, sCUR)
if V0AT == 3: v0()
if KD: dmaK(sTMP, 32768)
elif not DEFER: loadK(RAW2, sTMP)
else: e(f"s_mov_b32 s{sGOFF}, s{sTMP}")
if V0AT == 1: v0()
e("s_branch L_producer")

c("===== consumer waves 4..11 =====")
e("L_consumer:")
e(f"s_sub_u32 s{sWAVE}, s{sWAVE}, 4")
e(f"s_lshl_b32 s{sW}, s{sWAVE}, 11")
e(f"s_lshl_b32 s{sTMP}, s{sPART}, 14")
e(f"s_add_u32 s{sQOFF}, s{sHEAD}, s{sTMP}")
e(f"s_add_u32 s{sQOFF}, s{sQOFF}, s{sW}")
e(f"s_lshr_b32 s{sTMP2}, s3, 1")
e(f"s_lshl_b32 s{sTMP2}, s{sTMP2}, 2")
e("s_waitcnt lgkmcnt(0)")
e(f"buffer_load_dwordx4 {vr(SA,4)}, v{vG16}, s[{sQ}:{sQ+3}], s{sQOFF} offen {QFLAGS}")
e(f"buffer_load_dwordx4 {vr(SA+4,4)}, v{vG16}, s[{sQ}:{sQ+3}], s{sQOFF} offen offset:1024 {QFLAGS}")
e(f"s_load_dword s{sT}, s[{sTP}:{sTP+1}], s{sTMP2}")
if V0AT == 2:
    c("V tile w of the first chunk, queued behind Q")
    e(f"s_add_u32 m0, s{sW}, 16384")
    e(f"s_and_b32 s{sTMP}, s3, 7"); e(f"s_lshl_b32 s{sTMP}, s{sTMP}, 14")
    e(f"s_add_u32 s{sTMP}, s{sTMP}, s{sHEAD}"); e(f"s_add_u32 s{sTMP}, s{sTMP}, s{sW}")
    e(f"buffer_load_dwordx4 v{vG16}, s[{sV}:{sV+3}], s{sTMP} offen lds")
    e(f"buffer_load_dwordx4 v{vG16}, s[{sV}:{sV+3}], s{sTMP} offen offset:1024 lds")
st_init()
ua_consts()
c("K' read: group*8192 + lane*16")
e(f"s_and_b32 s{sTMP}, s{sWAVE}, 4")
e(f"s_lshl_b32 s{sTMP}, s{sTMP}, 11")
e(f"v_add_u32 v{vKRl}, s{sTMP}, v{vG16}")
c("V transposed read: (8*(l>>5) + ((l>>2)&3))*64 + ((l>>4)&1)*32 + (l&3)*8 + 16384 + group*8192")
e(f"v_lshrrev_b32 v{vT0}, 5, v{vLANE}")
e(f"v_lshlrev_b32 v{vT0}, 9, v{vT0}")
e(f"v_bfe_u32 v{vT1}, v{vLANE}, 2, 2")
e(f"v_lshl_add_u32 v{vT0}, v{vT1}, 6, v{vT0}")
e(f"v_bfe_u32 v{vT1}, v{vLANE}, 4, 1")
e(f"v_lshl_add_u32 v{vT0}, v{vT1}, 5, v{vT0}")
e(f"v_and_b32 v{vT1}, 3, v{vLANE}")
e(f"v_lshl_add_u32 v{vT0}, v{vT1}, 3, v{vT0}")
e(f"s_add_u32 s{sTMP}, s{sTMP}, 16384")
e(f"v_add_u32 v{vVRl}, s{sTMP}, v{vT0}")
e(f"v_mov_b32 v{vKR}, v{vKRl}")
e(f"v_mov_b32 v{vVR}, v{vVRl}")
c("sparse index: elements 1 and 3 of every group of four = the high halves of two f32 registers")
e(f"v_mov_b32 v{vIDX}, 0xdddddddd")
c("Q' write: LDS_Q + w*QSTR + (l&3)*544 + (l>>2)*16 ; read: LDS_Q + tile*QSTR + (l>>5)*544 + (l&31)*16")
e(f"s_mul_i32 s{sTMP}, s{sWAVE}, {QSTR}")
e(f"s_add_u32 s{sTMP}, s{sTMP}, {LDS_Q}")
e(f"v_mul_u32_u24 v{vT0}, 544, v{vT1}")
e(f"v_lshrrev_b32 v{vT1}, 2, v{vLANE}")
e(f"v_lshl_add_u32 v{vT0}, v{vT1}, 4, v{vT0}")
e(f"v_add_u32 v{vQW}, s{sTMP}, v{vT0}")
e(f"v_lshrrev_b32 v{vT1}, 5, v{vLANE}")
e(f"v_lshl_add_u32 v{vT0}, v{vT1}, 5, v{vG16}")
c("q tile B = own tile w, q tile A = the partner's tile w^4")
e(f"v_add_u32 v{vQR}, s{sTMP}, v{vT0}")
e(f"s_xor_b32 s{sTMP2}, s{sWAVE}, 4")
e(f"s_mul_i32 s{sTMP2}, s{sTMP2}, {QSTR}")
e(f"s_add_u32 s{sTMP2}, s{sTMP2}, {LDS_Q}")
e(f"v_add_u32 v{vT3}, s{sTMP2}, v{vT0}")
c("row-sum selector: row 0 sums queries 0..15, row 4 queries 16..31 (result in lanes 0..31)")
e(f"v_and_b32 v{vT0}, 15, v{vLANE}")
e(f"v_mov_b32 v{vT1}, 0x3f803f80")
e(f"v_cmp_eq_u32 vcc, 0, v{vT0}")
e("s_nop 1")
e(f"v_cndmask_b32 v{ONES}, 0, v{vT1}, vcc")
e(f"v_cmp_eq_u32 vcc, 4, v{vT0}")
e(f"v_mov_b32 v{ONES+1}, v{ONES}")
e("s_nop 0")
e(f"v_cndmask_b32 v{ONES+2}, 0, v{vT1}, vcc")
e(f"v_mov_b32 v{ONES+3}, v{ONES+2}")
c("exchange and output addresses")
e(f"s_lshl_b32 s{sTMP}, s{sWAVE}, 13")
e(f"v_add_u32 v{vRD}, s{sTMP}, v{vG16}")
e(f"v_xor_b32 v{vRED}, 0x8000, v{vRD}")
e(f"v_and_b32 v{vT0}, 31, v{vLANE}")
e(f"v_lshlrev_b32 v{vT0}, 6, v{vT0}")
e(f"v_lshrrev_b32 v{vT1}, 5, v{vLANE}")
e(f"v_lshl_add_u32 v{vROW}, v{vT1}, 4, v{vT0}")
c("output store: lane -> (row l&15, 16-byte chunk 2*((l>>4)&1) + (l>>5))")
e(f"v_and_b32 v{vT0}, 15, v{vLANE}")
e(f"v_lshlrev_b32 v{vT0}, 6, v{vT0}")
e(f"v_lshl_add_u32 v{vT0}, v{vT1}, 4, v{vT0}")
e(f"v_bfe_u32 v{vT1}, v{vLANE}, 4, 1")
e(f"v_lshl_add_u32 v{vOUT}, v{vT1}, 5, v{vT0}")
zero(list(range(OA, OA+16)) + list(range(OB, OB+16)) + list(range(LA, LA+4)) + list(range(LB, LB+4)) + list(range(VF1, VF1+4)))
e("s_waitcnt lgkmcnt(0)")
c("t[head] (bf16) -> f32; C = -|t|*log2e")
e(f"s_lshl_b32 s{sTMP}, s{sT}, 16")
e(f"s_and_b32 s{sTMP2}, s{sT}, 0xffff0000")
e("s_bitcmp1_b32 s3, 0")
e(f"s_cselect_b32 s{sT}, s{sTMP2}, s{sTMP}")
e(f"v_mov_b32 v{vTL}, 0x3fb8aa3b")
e(f"v_mul_f32 v{vTL}, s{sT}, v{vTL}")
e(f"v_or_b32 v{CA}, 0x80000000, v{vTL}")
e(f"v_mov_b32 v{CA+1}, v{CA}")
for j in range(2, 32, 2): e(f"v_mov_b64 {vr(CA+j,2)}, {vr(CA,2)}")
zero(range(SB+8, SB+16))
e(f"s_mov_b32 s{sSTG}, 0")
e(f"s_mov_b32 s{sSLOT}, 32768")
e(f"s_and_b32 s{sT}, s{sT}, 0x7fffffff")
c("Q' = q * t*log2e / (|q| + 1e-6): rows 16j + (l>>2), 8 elements per lane and j")
QU = QA
mark("cpre")
e(f"s_waitcnt vmcnt({2 if V0AT == 2 else 0})")
mark("cq")
for j in range(4):
    e(f"v_dot2_f32_bf16 v{vT0}, v{SA+j}, v{SA+j}, " + ("0" if j == 0 else f"v{vT0}"))
    e(f"v_dot2_f32_bf16 v{vT1}, v{SA+4+j}, v{SA+4+j}, " + ("0" if j == 0 else f"v{vT1}"))
unpack(SA, QU)
for qp in ("[1,0,3,2]", "[2,3,0,1]"):
    e("s_nop 0")
    e(f"v_add_f32_dpp v{vT0}, v{vT0}, v{vT0} quad_perm:{qp} row_mask:0xf bank_mask:0xf")
    e(f"v_add_f32_dpp v{vT1}, v{vT1}, v{vT1} quad_perm:{qp} row_mask:0xf bank_mask:0xf")
e(f"v_sqrt_f32 v{vT0}, v{vT0}")
e(f"v_sqrt_f32 v{vT1}, v{vT1}")
e(f"v_add_f32 v{vT0}, 0x358637bd, v{vT0}")
e(f"v_add_f32 v{vT1}, 0x358637bd, v{vT1}")
e(f"v_rcp_f32 v{vT0}, v{vT0}")
e(f"v_rcp_f32 v{vT1}, v{vT1}")
e(f"v_mul_f32 v{vT2}, v{vT0}, v{vTL}")
e(f"v_mul_f32 v{vT4}, v{vT1}, v{vTL}")
scale_pack(QU, 4, vT2, SA+8)
e(f"ds_write_b128 v{vQW}, {vr(SA+8,4)}")
scale_pack(QU+8, 4, vT4, SA+12)
e(f"ds_write_b128 v{vQW}, {vr(SA+12,4)} offset:256")
mark("cqn")
c("the bound |t|*log2e may stand in for the row maximum only while |t| <= 16 (NaN fails the test too)")
e(f"s_cmp_le_u32 s{sT}, 0x41800000")
e("s_waitcnt vmcnt(0) lgkmcnt(0)" if V0AT == 2 and not BV else "s_waitcnt lgkmcnt(0)")
e("s_barrier")
e(f"ds_read_b128 {vr(QA,4)}, v{vT3}")
e(f"ds_read_b128 {vr(QA+4,4)}, v{vT3} offset:1088")
e("s_cbranch_scc0 L_maxpass")
e("L_start:")
mark("cbar")
rdK(0)
e(f"ds_read_b128 {vr(QB,4)}, v{vQR}")
e(f"ds_read_b128 {vr(QB+4,4)}, v{vQR} offset:1088")
if not BV: rdV(VF0, 0, 0)
e(f"s_waitcnt lgkmcnt({2 if BV else 4})")
for s in qk(SA, QA, CA): e(s)
if BV:
    c("V(0) is published by a barrier of its own, behind the first QK")
    e("s_waitcnt vmcnt(0) lgkmcnt(0)")
    e("s_nop 7")
    e("s_barrier")
    mark("cloop2")
    rdV(VF0, 0, 0)
else:
    e("s_waitcnt lgkmcnt(2)")
    e("s_nop 7")
    e("s_nop 2")
mark("cloop")
e(f".p2align {opt('al', 3)}")
e("L_stage:")
for kt in range(4):
    slotA(kt)
    if kt == 3: e("s_cbranch_scc1 L_last")
    slotB(kt)
    if kt == 2:
        c("the next ring slot is complete once the producers are here")
        e(f"s_cmp_eq_u32 s{sSTG}, 7")
        e("s_barrier")
e(f"s_add_u32 s{sSTG}, s{sSTG}, 1")
e(f"s_add_u32 s{sSLOT}, s{sSLOT}, 32768")
e(f"s_and_b32 s{sSLOT}, s{sSLOT}, 0x1ffff")
e("s_branch L_stage")
e("L_last:")
mark("clast")
e("s_setprio 0")
c("row-sum exchange addresses (4-byte lane stride); the ring bases are dead now")
e(f"s_lshl_b32 s{sTMP}, s{sWAVE}, 13")
e(f"v_lshl_add_u32 v{vKRl}, v{vLANE}, 2, s{sTMP}")
e(f"v_xor_b32 v{vVRl}, 0x8000, v{vKRl}")
slotB(3, last=True)
e("s_nop 0")
e("s_waitcnt lgkmcnt(0)")
e(pv(OB, VF1, SB+8))
e(sm(LB, SB+8))
e("s_barrier")
e(f"ds_read_b32 v{LA}, v{vKRl} offset:4096")
for j in range(4): e(f"ds_read_b128 {vr(OA+4*j,4)}, v{vRD} offset:{1024*j}")
e("s_nop 3")
e("s_waitcnt lgkmcnt(4)")
e(f"v_add_f32 v{LA}, v{LA}, v{LB}")
e(f"v_rcp_f32 v{vT2}, v{LA}")
e("s_nop 0")
e(f"v_mov_b32 v{vT1}, v{vT2}")
PKo = SA
for j in range(4):
    e(f"s_waitcnt lgkmcnt({3-j})")
    for i in range(2):
        r = 4*j + 2*i
        e(f"v_pk_add_f32 {vr(OA+r,2)}, {vr(OA+r,2)}, {vr(OB+r,2)}")
    if j == 0: e(f"v_permlane32_swap_b32 v{vT2}, v{vT1}")
for i in range(8):
    e(f"v_pk_mul_f32 {vr(OA+2*i,2)}, {vr(OA+2*i,2)}, {vr(vT2,2)} op_sel_hi:[1,0]")
for i in range(8):
    e(f"v_cvt_pk_bf16_f32 v{PKo+i}, v{OA+2*i}, v{OA+2*i+1}")
    if i == 5:
        e(f"v_permlane32_swap_b32 v{PKo+0}, v{PKo+2}")
        e(f"v_permlane32_swap_b32 v{PKo+1}, v{PKo+3}")
e("s_nop 1")
e(f"v_permlane32_swap_b32 v{PKo+4}, v{PKo+6}")
e(f"v_permlane32_swap_b32 v{PKo+5}, v{PKo+7}")
e("s_nop 1")
for j in range(4): e(f"v_permlane16_swap_b32 v{PKo+j}, v{PKo+4+j}")
e("s_nop 1")
e(f"buffer_store_dwordx4 {vr(PKo,4)}, v{vOUT}, s[{sO}:{sO+3}], s{sQOFF} offen {STFLAGS}")
e(f"buffer_store_dwordx4 {vr(PKo+4,4)}, v{vOUT}, s[{sO}:{sO+3}], s{sQOFF} offen offset:1024 {STFLAGS}")
st_flush(sWAVE)
e("L_end:")
e("s_endpgm")

c("===== producer waves 0..3: K tiles 2w,2w+1 and V tiles 2w,2w+1 of every chunk (lane = key row) =====")
def pnorm(raw):
    acc = [vT0, vT4, vT1, vT4+1]
    for i in range(4):
        for ch in range(4):
            j = 4*ch + i
            e(f"v_dot2_f32_bf16 v{acc[ch]}, v{raw+j}, v{raw+j}, " + ("0" if i == 0 else f"v{acc[ch]}"))
    unpack(raw, UNP); unpack(raw+8, UNP+16)
    e(f"v_add_f32 v{vT0}, v{vT0}, v{vT1}")
    e(f"v_add_f32 v{vT4}, v{vT4}, v{vT4+1}")
    e(f"v_add_f32 v{vT0}, v{vT0}, v{vT4}")
    e(f"v_sqrt_f32 v{vT0}, v{vT0}"); e("s_nop 0")
    e(f"v_add_f32 v{vT0}, 0x358637bd, v{vT0}")
    e(f"v_rcp_f32 v{vT2}, v{vT0}")
    e("s_nop 5")
    scale_pack(UNP, 16, vT2, PK)
def wrK(addr, off=0):
    for j in range(4): e(f"ds_write_b128 v{addr}, {vr(PK+4*j,4)} offset:{off+512*j}")
def setm0(base_sgpr, add): e(f"s_add_u32 m0, s{base_sgpr}, {add}")
def poll():
    e(f"buffer_load_dword v{vFL}, v{vFA}, s[{sWS}:{sWS+3}], s{sFOFF} offen sc1")
    e("s_waitcnt vmcnt(0)")
    e(f"v_cmp_eq_u32 vcc, v{vFL}, v{vTAG}")
    e("s_nop 0")
    e(f"s_lshr_b32 s{sFLG}, vcc_lo, 2")
    e(f"s_lshr_b32 s{sTMP}, vcc_lo, 3")
    e(f"s_and_b32 s{sFLG}, s{sFLG}, s{sTMP}")
def publish():
    e(f"s_lshl_b32 s{sTMP}, s{sPART}, 14")
    e(f"s_add_u32 s{sTMP}, s{sTMP}, s{sWOFF}")
    for j in range(4): e(f"buffer_store_dwordx4 {vr(PK+4*j,4)}, v{vPUB}, s[{sWS}:{sWS+3}], s{sTMP} offen offset:{512*j} sc1")
def raise_flag():
    e(f"s_lshl_b32 s{sTMP}, s{sPART}, 3")
    e(f"s_add_u32 s{sTMP}, s{sTMP}, s{sFOFF}")
    e("s_mov_b64 exec, 1")
    e(f"buffer_store_dwordx2 {vr(vTG2,2)}, v{vFA}, s[{sWS}:{sWS+3}], s{sTMP} offen offset:8 sc1")
    e("s_mov_b64 exec, -1")
e("L_producer:")
st_init()
c("hand-off line of (head, wave): dwords 0,1 = generation G, dwords 2+2p,3+2p = flag of part p")
e(f"s_lshl_b32 s{sFOFF}, s3, 2")
e(f"s_add_u32 s{sFOFF}, s{sFOFF}, s{sWAVE}")
e(f"s_lshl_b32 s{sFOFF}, s{sFOFF}, 7")
e(f"s_add_u32 s{sFOFF}, s{sFOFF}, {WSF}")
e(f"v_min_u32 v{vFA}, 17, v{vLANE}")
e(f"v_lshlrev_b32 v{vFA}, 2, v{vFA}")
e(f"s_add_u32 s{sWOFF}, s{sHEAD}, {WSK}")
if opt("ge", 0): e(f"buffer_load_dword v{vFL}, v{vFA}, s[{sWS}:{sWS+3}], s{sFOFF} offen sc1")
ua_consts()
c("K' fragment address: tile (l>>5)*2048 + key*16 (+ 16-byte chunk c*512)")
e(f"v_and_b32 v{vT0}, 31, v{vLANE}")
e(f"v_lshlrev_b32 v{vT0}, 4, v{vT0}")
e(f"v_lshrrev_b32 v{vT1}, 5, v{vLANE}")
e(f"v_lshl_add_u32 v{vPUB}, v{vT1}, 11, v{vT0}")
e(f"v_add_u32 v{vKWl}, s{sW}, v{vPUB}")
if KD: e(f"v_add_u32 v{vKW}, s{sW}, v{vG64}")
e(f"s_mov_b32 s{sFLG}, 0")
e(f"s_mov_b32 s{sPEND}, 0")
e(f"s_mov_b32 s{sSTG}, 0")
c("parts 2..5 publish chunk part+2 in iteration part-2")
e(f"s_sub_u32 s{sIP}, s{sPART}, 2")
e(f"s_cmp_ge_u32 s{sPART}, 6")
e(f"s_cselect_b32 s{sIP}, 100, s{sIP}")
c("--- K(0), then K(1) (or the chunk to publish)")
GE = opt("ge", 0)
def loadG(): e(f"buffer_load_dword v{vFL}, v{vFA}, s[{sWS}:{sWS+3}], s{sFOFF} offen sc1")
if DEFER:
    assert not GE
    loadK(RAW2, sGOFF)
mark("ppre")
e(f"s_waitcnt vmcnt({ {0: 4, 1: 8, 2: 4, 3: 8}[V0AT] + GE })")
mark("pk0")
def rdraw(dst, off):
    for j in range(4): e(f"ds_read_b128 {vr(dst+4*j,4)}, v{vKW} offset:{off+16*j}")
if KD: rdraw(RAW, 0)
if V0AT == 0: v0()
if not GE: loadG()
if KD: e("s_waitcnt lgkmcnt(0)")
pnorm(RAW); wrK(vKWl)
if DEFER:
    e("s_waitcnt lgkmcnt(0)"); e("s_barrier")
e(f"s_waitcnt vmcnt({ {0: 5, 1: 5, 2: 1, 3: 1}[V0AT] }) lgkmcnt(0)")
mark("pk1")
if KD:
    rdraw(RAW2, 32768); e("s_waitcnt lgkmcnt(0)")
pnorm(RAW2)
mark("pk1n")
e(f"s_cmp_ge_u32 s{sPART}, 2")
e("s_cbranch_scc1 L_k1")
publish()
loadK(RAW, sTMP2)
g_ = 0 if (GE and V0AT == 0) else 1
if BV and not DEFER: e("s_barrier")
e(f"s_waitcnt vmcnt({8 + g_})")
e("s_branch L_k1d")
e("L_k1:")
wrK(vKWl, 32768)
if BV and not DEFER: e("s_barrier")
e(f"s_waitcnt vmcnt({g_}) lgkmcnt(0)")
e("L_k1d:")
mark("pv0")
if not DEFER or BV: e("s_barrier")
c("--- V(1), V(2); flags of parts 0,1,6,7; K(1) of parts 0,1; part 2 fetches its raw chunk")
setm0(sM0V, 32768)
goff(sGOFF, sSTG, 2)
loadV(sTMP2)
setm0(sM0V, 65536)
e(f"s_mov_b32 s{sSLOT}, 65536")
loadV(sGOFF)
e("s_waitcnt vmcnt(8)")
c("tag of this launch: T = G + 0x9e3779b97f4a7c15")
e(f"v_readlane_b32 s{sTAG}, v{vFL}, 0")
e(f"v_readlane_b32 s{sTAG+1}, v{vFL}, 1")
e(f"v_and_b32 v{vT0}, 1, v{vLANE}")
e(f"s_add_u32 s{sTAG}, s{sTAG}, 0x7f4a7c15")
e(f"s_addc_u32 s{sTAG+1}, s{sTAG+1}, 0x9e3779b9")
e(f"v_cmp_eq_u32 vcc, 1, v{vT0}")
e(f"v_mov_b32 v{vTG2}, s{sTAG}")
e(f"v_mov_b32 v{vTG2+1}, s{sTAG+1}")
e(f"v_cndmask_b32 v{vTAG}, v{vTG2}, v{vTG2+1}, vcc")
e(f"s_cmp_lt_u32 s{sIP}, 6")
e("s_cbranch_scc1 L_i1")
raise_flag()
e(f"s_cmp_ge_u32 s{sPART}, 2")
e("s_cbranch_scc1 L_i2")
pnorm(RAW); wrK(vKWl, 32768)
e("L_i2:")
e("s_waitcnt vmcnt(5) lgkmcnt(0)")
e("s_branch L_i3")
e("L_i1:")
e("s_waitcnt vmcnt(4)")
e(f"s_cmp_lg_u32 s{sIP}, 0")
e("s_cbranch_scc1 L_i3")
loadK(RAW3, sPOFF)
e("L_i3:")
e("s_barrier")
c("--- iteration i = 0..5: K'(i+2), V(i+3)")
e("L_ploop:")
e("s_waitcnt vmcnt(0)")
e(f"s_cmp_eq_u32 s{sPEND}, 0")
e("s_cbranch_scc1 L_nopend")
c("the stores of the published chunk are acknowledged: raise this wave's flag")
raise_flag()
e(f"s_mov_b32 s{sPEND}, 0")
e("L_nopend:")
c("is chunk i+2 published (by part i)?  bounded polling, else normalise locally")
e(f"s_mov_b32 s{sCNT}, {NPOLL}")
e("L_poll:")
e(f"s_lshl_b32 s{sTMP}, s{sSTG}, 1")
e(f"s_bitcmp1_b32 s{sFLG}, s{sTMP}")
e("s_cbranch_scc1 L_ready")
e(f"s_cmp_eq_u32 s{sCNT}, 0")
e("s_cbranch_scc1 L_local")
e(f"s_sub_u32 s{sCNT}, s{sCNT}, 1")
poll()
e("s_branch L_poll")
e("L_local:")
loadK(RAW, sGOFF)
e(f"v_add_u32 v{vKW}, s{sSLOT}, v{vKWl}")
e("s_waitcnt vmcnt(0)")
pnorm(RAW)
wrK(vKW)
e("s_waitcnt lgkmcnt(0)")
e("s_branch L_have")
e("L_ready:")
e(f"s_lshl_b32 s{sTMP}, s{sSTG}, 14")
e(f"s_add_u32 s{sTMP}, s{sTMP}, s{sWOFF}")
setm0(sW, f"s{sSLOT}")
e("s_nop 0")
for j in range(4): e(f"buffer_load_dwordx4 v{vG16}, s[{sWS}:{sWS+3}], s{sTMP} offen offset:{1024*j} sc1 lds")
e("L_have:")
e(f"s_cmp_eq_u32 s{sSTG}, 5")
e("s_cbranch_scc1 L_plast")
e(f"s_add_u32 s{sSLOT}, s{sSLOT}, 32768")
e(f"s_and_b32 s{sSLOT}, s{sSLOT}, 0x1ffff")
setm0(sM0V, f"s{sSLOT}")
goff(sGOFF, sSTG, 3)
loadV(sGOFF)
e(f"s_cmp_eq_u32 s{sSTG}, s{sIP}")
e("s_cbranch_scc1 L_pub")
e(f"s_add_u32 s{sSTG}, s{sSTG}, 1")
e(f"s_cmp_eq_u32 s{sSTG}, s{sIP}")
e("s_cbranch_scc1 L_raw")
e("s_waitcnt vmcnt(4)")
e("L_pbar:")
e("s_barrier")
e("s_branch L_ploop")
e("L_pub:")
pnorm(RAW3); publish()
e(f"s_mov_b32 s{sPEND}, 1")
e(f"s_add_u32 s{sSTG}, s{sSTG}, 1")
e("s_waitcnt vmcnt(8)")
e("s_branch L_pbar")
e("L_raw:")
loadK(RAW3, sPOFF)
e("s_waitcnt vmcnt(8)")
e("s_branch L_pbar")
e("L_plast:")
if opt("touch", 0):
    c("fetch the address translation of this workgroup's output rows ahead of the stores (the value is not used)")
    e(f"s_lshl_b32 s{sTMP}, s{sPART}, 14")
    e(f"s_add_u32 s{sTMP}, s{sTMP}, s{sHEAD}")
    e("s_mov_b64 exec, 1")
    e(f"buffer_load_dword v{RAW}, v{vFA}, s[{sO}:{sO+3}], s{sTMP} offen nt")
    e("s_mov_b64 exec, -1")
e("s_waitcnt vmcnt(0)")
e("s_barrier")
c("part 7: once every part has raised its flag (so has read G), advance the generation for the next launch")
e(f"s_cmp_lg_u32 s{sPART}, 7")
e("s_cbranch_scc1 L_pend")
e("L_fin:")
e(f"s_and_b32 s{sTMP}, s{sFLG}, 0x5555")
e(f"s_cmp_eq_u32 s{sTMP}, 0x5555")
e("s_cbranch_scc1 L_bump")
poll()
e("s_branch L_fin")
e("L_bump:")
e("s_mov_b64 exec, 1")
e(f"buffer_store_dwordx2 {vr(vTG2,2)}, v{vFA}, s[{sWS}:{sWS+3}], s{sFOFF} offen sc1")
e("s_mov_b64 exec, -1")
e("L_pend:")
if STAMP:
    e(f"s_add_u32 s{sTMP}, s{sWAVE}, 8")
    st_flush(sTMP)
e("s_endpgm")

c("===== |t| > 16 (or NaN): true row maximum of the logits over all 2048 keys, then the main loop with C = -max =====")
e("L_maxpass:")
e(f"ds_read_b128 {vr(QB,4)}, v{vQR}")
e(f"ds_read_b128 {vr(QB+4,4)}, v{vQR} offset:1088")
c("lane (key=l&31,h=l>>5): fragment i = bytes key*64 + i*32 + h*16")
e(f"s_mov_b32 s{sTMP}, s{sHEAD}")
e(f"s_mov_b32 s{sTMP2}, 0")
e(f"v_mov_b32 v{vT3}, 0xff800000")
e(f"v_mov_b32 v{vT4}, 0xff800000")
e("s_waitcnt lgkmcnt(0)")
e("L_maxloop:")
e(f"buffer_load_dwordx4 {vr(SB,4)}, v{vROW}, s[{sK}:{sK+3}], s{sTMP} offen")
e(f"buffer_load_dwordx4 {vr(SB+4,4)}, v{vROW}, s[{sK}:{sK+3}], s{sTMP} offen offset:32")
e("s_waitcnt vmcnt(0)")
unpack(SB, OA)
for j in range(4):
    e(f"v_dot2_f32_bf16 v{vT0}, v{SB+j}, v{SB+j}, " + ("0" if j == 0 else f"v{vT0}"))
    e(f"v_dot2_f32_bf16 v{vT1}, v{SB+4+j}, v{SB+4+j}, " + ("0" if j == 0 else f"v{vT1}"))
e("s_nop 2")
e(f"v_add_f32 v{vT0}, v{vT0}, v{vT1}")
e(f"v_mov_b32 v{vT1}, v{vT0}"); e("s_nop 1")
e(f"v_permlane32_swap_b32 v{vT0}, v{vT1}"); e("s_nop 1")
e(f"v_add_f32 v{vT0}, v{vT0}, v{vT1}")
e(f"v_sqrt_f32 v{vT0}, v{vT0}"); e("s_nop 0")
e(f"v_add_f32 v{vT0}, 0x358637bd, v{vT0}")
e(f"v_rcp_f32 v{vT2}, v{vT0}"); e("s_nop 0")
scale_pack(OA, 8, vT2, OB)
e("s_nop 1")
for S, Q in ((CA, QA), (CB, QB)):
    e(f"v_mfma_f32_32x32x16_bf16 {vr(S,16)}, {vr(OB,4)}, {vr(Q,4)}, 0")
    e(f"v_mfma_f32_32x32x16_bf16 {vr(S,16)}, {vr(OB+4,4)}, {vr(Q+4,4)}, {vr(S,16)}")
e("s_nop 15")
for S, M in ((CA, vT3), (CB, vT4)):
    for j in range(8): e(f"v_max3_f32 v{M}, v{S+2*j}, v{S+2*j+1}, v{M}")
e(f"s_add_u32 s{sTMP}, s{sTMP}, 2048")
e(f"s_add_u32 s{sTMP2}, s{sTMP2}, 1")
e(f"s_cmp_lt_u32 s{sTMP2}, 64")
e("s_cbranch_scc1 L_maxloop")
for C, M in ((CA, vT3), (CB, vT4)):
    e(f"v_mov_b32 v{vT0}, v{M}")
    e("s_nop 1")
    e(f"v_permlane32_swap_b32 v{vT0}, v{M}")
    e("s_nop 1")
    e(f"v_max_f32 v{M}, v{M}, v{vT0}")
    e(f"v_xor_b32 v{C}, 0x80000000, v{M}")
    for j in range(1, 16): e(f"v_mov_b32 v{C+j}, v{C}")
zero(list(range(OA, OA+16)) + list(range(OB, OB+16)))
e("s_branch L_start")

nv = max(136, (NV + 7) // 8 * 8)
src = HEADER + f"; @launch grid=(256,1,1) block=(768,1,1) lds={LDS_TOTAL}\n" + DOC + f""".amdgcn_target "amdgcn-amd-amdhsa--gfx950"
.text
.globl {NAME}
.p2align 8
.type {NAME},@function
""" + "\n".join(L) + f"""
.section .rodata,"a"
.p2align 6
.amdhsa_kernel {NAME}
  .amdhsa_next_free_vgpr {nv}
  .amdhsa_next_free_sgpr 64
  .amdhsa_accum_offset {nv}
  .amdhsa_group_segment_fixed_size 0
  .amdhsa_kernarg_size 56
  .amdhsa_user_sgpr_count 2
  .amdhsa_user_sgpr_kernarg_segment_ptr 1
  .amdhsa_system_sgpr_workgroup_id_x 1
.end_amdhsa_kernel
"""
open(sys.argv[1], "w").write(src)
print("vgprs", NV, "->", nv)
```
